```python
import torch

def _softmax(x, axis=-1):
    return torch.softmax(x, dim=axis)

def _gelu(x):
    return torch.nn.functional.gelu(x, approximate='tanh')

def _silu(x):
    return torch.nn.functional.silu(x)

def _sigmoid(x):
    return torch.sigmoid(x)

def _layernorm(x, axis=-1, eps=1e-05):
    m = x.mean(dim=axis, keepdim=True)
    v = x.var(dim=axis, keepdim=True, unbiased=False)
    return (x - m) / torch.sqrt(v + eps)

def _scatter_add(tgt, idx, src, axis=0):
    return tgt.clone().index_add_(axis, idx, src)

def _segment_sum(src, seg, n):
    out = torch.zeros((n,) + src.shape[1:], dtype=src.dtype)
    return out.index_add_(0, seg, src)

def _pad(x, pw):
    flat = tuple((v for pair in reversed(pw) for v in pair))
    return torch.nn.functional.pad(x, flat)
kernel_name = 'adaLN_cond__sliding_block_cached__dense_activation_silu__decode'

def setup_inputs():

    _w = lambda a: (lambda t: t.to(torch.bfloat16) if t.is_floating_point() else t)(torch.as_tensor(a))

    def _A_setup():
        B, Sq, D = (2, 1, 512)
        Hq, Hkv, Sk, Dh = (32, 8, 32768, 128)
        assert Hq % Hkv == 0, (Hq, Hkv)
        return {'x': _w((lambda *s: torch.randn(*s, dtype=torch.bfloat16) * 0.1)(B, Sq, D)), 'k_cache': _w((lambda *s: torch.randn(*s, dtype=torch.bfloat16) * 0.8)(B, Hkv, Sk, Dh)), 'v_cache': _w((lambda *s: torch.randn(*s, dtype=torch.bfloat16) * 3.2)(B, Hkv, Sk, Dh)), 'wq': _w((lambda *s: torch.randn(*s, dtype=torch.bfloat16) * 0.8)(D, Hq * Dh) * D ** (-0.5)), 'wo': _w((lambda *s: torch.randn(*s, dtype=torch.bfloat16) * 3.2)(Hq * Dh, D) * (Hq * Dh) ** (-0.5))}
    _A_in = _A_setup()

    def _B_setup():
        B, S, D, F = (2, 1, 512, 1792)
        return {'x': _w((lambda *s: torch.randn(*s, dtype=torch.bfloat16) * 0.1)(B, S, D)), 'w1': _w((lambda *s: torch.randn(*s, dtype=torch.bfloat16) * 3.2)(D, F) * D ** (-0.5)), 'w2': _w((lambda *s: torch.randn(*s, dtype=torch.bfloat16) * 3.2)(F, D) * F ** (-0.5))}
    _B_in = _B_setup()
    return {'A_x': _A_in['x'], 'A_k_cache': _A_in['k_cache'], 'A_v_cache': _A_in['v_cache'], 'A_wq': _A_in['wq'], 'A_wo': _A_in['wo'], 'B_x': _B_in['x'], 'B_w1': _B_in['w1'], 'B_w2': _B_in['w2'], 'c': _w((lambda *s: torch.randn(*s, dtype=torch.bfloat16) * 0.2)(2, 512) * 8.0), 'w_mod': _w((lambda *s: torch.randn(*s, dtype=torch.bfloat16) * 0.2)(512, 6 * 512) * 512 ** (-0.5) * 8.0)}

def reference(A_x, A_k_cache, A_v_cache, A_wq, A_wo, B_x, B_w1, B_w2, c, w_mod):

    def _A_ref(x, k_cache, v_cache, wq, wo):
        B, Sq, D = x.shape
        Hq, Dh = (32, 128)
        Hkv, Sk = (k_cache.shape[1], k_cache.shape[2])
        W = min(4096, max(256, Sk // 4))
        rep = Hq // Hkv
        q = (lambda x, *d: x.permute(*d))((x @ wq).reshape(B, Sq, Hq, Dh), 0, 2, 1, 3)
        k = (lambda x, n, axis: torch.repeat_interleave(x, n, dim=axis))(k_cache[:, :, Sk - W:, :], rep, axis=1)
        v = (lambda x, n, axis: torch.repeat_interleave(x, n, dim=axis))(v_cache[:, :, Sk - W:, :], rep, axis=1)
        scores = torch.einsum('bhqd,bhkd->bhqk', q, k) * Dh ** (-0.5)
        p = _softmax(scores, axis=-1)
        o = torch.einsum('bhqk,bhkd->bhqd', p, v)
        return (lambda x, *d: x.permute(*d))(o, 0, 2, 1, 3).reshape(B, Sq, Hq * Dh) @ wo

    def _B_ref(x, w1, w2):
        h = torch.einsum('bsd,df->bsf', x, w1)
        h = _silu(h)
        out = torch.einsum('bsf,fd->bsd', h, w2)
        return out
    x = A_x
    mod = (_silu(c) @ w_mod).reshape(c.shape[0], 6, 1, -1)
    sa, ca, ga, sb, cb, gb = (mod[:, 0].clone(), mod[:, 1].clone(), mod[:, 2].clone(), mod[:, 3].clone(), mod[:, 4].clone(), mod[:, 5].clone())
    h = _layernorm(x, axis=-1) * (1 + ca) + sa
    x = x + ga * _A_ref(h, A_k_cache, A_v_cache, A_wq, A_wo)
    h = _layernorm(x, axis=-1) * (1 + cb) + sb
    x = x + gb * _B_ref(h, B_w1, B_w2)
    return x
```

```python
import re

TRANS = ("v_exp_f32", "v_log_f32", "v_rcp_f32", "v_rsq_f32", "v_sqrt_f32", "v_sin_f32", "v_cos_f32")

def _regs(tok):
    tok = tok.strip()
    if tok.startswith("-"): tok = tok[1:]
    m = re.fullmatch(r"abs\((.*)\)|\|(.*)\|", tok)
    if m: tok = m.group(1) or m.group(2)
    m = re.fullmatch(r"([vs])(\d+)", tok)
    if m: return {(m.group(1), int(m.group(2)))}
    m = re.fullmatch(r"([vs])\[(\d+):(\d+)\]", tok)
    if m: return {(m.group(1), i) for i in range(int(m.group(2)), int(m.group(3)) + 1)}
    if tok == "vcc": return {("s", "vcc_lo"), ("s", "vcc_hi")}
    if tok in ("vcc_lo", "vcc_hi"): return {("s", tok)}
    if tok == "m0": return {("s", "m0")}
    if tok == "exec": return {("s", "exec_lo"), ("s", "exec_hi")}
    if tok in ("exec_lo", "exec_hi"): return {("s", tok)}
    return set()

class Ins:
    def __init__(self, text):
        self.text = text
        body = text.split(";")[0].strip()
        parts = body.split(None, 1)
        self.op = parts[0]
        rest = parts[1] if len(parts) > 1 else ""
        toks = [t.strip() for t in rest.split(",")] if rest else []
        mods = ""
        if toks:
            sp = toks[-1].split(None, 1)
            toks[-1] = sp[0]
            mods = sp[1] if len(sp) > 1 else ""
        self.toks = toks; self.mods = mods
        op = self.op
        self.states = 1
        self.kind = "other"
        self.w = set(); self.r = set()
        self.srcc = set(); self.ab = set(); self.stdata = set()
        R = [_regs(t) for t in toks]
        if op == "s_nop":
            self.states = int(toks[0]) + 1
        elif op.startswith("v_mfma"):
            self.kind = "mfma"; self.w = R[0]; self.ab = R[1] | R[2]; self.srcc = R[3]; self.r = self.ab | self.srcc
        elif op.startswith("v_"):
            self.kind = "valu"
            if op.startswith("v_cmp"):
                self.w = R[0]; self.r = set().union(*R[1:])
            elif op.startswith("v_permlane"):
                self.w = R[0] | R[1]; self.r = R[0] | R[1]
            elif op.startswith(("v_add_co", "v_sub_co", "v_addc_co", "v_subb_co")):
                self.w = R[0] | R[1]; self.r = set().union(*R[2:])
            else:
                self.w = R[0]; self.r = set().union(*R[1:]) if len(R) > 1 else set()
                if op.startswith(("v_fmac", "v_dot2c", "v_writelane")): self.r |= R[0]
                if op.startswith("v_cndmask") and len(toks) == 3: self.r |= _regs("vcc")
            self.dpp = ("_dpp" in op) or any(k in mods for k in ("row_", "quad_perm", "wave_"))
            if self.dpp: self.r |= R[0]
            self.trans = op.replace("_e32", "").replace("_e64", "") in TRANS
            self.lane = op.startswith(("v_readlane", "v_readfirstlane"))
            self.perm = op.startswith("v_permlane")
        elif op.startswith(("buffer_", "global_", "flat_")):
            self.kind = "vmem"
            self.lds = " lds" in (" " + mods) or "load_lds" in op
            allr = set().union(*R) if R else set()
            if "load" in op and not self.lds:
                self.w = R[0]; self.r = set().union(*R[1:])
            else:
                self.r = allr
                if "store" in op and ("x4" in op or "x3" in op):
                    self.stdata = R[0] if op.startswith("buffer_") else R[1]
        elif op.startswith("ds_"):
            self.kind = "ds"
            if "read" in op or "permute" in op or "_rtn" in op:
                self.w = R[0]; self.r = set().union(*R[1:])
            else:
                self.r = set().union(*R)
        elif op.startswith("s_"):
            self.kind = "salu"
            if op.startswith(("s_cmp", "s_cbranch", "s_branch", "s_waitcnt", "s_barrier", "s_endpgm", "s_sleep", "s_setprio", "s_bitcmp", "s_setpc")):
                self.r = set().union(*R) if R else set()
            else:
                self.w = R[0] if R else set(); self.r = set().union(*R[1:]) if len(R) > 1 else set()
                if "saveexec" in op: self.w |= _regs("exec")

def need(prev, cur):
    n = 0
    pv = {x for x in prev.w if x[0] == "v"}; ps = {x for x in prev.w if x[0] == "s"}
    if prev.kind == "valu":
        if cur.kind == "valu":
            if cur.lane and (pv & cur.r): n = max(n, 1)
            if (cur.dpp or cur.perm) and (pv & cur.r): n = max(n, 2)
            if prev.trans and not cur.trans and (pv & cur.r): n = max(n, 1)
            if ps & cur.r: n = max(n, 4 if cur.op.startswith(("v_readlane", "v_writelane")) else 2)
        if cur.kind == "mfma" and ((pv | ps) & cur.r): n = max(n, 2)
        if cur.kind == "vmem" and (ps & cur.r): n = max(n, 5)
    if prev.kind == "mfma":
        if cur.kind == "mfma":
            if prev.w & cur.ab: n = max(n, 8)
            if prev.w & cur.srcc and prev.w != cur.srcc: n = max(n, 6)
            if prev.w & cur.w and not (prev.w == cur.srcc): n = max(n, 8)
        elif cur.kind in ("valu", "vmem", "ds"):
            if prev.w & (cur.r | cur.w): n = max(n, 8)
            if cur.kind == "valu" and (prev.srcc & cur.w): n = max(n, 3)
    if prev.kind == "vmem" and prev.stdata:
        if prev.stdata & cur.w: n = max(n, 2)
    if prev.kind == "salu" and ("s", "m0") in prev.w and cur.kind == "vmem" and getattr(cur, "lds", False): n = max(n, 1)
    return n

class Asm:
    def __init__(self):
        self.lines = []
        self.hist = []
        self.nlab = 0
        self.nops = 0
    def raw(self, s):
        self.lines.append(s)
    def label(self, name):
        self.lines.append(name + ":")
    def newlab(self, p="L"):
        self.nlab += 1
        return "%s_%d" % (p, self.nlab)
    def __call__(self, text):
        for t in text.split("\n"):
            t = t.strip()
            if not t: continue
            if t.endswith(":") or t.startswith((".", ";")):
                self.lines.append(t); continue
            ins = Ins(t)
            dist = 0; req = 0
            for p in reversed(self.hist):
                req = max(req, need(p, ins) - dist)
                dist += p.states
                if dist >= 10: break
            if req > 0:
                nop = Ins("s_nop %d" % (req - 1))
                self.lines.append("    " + nop.text); self.hist.append(nop); self.nops += 1
            self.lines.append("    " + t); self.hist.append(ins)
            if ins.op in ("s_branch", "s_endpgm", "s_setpc_b64"):
                self.hist = []
            self.hist = self.hist[-12:]
    def text(self):
        return "\n".join(self.lines) + "\n"
```

```python
import sys
from asmlib import Asm

NAME = "adaLN_cond__sliding_block_cached__dense_activation_silu__decode"
KNAME = NAME + "_kernel"

L_WQ = 0
L_K = 16384
L_V = L_K + 65536
L_MOD = L_V + 49152
L_S = L_V + 65536
C_PROG, C_MOD, C_A, C_K, C_B, C_C, C_D, C_SAME, C_ALPHA = 0, 4, 8, 12, 16, 20, 24, 28, 32
S_ALPHA = 128
S_WM = 256
S_WL = 320
S_C = 512
S_H = 3072
S_Q = 3712
S_P = 4992
S_O = 7296
S_U = 7936
S_X = 8576
LDS_BYTES = 163840
W_E = 0
W_XC = 0x1000
W_MOD = 0x2000
W_Q = 0x20000
W_ST = 0x40000
W_W = 0x48000
W_U = 0x68000
W_F = 0xA0000
W_O = 0x100000
W_STAMP = 0x200000
WS_SIZE = 0x400000

L2E = 1.4426950408889634
TO_V = 30000
TO_L = 600000

def f2u(x):
    import struct
    return "0x%08x" % struct.unpack("<I", struct.pack("<f", x))[0]

class Gen:
    def __init__(self, W=24, debug=False, warm=True, forcediff=False):
        self.a = Asm()
        self.W = W
        self.debug = debug
        self.warm = warm
        self.forcediff = forcediff
        self.npad = 0

    def stamp(self, i):
        if self.debug:
            self.a("s_memrealtime s[%d:%d]" % (64 + 2 * i, 65 + 2 * i))

    def pad(self):
        if self.warm:
            self.a.label("L_pad%d" % self.npad)
            self.npad += 1
            self.a("s_cbranch_execz L_pad%d" % self.npad)

    def execm(self, m16):
        v = m16 | (m16 << 16)
        self.a("s_mov_b32 exec_lo, 0x%08x\ns_mov_b32 exec_hi, 0x%08x" % (v, v))

    def execall(self):
        self.a("s_mov_b64 exec, -1")

    def smask(self, s, m16):
        v = m16 | (m16 << 16)
        self.a("s_mov_b32 s%d, 0x%08x\ns_mov_b32 s%d, 0x%08x" % (s, v, s + 1, v))

    def lwait(self, cnt, needv, cache=None, vt="v9", vls="v15", st="s42"):
        a = self.a
        ok = a.newlab("Lok"); sp = a.newlab("Lsp")
        s = cache or st
        if cache:
            a("s_cmp_ge_i32 %s, %s" % (cache, needv))
            a("s_cbranch_scc1 %s" % ok)
        a("s_mov_b32 s35, 0")
        a.label(sp)
        a("ds_read_b32 %s, %s offset:%d" % (vt, vls, cnt))
        a("s_waitcnt lgkmcnt(0)")
        a("v_readfirstlane_b32 %s, %s" % (s, vt))
        a("s_add_u32 s35, s35, 1")
        a("s_cmp_ge_i32 %s, %s" % (s, needv))
        a("s_cbranch_scc1 %s" % ok)
        a("s_cmp_lt_u32 s35, %d" % TO_L)
        a("s_cbranch_scc1 %s" % sp)
        a("s_endpgm")
        a.label(ok)

    def lsignal(self, cnt):
        a = self.a
        a("s_mov_b64 exec, 1")
        a("ds_add_u32 v15, v16 offset:%d" % cnt)
        a("s_mov_b64 exec, -1")

    def gather(self, loads, acc="v9", pre=None):
        a = self.a
        tr = a.newlab("Ltry"); ok = a.newlab("Lok")
        a("s_mov_b32 s35, 0")
        a.label(tr)
        n = len(loads)
        for (r, va, so, imm) in loads:
            a("buffer_load_dwordx4 v[%d:%d], %s, s[36:39], %s offen offset:%d sc1" % (r, r + 3, va, so, imm))
        for i, (r, va, so, imm) in enumerate(loads):
            a("s_waitcnt vmcnt(%d)" % (n - 1 - i))
            for k in range(4):
                a("v_xor_b32 v%d, s31, v%d" % (r + k, r + k))
            if i == 0:
                a("v_or3_b32 %s, v%d, v%d, v%d" % (acc, r, r + 1, r + 2))
                a("v_or_b32 %s, %s, v%d" % (acc, acc, r + 3))
            else:
                a("v_or3_b32 %s, v%d, v%d, %s" % (acc, r, r + 1, acc))
                a("v_or3_b32 %s, v%d, v%d, %s" % (acc, r + 2, r + 3, acc))
        a("v_and_b32 %s, 0xff, %s" % (acc, acc))
        a("v_cmp_ne_u32 vcc, 0, %s" % acc)
        a("s_cbranch_vccz %s" % ok)
        a("s_add_u32 s35, s35, 1")
        a("s_cmp_lt_u32 s35, %d" % TO_V)
        a("s_cbranch_scc1 %s" % tr)
        a("s_endpgm")
        a.label(ok)

    def tred(self, r, dst):
        a = self.a
        a("v_permlane32_swap_b32 v%d, v%d" % (r, r + 2))
        a("v_permlane32_swap_b32 v%d, v%d" % (r + 1, r + 3))
        a("v_add_f32 v%d, v%d, v%d" % (r, r, r + 2))
        a("v_add_f32 v%d, v%d, v%d" % (r + 1, r + 1, r + 3))
        a("v_permlane16_swap_b32 v%d, v%d" % (r, r + 1))
        a("v_add_f32 %s, v%d, v%d" % (dst, r, r + 1))

    def allred_hi(self, x, t, op):
        a = self.a
        a("v_mov_b32 %s, %s" % (t, x))
        a("v_permlane16_swap_b32 %s, %s" % (x, t))
        a("%s %s, %s, %s" % (op, x, x, t))
        a("v_mov_b32 %s, %s" % (t, x))
        a("v_permlane32_swap_b32 %s, %s" % (x, t))
        a("%s %s, %s, %s" % (op, x, x, t))

    def dpp(self, op, x, ctl):
        self.a("%s_dpp %s, %s, %s %s row_mask:0xf bank_mask:0xf" % (op, x, x, x, ctl))

    def rbf(self, x, t="v8"):
        self.a("v_cvt_pk_bf16_f32 %s, %s, %s" % (t, x, x))
        self.a("v_lshlrev_b32 %s, 16, %s" % (x, t))

    def tag4(self, r):
        for k in range(4):
            self.a("v_and_or_b32 v%d, v%d, s34, v17" % (r + k, r + k))

    def store_ws(self, r, va, so, local):
        a = self.a
        if not local:
            a("buffer_store_dwordx4 v[%d:%d], %s, s[36:39], %s offen sc1" % (r, r + 3, va, so))
            return
        l1 = a.newlab("Lst"); l2 = a.newlab("Lst")
        a("s_cmp_eq_u32 s41, 1")
        a("s_cbranch_scc0 %s" % l1)
        a("buffer_store_dwordx4 v[%d:%d], %s, s[36:39], %s offen" % (r, r + 3, va, so))
        a("s_branch %s" % l2)
        a.label(l1)
        a("buffer_store_dwordx4 v[%d:%d], %s, s[36:39], %s offen sc1" % (r, r + 3, va, so))
        a.label(l2)

    def tr64(self, dst, va, base):
        for t in range(4):
            for h in range(2):
                r = dst + 4 * t + 2 * h
                self.a("ds_read_b64_tr_b16 v[%d:%d], %s offset:%d" % (r, r + 1, va, base + 4096 * t + 2048 * h))

    def tr128(self, dst, base, nt):
        for t in range(nt):
            for ct in range(2):
                for h in range(2):
                    r = dst + 8 * t + 4 * ct + 2 * h
                    self.a("ds_read_b64_tr_b16 v[%d:%d], v%d offset:%d" % (r, r + 1, 13 + ct, base + 8192 * t + 4096 * h))

    def mfma(self, d, A, B, first):
        c = "0" if first else "v[%d:%d]" % (d, d + 3)
        self.a("v_mfma_f32_16x16x32_bf16 v[%d:%d], v[%d:%d], v[%d:%d], %s" % (d, d + 3, A, A + 3, B, B + 3, c))

    def finish(self):
        if self.debug:
            self.a("s_branch L_dump")
        else:
            self.a("s_endpgm")

    def build(self):
        a = self.a
        a.raw("; @launch grid=(256,1,1) block=(384,1,1) lds=%d" % LDS_BYTES)
        a.raw('.amdgcn_target "amdgcn-amd-amdhsa--gfx950"')
        a.raw(".text\n.globl %s\n.p2align 8\n.type %s,@function" % (KNAME, KNAME))
        a.label(KNAME)
        self.prologue()
        self.loader()
        self.aux()
        self.compute()
        self.wo_stage()
        self.ffn_stage()
        if self.warm:
            a.label("L_pad%d" % self.npad)
            a("s_branch L_warmed")
        if self.debug:
            self.dump()
        a.label("L_end")
        a("s_endpgm")
        a.label("L_codeend")
        a.raw('.section .rodata,"a"\n.p2align 6\n.amdhsa_kernel %s' % KNAME)
        a.raw("  .amdhsa_next_free_vgpr 160\n  .amdhsa_next_free_sgpr 102\n  .amdhsa_accum_offset 160")
        a.raw("  .amdhsa_group_segment_fixed_size 0\n  .amdhsa_kernarg_size 104\n  .amdhsa_user_sgpr_count 2")
        a.raw("  .amdhsa_user_sgpr_kernarg_segment_ptr 1\n  .amdhsa_system_sgpr_workgroup_id_x 1\n  .amdhsa_float_denorm_mode_32 3\n.end_amdhsa_kernel")
        return a.text()

    def prologue(self):
        a = self.a
        if self.debug:
            for i in range(1, 16):
                a("s_mov_b32 s%d, 0" % (64 + 2 * i))
        self.stamp(0)
        a("s_load_dwordx16 s[4:19], s[0:1], 0")
        a("s_load_dwordx8 s[20:27], s[0:1], 64")
        a("s_load_dwordx2 s[28:29], s[0:1], 96")
        a("s_cmp_ge_u32 s2, 256")
        a("s_cbranch_scc1 L_end")
        a("v_lshrrev_b32 v1, 6, v0")
        a("v_and_b32 v0, 63, v0")
        a("v_readfirstlane_b32 s3, v1")
        a("s_and_b32 s32, s2, 7")
        a("s_lshr_b32 s33, s2, 3")
        a("s_lshl_b32 s42, s32, 4")
        a("s_add_u32 s42, s42, s33")
        a("s_lshl_b32 s43, s32, 3")
        a("s_add_u32 s43, s43, s33")
        a("s_add_u32 s43, s43, 112")
        a("s_cmp_lt_u32 s33, 24")
        a("s_cselect_b32 s52, s43, -1")
        a("s_cmp_lt_u32 s33, 16")
        a("s_cselect_b32 s52, s42, s52")
        a("s_and_b32 s54, s33, 3")
        a("s_lshr_b32 s44, s33, 2")
        a("s_lshl_b32 s42, s32, 2")
        a("s_add_u32 s53, s42, s44")
        a("s_mov_b32 s55, 0")
        a("s_cmp_lt_u32 s33, 16")
        a("s_cbranch_scc1 L_roled")
        a("s_mov_b32 s55, 1")
        a("s_sub_u32 s53, s53, 4")
        a("s_cmp_lt_u32 s32, 4")
        a("s_cbranch_scc1 L_roled")
        a("s_mul_i32 s42, s32, 3")
        a("s_add_u32 s53, s42, s44")
        a("s_cmp_lt_u32 s33, 28")
        a("s_cselect_b32 s55, 1, 2")
        a.label("L_roled")
        a("v_mov_b32 v15, %d" % L_S)
        a("s_cmp_eq_u32 s3, 4")
        a("s_cbranch_scc1 L_loader")
        a("s_barrier")
        a("s_mov_b32 s34, 0xffffff00")
        a("v_mov_b32 v16, 1")
        a("v_lshrrev_b32 v1, 5, v0")
        a("v_and_b32 v2, 31, v0")
        a("v_lshlrev_b32 v1, 10, v1")
        a("v_lshl_add_u32 v1, v2, 3, v1")
        a("s_and_b32 s42, s52, 3")
        a("s_lshl_b32 s42, s42, 8")
        a("v_add_u32 v1, s42, v1")
        a("s_waitcnt lgkmcnt(0)")
        a("s_load_dword s30, s[28:29], 0")
        a("s_mov_b32 s36, s28\ns_mov_b32 s37, s29\ns_mov_b32 s38, %d\ns_mov_b32 s39, 0x20000" % WS_SIZE)
        a("s_cmp_eq_u32 s3, 5")
        a("s_cbranch_scc1 L_aux")
        a("global_load_dwordx2 v[24:25], v1, s[20:21]")
        a("s_branch L_compute")

    def seg(self, srd, vregs, step, n, W=None):
        a = self.a
        W = W or self.W
        slot = (W - 1) % 8
        lab = a.newlab("Lseg")
        a("s_mov_b32 s45, %d" % (n // 8))
        a.label(lab)
        for k in range(8):
            a("s_waitcnt vmcnt(%d)" % (W - 1))
            if k == slot:
                self.publish()
            a("buffer_load_dwordx4 v%d, s[%d:%d], s44 offen nt lds" % (vregs[k % len(vregs)], srd, srd + 3))
            a("s_add_u32 m0, m0, 1024")
            a("s_add_u32 s44, s44, %d" % step)
        a("s_sub_u32 s45, s45, 1")
        a("s_cmp_lg_u32 s45, 0")
        a("s_cbranch_scc1 %s" % lab)

    def publish(self):
        a = self.a
        a("s_mov_b64 exec, 1")
        a("v_add_u32 v14, 8, v14")
        a("ds_write_b32 v15, v14 offset:%d" % C_PROG)
        a("s_mov_b64 exec, -1")

    def drain(self):
        W = self.W
        left = ((W - 1) // 8) * 8
        k = left
        while k >= 0:
            self.a("s_waitcnt vmcnt(%d)" % k)
            self.publish()
            k -= 8

    def srd(self, r, p, n):
        self.a("s_mov_b32 s%d, s%d\ns_mov_b32 s%d, s%d\ns_mov_b32 s%d, %d\ns_mov_b32 s%d, 0x20000" % (r, p, r + 1, p + 1, r + 2, n, r + 3))

    def loader(self):
        a = self.a
        W = self.W
        a.label("L_loader")
        a("s_setprio 3")
        a("v_lshl_add_u32 v1, v0, 2, v15")
        a("v_mov_b32 v2, 0")
        a("s_mov_b64 exec, 0xffff")
        a("ds_write_b32 v1, v2")
        a("s_mov_b64 exec, -1")
        a("v_lshrrev_b32 v4, 3, v0")
        a("v_and_b32 v5, 7, v0")
        a("v_and_b32 v6, 6, v4")
        a("v_xor_b32 v5, v5, v6")
        a("v_lshlrev_b32 v5, 4, v5")
        a("v_mul_u32_u24 v16, 6144, v4")
        a("v_add_u32 v16, v16, v5")
        a("v_lshl_add_u32 v17, v4, 13, v5")
        p0 = -(((W - 1) // 8) * 8) - 8
        a("s_and_b32 s42, s52, 3")
        a("s_mul_i32 s42, s42, %d" % (128 * 6144))
        a("s_lshr_b32 s43, s52, 2")
        a("s_lshl_b32 s43, s43, 7")
        a("s_add_u32 s44, s42, s43")
        a("v_mov_b32 v14, %d" % (p0 + 16))
        a("s_waitcnt lgkmcnt(0)")
        a("s_barrier")
        a("s_cmp_lt_i32 s52, 0")
        a("s_cbranch_scc1 L_nomod")
        self.srd(56, 22, 512 * 3072 * 2)
        a("s_mov_b32 m0, %d" % L_MOD)
        a("v_mov_b32 v14, %d" % p0)
        self.seg(56, [16], 8 * 6144, 16)
        a.label("L_nomod")
        self.srd(60, 10, 512 * 4096 * 2)
        a("s_lshr_b32 s42, s33, 3")
        a("s_lshl_b32 s42, s42, 20")
        a("s_and_b32 s43, s33, 7")
        a("s_lshl_b32 s43, s43, 7")
        a("s_add_u32 s42, s42, s43")
        a("s_lshl_b32 s43, s32, 10")
        a("s_add_u32 s44, s42, s43")
        a("s_mov_b32 m0, %d" % L_WQ)
        self.seg(60, [17], 65536, 16)
        self.stamp(1)
        a("v_lshrrev_b32 v1, 4, v0")
        a("v_and_b32 v2, 15, v0")
        a("v_xor_b32 v3, v2, v1")
        a("v_lshlrev_b32 v3, 4, v3")
        a("v_lshl_add_u32 v18, v1, 8, v3")
        for k in (1, 2, 3):
            a("v_xor_b32 v%d, %d, v18" % (18 + k, k << 6))
        a("v_lshlrev_b32 v3, 1, v1")
        a("v_xor_b32 v3, v2, v3")
        a("v_lshlrev_b32 v3, 4, v3")
        a("v_lshl_add_u32 v22, v1, 8, v3")
        a("v_xor_b32 v23, 0x80, v22")
        a("v_lshl_add_u32 v24, v1, 10, v3")
        a("v_xor_b32 v25, 0x80, v24")
        a("v_mul_u32_u24 v26, 3584, v4")
        a("v_add_u32 v26, v26, v5")
        self.srd(56, 6, 1 << 27)
        self.srd(60, 8, 1 << 27)
        a("s_lshr_b32 s42, s33, 4")
        a("s_lshl_b32 s42, s42, 3")
        a("s_add_u32 s42, s42, s32")
        a("s_lshl_b32 s42, s42, 23")
        a("s_and_b32 s43, s33, 15")
        a("s_lshl_b32 s43, s43, 16")
        a("s_add_u32 s42, s42, s43")
        a("s_add_u32 s46, s42, %d" % (7 << 20))
        a("s_mov_b32 s44, s46")
        self.seg(56, [18, 19, 20, 21], 1024, 64)
        self.stamp(2)
        a("s_mov_b32 s44, s46")
        self.seg(60, [22, 23], 1024, 48)
        a("s_cmp_lt_i32 s52, 0")
        a("s_cbranch_scc1 L_vtail")
        self.lwait(C_MOD, "4")
        a.label("L_vtail")
        self.seg(60, [22, 23], 1024, 16)
        self.stamp(3)
        a("s_cmp_eq_u32 s55, 0")
        a("s_cbranch_scc0 L_ld_notwo")
        self.srd(56, 12, 4096 * 512 * 2)
        a("s_lshl_b32 s42, s53, 17")
        a("s_lshl_b32 s43, s54, 8")
        a("s_add_u32 s44, s42, s43")
        a("s_mov_b32 m0, %d" % L_K)
        self.lwait(C_K, "4")
        self.seg(56, [24, 25], 4096, 32)
        self.drain()
        self.stamp(4)
        self.finish()
        a.label("L_ld_notwo")
        self.drain()
        self.stamp(4)
        a("s_cmp_eq_u32 s55, 1")
        a("s_cbranch_scc0 L_ld_end")
        self.srd(56, 16, 512 * 1792 * 2)
        self.srd(60, 18, 512 * 1792 * 2)
        a("s_mul_i32 s42, s54, %d" % (128 * 3584))
        a("s_lshl_b32 s43, s53, 7")
        a("s_add_u32 s44, s42, s43")
        a("s_mov_b32 m0, %d" % L_K)
        self.lwait(C_K, "4")
        lab = a.newlab("Lseg")
        a("s_mov_b32 s45, 16")
        a.label(lab)
        a("buffer_load_dwordx4 v26, s[56:59], s44 offen nt lds")
        a("s_add_u32 m0, m0, 1024")
        a("s_add_u32 s44, s44, %d" % (8 * 3584))
        a("s_sub_u32 s45, s45, 1")
        a("s_cmp_lg_u32 s45, 0")
        a("s_cbranch_scc1 %s" % lab)
        a("s_lshl_b32 s42, s53, 16")
        a("s_lshl_b32 s43, s54, 8")
        a("s_add_u32 s44, s42, s43")
        lab = a.newlab("Lseg")
        a("s_mov_b32 s45, 8")
        a.label(lab)
        for v in (24, 25):
            a("buffer_load_dwordx4 v%d, s[60:63], s44 offen nt lds" % v)
            a("s_add_u32 m0, m0, 1024")
            a("s_add_u32 s44, s44, 4096")
        a("s_sub_u32 s45, s45, 1")
        a("s_cmp_lg_u32 s45, 0")
        a("s_cbranch_scc1 %s" % lab)
        a("s_waitcnt vmcnt(0)")
        a("v_mov_b32 v14, 184")
        self.publish()
        self.stamp(5)
        a.label("L_ld_end")
        self.finish()

    def aux(self):
        a = self.a
        a.label("L_aux")
        a("s_cmp_lt_u32 s33, 4")
        a("s_cbranch_scc0 L_nopf")
        a("s_getpc_b64 s[42:43]")
        a.label("L_pc")
        a("s_sub_u32 s42, s42, L_pc-%s" % KNAME)
        a("s_subb_u32 s43, s43, 0")
        a("v_lshlrev_b32 v1, 4, v0")
        a("s_lshl_b32 s44, s33, 10")
        a("v_add_u32 v1, s44, v1")
        a.label("L_pf")
        a("v_cmp_gt_u32 vcc, L_codeend-%s-16, v1" % KNAME)
        a("s_and_saveexec_b64 s[46:47], vcc")
        a("s_cbranch_execz L_pfdone")
        a("global_load_dwordx4 v[40:43], v1, s[42:43]")
        a("v_add_u32 v1, 4096, v1")
        a("s_branch L_pf")
        a.label("L_pfdone")
        a("s_mov_b64 exec, -1")
        a.label("L_nopf")
        a("s_getreg_b32 s42, hwreg(HW_REG_XCC_ID, 0, 4)")
        if self.forcediff:
            a("s_and_b32 s42, s33, 1")
        a("s_lshl_b32 s42, s42, 8")
        a("s_waitcnt lgkmcnt(0)")
        a("s_add_u32 s31, s30, 1")
        a("s_and_b32 s31, s31, 0xff")
        a("s_or_b32 s44, s42, s31")
        a("v_mov_b32 v4, s44\nv_mov_b32 v5, s44\nv_mov_b32 v6, s44\nv_mov_b32 v7, s44")
        a("s_lshl_b32 s43, s32, 5")
        a("s_add_u32 s43, s43, s33")
        a("s_lshl_b32 s43, s43, 4")
        a("s_add_u32 s43, s43, %d" % W_XC)
        a("v_mov_b32 v1, 0")
        a("s_mov_b64 exec, 1")
        a("buffer_store_dwordx4 v[4:7], v1, s[36:39], s43 offen sc1")
        a("s_mov_b64 exec, -1")
        a("v_and_b32 v1, 31, v0")
        a("v_lshlrev_b32 v1, 4, v1")
        a("s_lshl_b32 s43, s32, 9")
        a("s_add_u32 s43, s43, %d" % W_XC)
        self.gather([(20, "v1", "s43", 0)])
        a("v_cmp_ne_u32 vcc, s42, v20")
        a("s_cmp_eq_u64 vcc, 0")
        a("s_cselect_b32 s44, 1, 2")
        a("v_mov_b32 v4, s44")
        a("s_mov_b64 exec, 1")
        a("ds_write_b32 v15, v4 offset:%d" % C_SAME)
        self.stamp(1)
        if self.warm:
            a("s_mov_b64 exec, 0")
            a("s_branch L_pad0")
            a.label("L_warmed")
        a("s_mov_b64 exec, -1")
        self.stamp(2)
        a("s_cmp_eq_u32 s55, 0")
        a("s_cbranch_scc0 L_aux_end")
        a("v_and_b32 v1, 31, v0")
        a("v_lshlrev_b32 v1, 4, v1")
        a("s_lshl_b32 s43, s53, 9")
        a("s_add_u32 s43, s43, %d" % W_ST)
        self.gather([(20, "v1", "s43", 0)])
        a("v_mov_b32 v2, v20")
        for c in ("row_ror:8", "row_ror:4", "row_ror:2", "row_ror:1"):
            self.dpp("v_max_f32", "v2", c)
        a("v_sub_f32 v3, v20, v2")
        a("v_mul_f32 v3, %s, v3" % f2u(L2E))
        a("v_exp_f32 v3, v3")
        a("v_mul_f32 v4, v3, v21")
        for c in ("row_ror:8", "row_ror:4", "row_ror:2", "row_ror:1"):
            self.dpp("v_add_f32", "v4", c)
        a("v_rcp_f32 v4, v4")
        a("v_mul_f32 v3, v3, v4")
        a("v_lshrrev_b32 v1, 2, v1")
        a("v_add_u32 v1, v1, v15")
        a("ds_write_b32 v1, v3 offset:%d" % S_ALPHA)
        a("s_mov_b64 exec, 1")
        a("ds_write_b32 v15, v16 offset:%d" % C_ALPHA)
        self.stamp(3)
        a.label("L_aux_end")
        self.finish()

    def modgather(self, parts, dsts, rbs):
        a = self.a
        a("s_lshl_b32 s42, %s, 1" % rbs)
        a("s_lshr_b32 s43, s3, 1")
        a("s_add_u32 s42, s42, s43")
        a("s_lshl_b32 s42, s42, 11")
        a("s_and_b32 s43, s3, 1")
        a("s_lshl_b32 s43, s43, 8")
        a("s_add_u32 s42, s42, s43")
        loads = []
        for i, p in enumerate(parts):
            a("s_add_u32 s%d, s42, %d" % (44 + i, W_MOD + p * 16384))
            loads.append((96 + 4 * i, "v7", "s%d" % (44 + i), 0))
        self.gather(loads)
        for i, d in enumerate(dsts):
            self.tred(96 + 4 * i, d)
        for d in dsts:
            self.rbf(d)

    def compute(self):
        a = self.a
        a.label("L_compute")
        a("v_lshrrev_b32 v1, 4, v0")
        a("v_bfe_u32 v2, v0, 3, 1")
        a("v_and_b32 v3, 7, v0")
        a("v_lshl_add_u32 v4, v1, 3, v3")
        a("v_lshlrev_b32 v4, 5, v4")
        a("v_lshl_add_u32 v4, v2, 10, v4")
        a("global_load_dwordx4 v[64:67], v4, s[4:5]")
        a("global_load_dwordx4 v[68:71], v4, s[4:5] offset:16")
        a("v_lshl_add_u32 v5, v3, 2, v1")
        a("s_lshl_b32 s42, s3, 5")
        a("v_add_u32 v5, s42, v5")
        a("v_lshl_add_u32 v5, v2, 9, v5")
        a("v_lshlrev_b32 v148, 1, v5")
        a("s_lshr_b32 s42, s33, 3")
        a("s_lshl_b32 s42, s42, 8")
        a("v_add_u32 v5, s42, v148")
        a("global_load_ushort v18, v5, s[4:5]")
        a("s_lshl_b32 s42, s54, 8")
        a("v_add_u32 v148, s42, v148")
        a("global_load_ushort v19, v148, s[4:5]")
        a("v_and_b32 v4, 1, v0")
        a("v_mul_u32_u24 v4, 320, v4")
        a("v_lshl_add_u32 v4, v1, 4, v4")
        a("v_add_u32 v10, v4, v15")
        a("v_and_b32 v4, 3, v0")
        a("v_lshlrev_b32 v4, 4, v4")
        a("v_bfe_u32 v5, v0, 2, 1")
        a("v_lshl_add_u32 v4, v5, 3, v4")
        a("v_lshl_add_u32 v4, v1, 1, v4")
        a("s_lshl_b32 s42, s3, 6")
        a("s_add_u32 s42, s42, %d" % L_S)
        a("v_add_u32 v4, s42, v4")
        a("v_mul_u32_u24 v6, 320, v2")
        a("v_add_u32 v11, v6, v4")
        a("v_mul_u32_u24 v6, 272, v2")
        a("v_add_u32 v149, v6, v4")
        a("v_bfe_u32 v4, v0, 2, 2")
        a("v_lshl_add_u32 v5, v1, 2, v4")
        a("v_bfe_u32 v6, v0, 1, 1")
        a("v_and_b32 v8, 1, v0")
        a("v_lshlrev_b32 v8, 3, v8")
        a("s_lshl_b32 s42, s3, 1")
        a("v_add_u32 v9, s42, v6")
        a("v_and_b32 v12, 6, v5")
        a("v_xor_b32 v9, v9, v12")
        a("v_lshl_add_u32 v9, v9, 4, v8")
        a("v_lshl_add_u32 v12, v5, 7, v9")
        a("s_lshl_b32 s42, s3, 2")
        a("v_add_u32 v9, s42, v6")
        a("v_and_b32 v13, 7, v5")
        a("v_lshlrev_b32 v13, 1, v13")
        a("v_xor_b32 v9, v9, v13")
        a("v_lshl_add_u32 v9, v9, 4, v8")
        a("v_lshl_add_u32 v13, v5, 8, v9")
        a("v_xor_b32 v14, 32, v13")
        a("v_and_b32 v4, 3, v0")
        a("v_lshlrev_b32 v4, 4, v4")
        a("v_lshl_add_u32 v4, v2, 6, v4")
        a("v_bfe_u32 v5, v0, 2, 1")
        a("v_lshl_add_u32 v4, v5, 7, v4")
        a("v_lshl_add_u32 v7, v1, 9, v4")
        a("v_and_b32 v4, 1, v0")
        a("v_lshlrev_b32 v150, 4, v1")
        a("s_mov_b32 s40, 0")
        a("s_cmp_lt_i32 s52, 0")
        a("s_cbranch_scc1 L_c_nomod")
        a("v_lshl_add_u32 v151, v4, 6, v150")
        a("v_lshrrev_b32 v4, 5, v0")
        a("v_mul_u32_u24 v4, 320, v4")
        a("v_bfe_u32 v5, v0, 3, 2")
        a("v_lshl_add_u32 v4, v5, 6, v4")
        a("v_and_b32 v5, 3, v0")
        a("v_lshl_add_u32 v4, v5, 4, v4")
        a("v_bfe_u32 v5, v0, 2, 1")
        a("v_lshl_add_u32 v4, v5, 3, v4")
        a("s_mul_i32 s42, s3, 640")
        a("s_add_u32 s43, s42, %d" % (L_S + S_C))
        a("v_add_u32 v4, s43, v4")
        a("v_add_u32 v5, s42, v10")
        a("s_waitcnt vmcnt(4)")
        a("v_lshlrev_b32 v26, 16, v24")
        a("v_and_b32 v27, 0xffff0000, v24")
        a("v_lshlrev_b32 v28, 16, v25")
        a("v_and_b32 v29, 0xffff0000, v25")
        for k in range(4):
            a("v_mul_f32 v%d, %s, v%d" % (32 + k, f2u(-L2E), 26 + k))
        for k in range(4):
            a("v_exp_f32 v%d, v%d" % (32 + k, 32 + k))
        for k in range(4):
            a("v_add_f32 v%d, 1.0, v%d" % (32 + k, 32 + k))
        for k in range(4):
            a("v_rcp_f32 v%d, v%d" % (32 + k, 32 + k))
        for k in range(4):
            a("v_mul_f32 v%d, v%d, v%d" % (26 + k, 26 + k, 32 + k))
        a("v_cvt_pk_bf16_f32 v24, v26, v27")
        a("v_cvt_pk_bf16_f32 v25, v28, v29")
        a("ds_write_b64 v4, v[24:25]")
        for t in range(4):
            a("ds_read_b128 v[%d:%d], v5 offset:%d" % (48 + 4 * t, 51 + 4 * t, S_C + 64 * t))
        a("v_add_u32 v6, %d, v12" % L_MOD)
        self.lwait(C_PROG, "16", cache="s40")
        self.stamp(1)
        self.tr64(32, "v6", 0)
        a("s_add_u32 s31, s30, 1")
        a("s_and_b32 s31, s31, 0xff")
        a("v_mov_b32 v17, s31")
        a("s_lshl_b32 s42, s52, 9")
        a("s_lshl_b32 s43, s3, 7")
        a("s_add_u32 s42, s42, s43")
        a("s_add_u32 s42, s42, %d" % W_MOD)
        a("s_waitcnt lgkmcnt(0)")
        for t in range(4):
            self.mfma(128, 32 + 4 * t, 48 + 4 * t, t == 0)
        self.lsignal(C_MOD)
        self.tag4(128)
        self.execm(0x0003)
        self.store_ws(128, "v151", "s42", False)
        self.execall()
        self.stamp(2)
        a.label("L_c_nomod")
        a("s_waitcnt lgkmcnt(0)")
        a("s_add_u32 s31, s30, 1")
        a("s_and_b32 s31, s31, 0xff")
        a("v_mov_b32 v17, s31")
        a("s_cmp_lt_i32 s52, 0")
        a("s_cbranch_scc1 L_c_w0")
        a("s_waitcnt vmcnt(1)")
        a("s_branch L_c_w1")
        a.label("L_c_w0")
        a("s_waitcnt vmcnt(0)")
        a.label("L_c_w1")
        for k in range(8):
            a("v_lshlrev_b32 v%d, 16, v%d" % (72 + 2 * k, 64 + k))
            a("v_and_b32 v%d, 0xffff0000, v%d" % (73 + 2 * k, 64 + k))
        a("v_add_f32 v4, v72, v73")
        for k in range(2, 16):
            a("v_add_f32 v4, v4, v%d" % (72 + k))
        for c in ("quad_perm:[1,0,3,2]", "quad_perm:[2,3,0,1]", "row_half_mirror"):
            self.dpp("v_add_f32", "v4", c)
        self.allred_hi("v4", "v5", "v_add_f32")
        a("v_mul_f32 v4, %s, v4" % f2u(1.0 / 512))
        for k in range(16):
            a("v_sub_f32 v%d, v%d, v4" % (72 + k, 72 + k))
        a("v_mul_f32 v6, v72, v72")
        for k in range(1, 16):
            a("v_fmac_f32 v6, v%d, v%d" % (72 + k, 72 + k))
        for c in ("quad_perm:[1,0,3,2]", "quad_perm:[2,3,0,1]", "row_half_mirror"):
            self.dpp("v_add_f32", "v6", c)
        self.allred_hi("v6", "v5", "v_add_f32")
        a("v_mul_f32 v6, %s, v6" % f2u(1.0 / 512))
        self.rbf("v4"); self.rbf("v6")
        a("v_add_f32 v6, %s, v6" % f2u(1e-5))
        self.rbf("v6")
        a("v_sqrt_f32 v6, v6")
        self.rbf("v6")
        a("v_rcp_f32 v6, v6")
        a("v_lshlrev_b32 v18, 16, v18")
        a("v_lshlrev_b32 v19, 16, v19")
        a("v_sub_f32 v18, v18, v4")
        self.rbf("v18")
        a("v_mul_f32 v18, v18, v6")
        self.rbf("v18")
        self.lwait(C_PROG, "32", cache="s40")
        self.tr64(32, "v12", L_WQ)
        a("s_lshr_b32 s50, s33, 3")
        self.modgather([0, 1], ["v4", "v5"], "s50")
        self.stamp(3)
        a("v_add_f32 v5, 1.0, v5")
        self.rbf("v5")
        a("v_mul_f32 v5, v18, v5")
        self.rbf("v5")
        a("v_add_f32 v5, v5, v4")
        a("v_cvt_pk_bf16_f32 v5, v5, v5")
        a("ds_write_b16 v11, v5 offset:%d" % S_H)
        self.lsignal(C_A)
        a("v_and_b32 v4, 1, v0")
        a("v_lshl_add_u32 v6, v4, 13, v150")
        a("s_lshl_b32 s42, s32, 14")
        a("s_and_b32 s43, s33, 7")
        a("s_lshl_b32 s43, s43, 10")
        a("s_add_u32 s42, s42, s43")
        a("s_lshl_b32 s43, s50, 8")
        a("s_add_u32 s42, s42, s43")
        a("s_lshl_b32 s43, s3, 6")
        a("s_add_u32 s42, s42, s43")
        a("s_add_u32 s51, s42, %d" % W_Q)
        self.lwait(C_A, "4")
        for t in range(4):
            a("ds_read_b128 v[%d:%d], v10 offset:%d" % (48 + 4 * t, 51 + 4 * t, S_H + 64 * t))
        a("s_waitcnt lgkmcnt(0)")
        for t in range(4):
            self.mfma(128, 32 + 4 * t, 48 + 4 * t, t == 0)
        self.tag4(128)
        self.execm(0x0003)
        self.store_ws(128, "v6", "s51", False)
        self.execall()
        self.stamp(4)
        a("s_cmp_eq_u32 s55, 1")
        a("s_cbranch_scc0 L_c_noffn")
        self.modgather([2, 3, 4, 5], ["v20", "v4", "v22", "v21"], "s54")
        a("v_add_f32 v22, 1.0, v22")
        self.rbf("v22")
        a("v_lshrrev_b32 v5, 16, v22")
        a("ds_write_b16 v149, v5 offset:%d" % (S_X + 2 * 272))
        a("v_lshrrev_b32 v5, 16, v4")
        a("ds_write_b16 v149, v5 offset:%d" % (S_X + 8 * 272))
        a("v_mov_b32 v5, 0x3f80")
        a("ds_write_b16 v149, v5 offset:%d" % (S_X + 6 * 272))
        a.label("L_c_noffn")
        a("v_and_b32 v4, 15, v0")
        a("v_xor_b32 v5, v4, v1")
        a("v_lshlrev_b32 v5, 4, v5")
        a("v_lshl_add_u32 v5, v4, 8, v5")
        a("s_lshl_b32 s42, s3, 14")
        a("s_add_u32 s42, s42, %d" % L_K)
        a("v_add_u32 v24, s42, v5")
        for t in (1, 2, 3):
            a("v_xor_b32 v%d, %d, v24" % (24 + t, 64 * t))
        a("s_lshl_b32 s43, s3, 4")
        a("s_add_u32 s43, s43, 48")
        self.lwait(C_PROG, "s43", cache="s40")
        self.stamp(5)
        for tau in range(4):
            for t in range(4):
                r = 64 + 16 * tau + 4 * t
                a("ds_read_b128 v[%d:%d], v%d offset:%d" % (r, r + 3, 24 + t, 4096 * tau))
        a("v_lshlrev_b32 v6, 4, v0")
        a("s_lshl_b32 s42, s32, 1")
        a("s_lshr_b32 s43, s33, 4")
        a("s_add_u32 s42, s42, s43")
        a("s_lshl_b32 s42, s42, 13")
        a("s_lshl_b32 s43, s3, 11")
        a("s_add_u32 s42, s42, s43")
        a("s_add_u32 s44, s42, %d" % W_Q)
        self.smask(56, 0x00f0); self.smask(58, 0x0f00); self.smask(60, 0xf000)
        a("v_and_b32 v4, 15, v0")
        a("v_lshl_add_u32 v4, v4, 2, v1")
        a("v_lshlrev_b32 v4, 1, v4")
        a("s_mul_i32 s42, s3, 320")
        a("s_add_u32 s42, s42, %d" % (L_S + S_Q))
        a("v_add_u32 v28, s42, v4")
        a("v_and_b32 v4, 3, v0")
        a("v_mul_u32_u24 v5, 320, v4")
        a("v_add_u32 v5, v5, v150")
        a("v_add_u32 v29, v5, v15")
        a("v_mul_u32_u24 v5, 576, v4")
        a("v_add_u32 v5, v5, v150")
        a("v_add_u32 v30, v5, v15")
        a("v_bfe_u32 v8, v0, 2, 1")
        a("v_lshl_add_u32 v5, v8, 3, v30")
        a("v_bfe_u32 v8, v0, 3, 1")
        a("v_lshl_add_u32 v5, v8, 6, v5")
        a("s_lshl_b32 s42, s3, 7")
        a("v_add_u32 v31, s42, v5")
        a("v_lshl_add_u32 v144, v4, 4, v15")
        a("s_lshl_b32 s42, s3, 2")
        a("v_add_u32 v145, s42, v144")
        a("s_waitcnt lgkmcnt(0)")
        self.lsignal(C_K)
        self.gather([(32, "v6", "s44", 0), (36, "v6", "s44", 1024)])
        self.stamp(6)
        self.tred(32, "v4")
        self.tred(36, "v5")
        a("v_cvt_pk_bf16_f32 v4, v4, v5")
        a("ds_write_b16 v28, v4")
        a("ds_write_b16_d16_hi v28, v4 offset:128")
        self.lsignal(C_B)
        self.lwait(C_B, "4")
        for t in range(4):
            a("ds_read_b128 v[%d:%d], v29 offset:%d" % (48 + 4 * t, 51 + 4 * t, S_Q + 64 * t))
        for t in range(4):
            a("s_waitcnt lgkmcnt(%d)" % (3 - t))
            for tau in range(4):
                self.mfma(128 + 4 * tau, 64 + 16 * tau + 4 * t, 48 + 4 * t, t == 0)
        for tau in (1, 2, 3):
            for r in range(4):
                a("v_cndmask_b32 v%d, v%d, v%d, s[%d:%d]" % (128 + r, 128 + r, 128 + 4 * tau + r, 54 + 2 * tau, 55 + 2 * tau))
        def unpack(dlo, src):
            a("v_lshlrev_b32 v%d, 16, v%d" % (dlo, src))
            a("v_and_b32 v%d, 0xffff0000, v%d" % (dlo + 1, src))
        a("v_cvt_pk_bf16_f32 v4, v128, v129")
        a("v_cvt_pk_bf16_f32 v5, v130, v131")
        unpack(128, 4); unpack(130, 5)
        for r in range(4):
            a("v_mul_f32 v%d, %s, v%d" % (128 + r, f2u(128 ** -0.5), 128 + r))
        a("v_cvt_pk_bf16_f32 v4, v128, v129")
        a("v_cvt_pk_bf16_f32 v5, v130, v131")
        unpack(128, 4); unpack(130, 5)
        a("v_max3_f32 v4, v128, v129, v130")
        a("v_max_f32 v4, v4, v131")
        self.dpp("v_max_f32", "v4", "row_ror:4")
        self.dpp("v_max_f32", "v4", "row_ror:8")
        self.allred_hi("v4", "v5", "v_max_f32")
        a("s_mov_b64 exec, 15")
        a("ds_write_b32 v145, v4 offset:%d" % S_WM)
        self.lsignal(C_C)
        self.lwait(C_C, "4")
        a("ds_read_b128 v[32:35], v144 offset:%d" % S_WM)
        a("s_mov_b32 s42, %s" % f2u(L2E))
        a("s_waitcnt lgkmcnt(0)")
        a("v_max3_f32 v146, v32, v33, v34")
        a("v_max_f32 v146, v146, v35")
        a("v_mul_f32 v4, %s, v146" % f2u(-L2E))
        for r in range(4):
            a("v_fma_f32 v%d, v%d, s42, v4" % (128 + r, 128 + r))
        for r in range(4):
            a("v_exp_f32 v%d, v%d" % (128 + r, 128 + r))
        a("v_cvt_pk_bf16_f32 v4, v128, v129")
        a("v_cvt_pk_bf16_f32 v5, v130, v131")
        a("ds_write_b64 v31, v[4:5] offset:%d" % S_P)
        unpack(128, 4); unpack(130, 5)
        a("v_add_f32 v128, v128, v129")
        a("v_add_f32 v130, v130, v131")
        a("v_add_f32 v6, v128, v130")
        self.dpp("v_add_f32", "v6", "row_ror:4")
        self.dpp("v_add_f32", "v6", "row_ror:8")
        self.allred_hi("v6", "v8", "v_add_f32")
        a("s_mov_b64 exec, 15")
        a("ds_write_b32 v145, v6 offset:%d" % S_WL)
        self.lsignal(C_D)
        self.lwait(C_SAME, "1", st="s41")
        self.lwait(C_D, "4")
        self.stamp(7)
        a("s_cmp_eq_u32 s3, 0")
        a("s_cbranch_scc0 L_c_nost")
        a("ds_read_b128 v[32:35], v144 offset:%d" % S_WL)
        a("v_and_b32 v4, 3, v0")
        a("v_lshlrev_b32 v4, 9, v4")
        a("s_lshl_b32 s42, s32, 11")
        a("s_lshl_b32 s43, s33, 4")
        a("s_add_u32 s42, s42, s43")
        a("s_add_u32 s42, s42, %d" % W_ST)
        a("s_waitcnt lgkmcnt(0)")
        a("v_add_f32 v32, v32, v33")
        a("v_add_f32 v34, v34, v35")
        a("v_add_f32 v33, v32, v34")
        a("v_mov_b32 v32, v146")
        a("v_mov_b32 v34, v146")
        a("v_mov_b32 v35, v33")
        self.tag4(32)
        a("s_mov_b64 exec, 15")
        self.store_ws(32, "v4", "s42", True)
        self.execall()
        a.label("L_c_nost")
        self.pad()
        a("v_add_u32 v24, %d, v13" % L_V)
        a("v_add_u32 v25, %d, v14" % L_V)
        for r in range(8):
            a("v_mov_b32 v%d, 0" % (128 + r))
        a("v_and_b32 v4, 3, v0")
        a("v_lshl_add_u32 v4, v4, 14, v150")
        a("v_bfe_u32 v5, v0, 2, 1")
        a("v_lshl_add_u32 v26, v5, 6, v4")
        a("s_lshl_b32 s42, s32, 16")
        a("s_lshl_b32 s43, s33, 9")
        a("s_add_u32 s42, s42, s43")
        a("s_lshl_b32 s43, s3, 7")
        a("s_add_u32 s42, s42, s43")
        a("s_add_u32 s44, s42, %d" % W_O)
        a("s_mov_b32 s45, 104")
        a.label("L_pv")
        a("ds_read_b128 v[48:51], v30 offset:%d" % S_P)
        self.lwait(C_PROG, "s45", cache="s40")
        a("ds_read_b64_tr_b16 v[32:33], v24")
        a("ds_read_b64_tr_b16 v[34:35], v24 offset:4096")
        a("ds_read_b64_tr_b16 v[36:37], v25")
        a("ds_read_b64_tr_b16 v[38:39], v25 offset:4096")
        a("v_add_u32 v24, 0x2000, v24")
        a("v_add_u32 v25, 0x2000, v25")
        a("v_add_u32 v30, 64, v30")
        a("s_add_u32 s45, s45, 8")
        a("s_cmp_le_u32 s45, 160")
        a("s_waitcnt lgkmcnt(2)")
        self.mfma(128, 32, 48, False)
        a("s_waitcnt lgkmcnt(0)")
        self.mfma(132, 36, 48, False)
        a("s_cbranch_scc1 L_pv")
        self.stamp(8)
        for r in range(4):
            a("v_cndmask_b32 v%d, v%d, v%d, s[56:57]" % (128 + r, 128 + r, 132 + r))
        self.tag4(128)
        self.execm(0x00ff)
        self.store_ws(128, "v26", "s44", True)
        self.execall()
        self.stamp(9)
        a("s_cmp_eq_u32 s55, 1")
        a("s_cbranch_scc1 L_ffn")
        a("s_cmp_eq_u32 s55, 0")
        a("s_cbranch_scc1 L_wo")
        self.finish()

    def out2(self, d0, d1):
        for r in range(4):
            self.a("v_cndmask_b32 v%d, v%d, v%d, s[62:63]" % (d0 + r, d0 + r, d1 + r))
        self.tag4(d0)

    def wo_stage(self):
        a = self.a
        a.label("L_wo")
        self.pad()
        a("v_lshlrev_b32 v4, 4, v3")
        a("v_lshl_add_u32 v4, v1, 11, v4")
        a("v_lshl_add_u32 v6, v2, 13, v4")
        a("s_lshl_b32 s42, s53, 14")
        a("s_lshl_b32 s43, s3, 7")
        a("s_add_u32 s42, s42, s43")
        a("s_add_u32 s44, s42, %d" % W_O)
        a("v_and_b32 v4, 1, v0")
        a("v_lshl_add_u32 v4, v4, 7, v150")
        a("v_bfe_u32 v5, v0, 1, 1")
        a("v_lshl_add_u32 v26, v5, 6, v4")
        a("s_lshl_b32 s42, s54, 5")
        a("s_add_u32 s42, s42, s53")
        a("s_lshl_b32 s42, s42, 2")
        a("s_add_u32 s42, s42, s3")
        a("s_lshl_b32 s42, s42, 8")
        a("s_add_u32 s45, s42, %d" % W_W)
        self.smask(62, 0x000c)
        a("v_lshl_add_u32 v4, v2, 6, v150")
        a("v_add_u32 v4, v4, v15")
        self.lwait(C_ALPHA, "1")
        a("ds_read_b128 v[20:23], v4 offset:%d" % S_ALPHA)
        self.lwait(C_PROG, "192", cache="s40")
        self.pad()
        self.tr128(64, L_K, 4)
        self.stamp(10)
        self.gather([(32 + 4 * i, "v6", "s44", 512 * i) for i in range(4)])
        self.pad()
        self.stamp(11)
        a("s_waitcnt lgkmcnt(0)")
        for r in range(4):
            a("v_mul_f32 v%d, v%d, v20" % (32 + r, 32 + r))
        for i in (1, 2, 3):
            for r in range(4):
                a("v_fmac_f32 v%d, v%d, v%d" % (32 + r, 32 + 4 * i + r, 20 + i))
        self.tred(32, "v4")
        a("v_cvt_pk_bf16_f32 v4, v4, v4")
        a("ds_write_b16 v11, v4 offset:%d" % S_O)
        a("s_waitcnt lgkmcnt(0)")
        a("s_barrier")
        for t in range(4):
            a("ds_read_b128 v[%d:%d], v10 offset:%d" % (48 + 4 * t, 51 + 4 * t, S_O + 64 * t))
        self.pad()
        for t in range(4):
            a("s_waitcnt lgkmcnt(%d)" % (3 - t))
            self.mfma(128, 64 + 8 * t, 48 + 4 * t, t == 0)
            self.mfma(132, 68 + 8 * t, 48 + 4 * t, t == 0)
        self.out2(128, 132)
        self.execm(0x000f)
        self.store_ws(128, "v26", "s45", False)
        self.execall()
        self.stamp(12)
        self.finish()

    def ffn_stage(self):
        a = self.a
        a.label("L_ffn")
        self.pad()
        a("v_lshlrev_b32 v4, 4, v3")
        a("v_lshl_add_u32 v4, v2, 7, v4")
        a("v_lshl_add_u32 v6, v1, 10, v4")
        a("s_lshl_b32 s42, s54, 15")
        a("s_lshl_b32 s43, s3, 8")
        a("s_add_u32 s42, s42, s43")
        for i in range(8):
            a("s_add_u32 s%d, s42, %d" % (44 + i, W_W + 4096 * i))
        a("v_and_b32 v4, 15, v0")
        a("v_mul_u32_u24 v5, 272, v4")
        a("v_add_u32 v5, v5, v150")
        a("v_add_u32 v24, v5, v15")
        a("v_bfe_u32 v5, v0, 3, 1")
        a("v_lshlrev_b32 v5, 1, v5")
        a("v_sub_u32 v4, v4, v5")
        a("v_lshl_add_u32 v25, v4, 6, v150")
        a("s_lshl_b32 s42, s53, 2")
        a("s_add_u32 s42, s42, s3")
        a("s_lshl_b32 s42, s42, 11")
        a("s_add_u32 s57, s42, %d" % W_U)
        a("s_lshl_b32 s43, s54, 9")
        a("s_add_u32 s56, s57, s43")
        self.pad()
        a("v_and_b32 v4, 15, v0")
        a("v_lshlrev_b32 v4, 4, v4")
        a("v_lshl_add_u32 v27, v1, 9, v4")
        a("v_bfe_u32 v4, v0, 2, 1")
        a("v_mul_u32_u24 v4, 320, v4")
        a("v_and_b32 v5, 3, v0")
        a("v_lshl_add_u32 v4, v5, 4, v4")
        a("v_lshl_add_u32 v4, v1, 1, v4")
        a("s_lshr_b32 s42, s3, 1")
        a("s_lshl_b32 s42, s42, 6")
        a("s_and_b32 s43, s3, 1")
        a("s_lshl_b32 s43, s43, 3")
        a("s_add_u32 s42, s42, s43")
        a("s_add_u32 s42, s42, %d" % (L_S + S_U))
        a("v_add_u32 v28, s42, v4")
        a("v_and_b32 v4, 1, v0")
        a("v_mul_u32_u24 v4, 3584, v4")
        a("v_add_u32 v4, v4, v150")
        a("v_bfe_u32 v5, v0, 1, 1")
        a("v_lshl_add_u32 v26, v5, 6, v4")
        a("s_lshl_b32 s42, s54, 2")
        a("s_add_u32 s42, s42, s3")
        a("s_mul_i32 s42, s42, 7168")
        a("s_add_u32 s59, s42, %d" % W_F)
        a("s_lshl_b32 s43, s53, 7")
        a("s_add_u32 s58, s59, s43")
        self.smask(62, 0x000c)
        self.smask(60, 0x0030)
        self.pad()
        self.lwait(C_PROG, "192", cache="s40")
        self.tr64(32, "v12", L_K)
        self.tr128(64, L_K + 16384, 2)
        self.stamp(10)
        self.pad()
        self.gather([(96 + 4 * i, "v6", "s%d" % (44 + i), 0) for i in range(8)])
        self.pad()
        self.stamp(11)
        for i in (0, 2, 4, 6):
            for r in range(4):
                a("v_add_f32 v%d, v%d, v%d" % (96 + 4 * i + r, 96 + 4 * i + r, 100 + 4 * i + r))
        for r in range(4):
            a("v_add_f32 v%d, v%d, v%d" % (96 + r, 96 + r, 104 + r))
            a("v_add_f32 v%d, v%d, v%d" % (112 + r, 112 + r, 120 + r))
        for r in range(4):
            a("v_add_f32 v%d, v%d, v%d" % (96 + r, 96 + r, 112 + r))
        self.tred(96, "v4")
        a("v_fma_f32 v23, v20, v4, v19")
        a("v_cvt_pk_bf16_f32 v5, v23, v23")
        a("v_lshlrev_b32 v23, 16, v5")
        a("ds_write_b16 v149, v5 offset:%d" % (S_X + 4 * 272))
        a("v_mul_f32 v4, v23, v22")
        a("v_cvt_pk_bf16_f32 v4, v4, v4")
        a("ds_write_b16 v149, v4 offset:%d" % S_X)
        self.pad()
        a("s_waitcnt lgkmcnt(0)")
        a("s_barrier")
        for t in range(4):
            a("ds_read_b128 v[%d:%d], v24 offset:%d" % (48 + 4 * t, 51 + 4 * t, S_X + 64 * t))
        for t in range(4):
            a("s_waitcnt lgkmcnt(%d)" % (3 - t))
            self.mfma(128, 32 + 4 * t, 48 + 4 * t, t == 0)
            self.mfma(132, 48 + 4 * t, 48 + 4 * t, t == 0)
        for r in range(4):
            a("v_cndmask_b32 v%d, v%d, v%d, s[60:61]" % (128 + r, 128 + r, 132 + r))
        self.tag4(128)
        self.execm(0x033f)
        self.store_ws(128, "v25", "s56", True)
        self.execall()
        self.stamp(12)
        self.pad()
        self.gather([(96, "v27", "s57", 0), (100, "v27", "s57", 256)])
        self.stamp(13)
        self.tred(96, "v4")
        self.tred(100, "v5")
        self.pad()
        a("v_readlane_b32 s42, v5, 1")
        a("v_readlane_b32 s43, v5, 21")
        a("v_readlane_b32 s44, v5, 33")
        a("v_readlane_b32 s45, v5, 37")
        a("v_mov_b32_dpp v6, v4 row_ror:8 row_mask:0xf bank_mask:0xf")
        a("v_mov_b32_dpp v7, v5 row_ror:8 row_mask:0xf bank_mask:0xf")
        a("v_mov_b32 v8, s42")
        a("v_mov_b32 v9, s44")
        self.execm(0x00f0)
        a("v_mov_b32 v8, s43")
        a("v_mov_b32 v9, s45")
        self.execm(0x00ff)
        a("v_mul_f32 v9, %s, v9" % f2u(1.0 / 512))
        a("v_mul_f32 v8, %s, v8" % f2u(1.0 / 512))
        a("v_fma_f32 v8, -v9, v9, v8")
        a("v_max_f32 v8, 0, v8")
        a("v_add_f32 v8, %s, v8" % f2u(1e-5))
        a("v_rsq_f32 v8, v8")
        a("v_fma_f32 v4, -v9, v6, v4")
        a("v_fma_f32 v4, v4, v8, v7")
        a("v_mul_f32 v5, %s, v4" % f2u(-L2E))
        a("v_exp_f32 v5, v5")
        a("v_add_f32 v5, 1.0, v5")
        a("v_rcp_f32 v5, v5")
        a("v_mul_f32 v4, v4, v5")
        a("v_cvt_pk_bf16_f32 v4, v4, v4")
        a("ds_write_b16 v28, v4")
        self.execall()
        self.pad()
        a("s_waitcnt lgkmcnt(0)")
        a("s_barrier")
        for t in range(2):
            a("ds_read_b128 v[%d:%d], v10 offset:%d" % (48 + 4 * t, 51 + 4 * t, S_U + 64 * t))
        for t in range(2):
            a("s_waitcnt lgkmcnt(%d)" % (1 - t))
            self.mfma(128, 64 + 8 * t, 48 + 4 * t, t == 0)
            self.mfma(132, 68 + 8 * t, 48 + 4 * t, t == 0)
        self.out2(128, 132)
        self.execm(0x000f)
        self.store_ws(128, "v26", "s58", False)
        self.execall()
        self.stamp(14)
        a("s_lshr_b32 s42, s53, 1")
        a("s_cmp_eq_u32 s42, s3")
        a("s_cbranch_scc0 L_ffn_end")
        self.pad()
        a("s_and_b32 s46, s53, 1")
        a("s_mul_i32 s42, s46, 3584")
        a("s_add_u32 s59, s59, s42")
        a("v_lshlrev_b32 v6, 4, v0")
        a("v_and_b32 v7, 0x1ff, v6")
        self.gather([(96, "v6", "s59", 0), (100, "v6", "s59", 1024), (104, "v6", "s59", 2048), (108, "v7", "s59", 3072)])
        self.pad()
        for r in range(4):
            a("v_add_f32 v%d, v%d, v%d" % (96 + r, 96 + r, 100 + r))
        a("s_mov_b32 exec_hi, 0")
        for r in range(4):
            a("v_add_f32 v%d, v%d, v%d" % (104 + r, 104 + r, 108 + r))
        self.execall()
        for r in range(4):
            a("v_add_f32 v%d, v%d, v%d" % (96 + r, 96 + r, 104 + r))
        self.tred(96, "v4")
        self.dpp("v_add_f32", "v4", "row_ror:8")
        a("v_fma_f32 v4, v21, v4, v23")
        a("v_cvt_pk_bf16_f32 v4, v4, v4")
        a("s_lshl_b32 s42, s46, 3")
        a("s_lshl_b32 s42, 0x00ff00ff, s42")
        a("s_mov_b32 exec_lo, s42\ns_mov_b32 exec_hi, s42")
        a("global_store_short v148, v4, s[24:25]")
        a("s_cmp_eq_u32 s2, 128")
        a("s_cbranch_scc0 L_ffn_end")
        a("s_add_u32 s42, s30, 1")
        a("s_mov_b64 exec, 1")
        a("v_mov_b32 v5, s42")
        a("v_mov_b32 v6, 0")
        a("buffer_store_dword v5, v6, s[36:39], 0 offen sc1")
        a.label("L_ffn_end")
        self.stamp(15)
        self.finish()

    def dump(self):
        a = self.a
        a.label("L_dump")
        a("s_mov_b64 exec, -1")
        a("s_waitcnt lgkmcnt(0)")
        for i in range(16):
            a("v_writelane_b32 v1, s%d, %d" % (64 + 2 * i, i))
        a("s_lshl_b32 s42, s2, 3")
        a("s_add_u32 s42, s42, s3")
        a("s_lshl_b32 s42, s42, 6")
        a("s_add_u32 s42, s42, %d" % W_STAMP)
        a("v_lshlrev_b32 v2, 2, v0")
        a("v_add_u32 v2, s42, v2")
        a("s_mov_b64 exec, 0xffff")
        a("global_store_dword v2, v1, s[28:29]")
        a("s_endpgm")

if __name__ == "__main__":
    import argparse
    ap = argparse.ArgumentParser()
    ap.add_argument("-o", default="cdna_kernels/" + NAME + ".s")
    ap.add_argument("--debug", action="store_true")
    ap.add_argument("--W", type=int, default=24)
    ap.add_argument("--nowarm", action="store_true")
    args = ap.parse_args()
    g = Gen(W=args.W, debug=args.debug, warm=not args.nowarm)
    open(args.o, "w").write(g.build())
    print("written", args.o, "nops inserted", g.a.nops)
```

```python
import sys
from asmlib import Asm

NAME = "adaLN_cond__sliding_block_cached__dense_activation_silu__decode"
KNAME = NAME + "_kernel"

L_WQ = 0
L_K = 16384
L_V = L_K + 65536
L_MOD = L_V + 49152
L_S = L_V + 65536
C_PROG, C_MOD, C_A, C_K, C_B, C_C, C_D, C_SAME, C_ALPHA = 0, 4, 8, 12, 16, 20, 24, 28, 32
S_ALPHA = 128
S_WM = 256
S_WL = 320
S_C = 512
S_H = 3072
S_Q = 3712
S_P = 4992
S_O = 7296
S_U = 7936
S_X = 8576
LDS_BYTES = 163840
W_E = 0
W_XC = 0x1000
W_MOD = 0x2000
W_Q = 0x20000
W_ST = 0x40000
W_W = 0x48000
W_U = 0x68000
W_F = 0xA0000
W_O = 0x100000
W_STAMP = 0x200000
WS_SIZE = 0x400000

L2E = 1.4426950408889634
TO_V = 30000
TO_L = 600000

def f2u(x):
    import struct
    return "0x%08x" % struct.unpack("<I", struct.pack("<f", x))[0]

class Gen:
    def __init__(self, W=24, debug=False, warm=True, forcediff=False, sleepv=0, sleepl=0, kill=None, prio=3, xe='', hdebug=False):
        self.a = Asm()
        self.W = W
        self.debug = debug
        self.warm = warm
        self.forcediff = forcediff
        self.npad = 0
        self.sleepv = sleepv; self.sleepl = sleepl; self.kill = kill or ''; self.prio = prio; self.xe = xe; self.hdebug = hdebug
        if hdebug: self.debug = True

    def stamp(self, i):
        if self.debug:
            self.a("s_memrealtime s[%d:%d]" % (64 + 2 * i, 65 + 2 * i))

    def pad(self):
        if self.warm:
            self.a.label("L_pad%d" % self.npad)
            self.npad += 1
            self.a("s_cbranch_execz L_pad%d" % self.npad)

    def execm(self, m16):
        v = m16 | (m16 << 16)
        self.a("s_mov_b32 exec_lo, 0x%08x\ns_mov_b32 exec_hi, 0x%08x" % (v, v))

    def execall(self):
        self.a("s_mov_b64 exec, -1")

    def smask(self, s, m16):
        v = m16 | (m16 << 16)
        self.a("s_mov_b32 s%d, 0x%08x\ns_mov_b32 s%d, 0x%08x" % (s, v, s + 1, v))

    def lwait(self, cnt, needv, cache=None, vt="v9", vls="v15", st="s42"):
        a = self.a
        ok = a.newlab("Lok"); sp = a.newlab("Lsp")
        s = cache or st
        if cache:
            a("s_cmp_ge_i32 %s, %s" % (cache, needv))
            a("s_cbranch_scc1 %s" % ok)
        a("s_mov_b32 s35, 0")
        a.label(sp)
        a("ds_read_b32 %s, %s offset:%d" % (vt, vls, cnt))
        a("s_waitcnt lgkmcnt(0)")
        a("v_readfirstlane_b32 %s, %s" % (s, vt))
        a("s_add_u32 s35, s35, 1")
        a("s_cmp_ge_i32 %s, %s" % (s, needv))
        a("s_cbranch_scc1 %s" % ok)
        if self.sleepl: a("s_sleep %d" % self.sleepl)
        a("s_cmp_lt_u32 s35, %d" % TO_L)
        a("s_cbranch_scc1 %s" % sp)
        a("s_endpgm")
        a.label(ok)

    def lsignal(self, cnt):
        a = self.a
        a("s_mov_b64 exec, 1")
        a("ds_add_u32 v15, v16 offset:%d" % cnt)
        a("s_mov_b64 exec, -1")

    def gather(self, loads, acc="v9", pre=None, fl="sc1"):
        a = self.a
        tr = a.newlab("Ltry"); ok = a.newlab("Lok")
        a("s_mov_b32 s35, 0")
        a.label(tr)
        n = len(loads)
        for (r, va, so, imm) in loads:
            a("buffer_load_dwordx4 v[%d:%d], %s, s[36:39], %s offen offset:%d %s" % (r, r + 3, va, so, imm, fl))
        for i, (r, va, so, imm) in enumerate(loads):
            a("s_waitcnt vmcnt(%d)" % (n - 1 - i))
            for k in range(4):
                a("v_xor_b32 v%d, s31, v%d" % (r + k, r + k))
            if i == 0:
                a("v_or3_b32 %s, v%d, v%d, v%d" % (acc, r, r + 1, r + 2))
                a("v_or_b32 %s, %s, v%d" % (acc, acc, r + 3))
            else:
                a("v_or3_b32 %s, v%d, v%d, %s" % (acc, r, r + 1, acc))
                a("v_or3_b32 %s, v%d, v%d, %s" % (acc, r + 2, r + 3, acc))
        a("v_and_b32 %s, 0xff, %s" % (acc, acc))
        a("v_cmp_ne_u32 vcc, 0, %s" % acc)
        a("s_cbranch_vccz %s" % ok)
        if self.sleepv: a("s_sleep %d" % self.sleepv)
        a("s_add_u32 s35, s35, 1")
        a("s_cmp_lt_u32 s35, %d" % TO_V)
        a("s_cbranch_scc1 %s" % tr)
        a("s_endpgm")
        a.label(ok)

    def tred(self, r, dst):
        a = self.a
        a("v_permlane32_swap_b32 v%d, v%d" % (r, r + 2))
        a("v_permlane32_swap_b32 v%d, v%d" % (r + 1, r + 3))
        a("v_add_f32 v%d, v%d, v%d" % (r, r, r + 2))
        a("v_add_f32 v%d, v%d, v%d" % (r + 1, r + 1, r + 3))
        a("v_permlane16_swap_b32 v%d, v%d" % (r, r + 1))
        a("v_add_f32 %s, v%d, v%d" % (dst, r, r + 1))

    def allred_hi(self, x, t, op):
        a = self.a
        a("v_mov_b32 %s, %s" % (t, x))
        a("v_permlane16_swap_b32 %s, %s" % (x, t))
        a("%s %s, %s, %s" % (op, x, x, t))
        a("v_mov_b32 %s, %s" % (t, x))
        a("v_permlane32_swap_b32 %s, %s" % (x, t))
        a("%s %s, %s, %s" % (op, x, x, t))

    def dpp(self, op, x, ctl):
        self.a("%s_dpp %s, %s, %s %s row_mask:0xf bank_mask:0xf" % (op, x, x, x, ctl))

    def rbf(self, x, t="v8"):
        self.a("v_cvt_pk_bf16_f32 %s, %s, %s" % (t, x, x))
        self.a("v_lshlrev_b32 %s, 16, %s" % (x, t))

    def tag4(self, r):
        for k in range(4):
            self.a("v_and_or_b32 v%d, v%d, s34, v17" % (r + k, r + k))

    def store_ws(self, r, va, so, local):
        a = self.a
        if not local:
            a("buffer_store_dwordx4 v[%d:%d], %s, s[36:39], %s offen sc1" % (r, r + 3, va, so))
            return
        l1 = a.newlab("Lst"); l2 = a.newlab("Lst")
        a("s_cmp_eq_u32 s41, 1")
        a("s_cbranch_scc0 %s" % l1)
        a("buffer_store_dwordx4 v[%d:%d], %s, s[36:39], %s offen" % (r, r + 3, va, so))
        a("s_branch %s" % l2)
        a.label(l1)
        a("buffer_store_dwordx4 v[%d:%d], %s, s[36:39], %s offen sc1" % (r, r + 3, va, so))
        a.label(l2)

    def tr64(self, dst, va, base):
        for t in range(4):
            for h in range(2):
                r = dst + 4 * t + 2 * h
                self.a("ds_read_b64_tr_b16 v[%d:%d], %s offset:%d" % (r, r + 1, va, base + 4096 * t + 2048 * h))

    def tr128(self, dst, base, nt):
        for t in range(nt):
            for ct in range(2):
                for h in range(2):
                    r = dst + 8 * t + 4 * ct + 2 * h
                    self.a("ds_read_b64_tr_b16 v[%d:%d], v%d offset:%d" % (r, r + 1, 13 + ct, base + 8192 * t + 4096 * h))

    def mfma(self, d, A, B, first):
        c = "0" if first else "v[%d:%d]" % (d, d + 3)
        self.a("v_mfma_f32_16x16x32_bf16 v[%d:%d], v[%d:%d], v[%d:%d], %s" % (d, d + 3, A, A + 3, B, B + 3, c))

    def finish(self):
        if self.debug:
            self.a("s_branch L_dump")
        else:
            self.a("s_endpgm")

    def build(self):
        a = self.a
        a.raw("; @launch grid=(256,1,1) block=(384,1,1) lds=%d" % LDS_BYTES)
        a.raw('.amdgcn_target "amdgcn-amd-amdhsa--gfx950"')
        a.raw(".text\n.globl %s\n.p2align 8\n.type %s,@function" % (KNAME, KNAME))
        a.label(KNAME)
        self.prologue()
        self.loader()
        self.aux()
        self.compute()
        self.wo_stage()
        self.ffn_stage()
        if self.warm:
            a.label("L_pad%d" % self.npad)
            a("s_branch L_warmed")
        if self.debug:
            self.dump()
        a.label("L_end")
        a("s_endpgm")
        a.label("L_codeend")
        a.raw('.section .rodata,"a"\n.p2align 6\n.amdhsa_kernel %s' % KNAME)
        a.raw("  .amdhsa_next_free_vgpr 160\n  .amdhsa_next_free_sgpr 102\n  .amdhsa_accum_offset 160")
        a.raw("  .amdhsa_group_segment_fixed_size 0\n  .amdhsa_kernarg_size 104\n  .amdhsa_user_sgpr_count 2")
        a.raw("  .amdhsa_user_sgpr_kernarg_segment_ptr 1\n  .amdhsa_system_sgpr_workgroup_id_x 1\n  .amdhsa_float_denorm_mode_32 3\n.end_amdhsa_kernel")
        return a.text()

    def prologue(self):
        a = self.a
        if self.debug:
            for i in range(1, 16):
                a("s_mov_b32 s%d, 0" % (64 + 2 * i))
        self.stamp(0)
        a("s_load_dwordx16 s[4:19], s[0:1], 0")
        a("s_load_dwordx8 s[20:27], s[0:1], 64")
        a("s_load_dwordx2 s[28:29], s[0:1], 96")
        a("s_cmp_ge_u32 s2, 256")
        a("s_cbranch_scc1 L_end")
        a("v_lshrrev_b32 v1, 6, v0")
        a("v_and_b32 v0, 63, v0")
        a("v_readfirstlane_b32 s3, v1")
        a("s_and_b32 s32, s2, 7")
        a("s_lshr_b32 s33, s2, 3")
        a("s_lshl_b32 s42, s32, 4")
        a("s_add_u32 s42, s42, s33")
        a("s_lshl_b32 s43, s32, 3")
        a("s_add_u32 s43, s43, s33")
        a("s_add_u32 s43, s43, 112")
        a("s_cmp_lt_u32 s33, 24")
        a("s_cselect_b32 s52, s43, -1")
        a("s_cmp_lt_u32 s33, 16")
        a("s_cselect_b32 s52, s42, s52")
        a("s_and_b32 s54, s33, 3")
        a("s_lshr_b32 s44, s33, 2")
        a("s_lshl_b32 s42, s32, 2")
        a("s_add_u32 s53, s42, s44")
        a("s_mov_b32 s55, 0")
        a("s_cmp_lt_u32 s33, 16")
        a("s_cbranch_scc1 L_roled")
        a("s_mov_b32 s55, 1")
        a("s_sub_u32 s53, s53, 4")
        a("s_cmp_lt_u32 s32, 4")
        a("s_cbranch_scc1 L_roled")
        a("s_mul_i32 s42, s32, 3")
        a("s_add_u32 s53, s42, s44")
        a("s_cmp_lt_u32 s33, 28")
        a("s_cselect_b32 s55, 1, 2")
        a.label("L_roled")
        a("v_mov_b32 v15, %d" % L_S)
        a("s_cmp_eq_u32 s3, 4")
        a("s_cbranch_scc1 L_loader")
        a("s_barrier")
        a("s_mov_b32 s34, 0xffffff00")
        a("v_mov_b32 v16, 1")
        a("v_lshrrev_b32 v1, 5, v0")
        a("v_and_b32 v2, 31, v0")
        a("v_lshlrev_b32 v1, 10, v1")
        a("v_lshl_add_u32 v1, v2, 3, v1")
        a("s_and_b32 s42, s52, 3")
        a("s_lshl_b32 s42, s42, 8")
        a("v_add_u32 v1, s42, v1")
        a("s_waitcnt lgkmcnt(0)")
        a("s_load_dword s30, s[28:29], 0")
        a("s_mov_b32 s36, s28\ns_mov_b32 s37, s29\ns_mov_b32 s38, %d\ns_mov_b32 s39, 0x20000" % WS_SIZE)
        a("s_cmp_eq_u32 s3, 5")
        a("s_cbranch_scc1 L_aux")
        a("global_load_dwordx2 v[24:25], v1, s[20:21]")
        a("s_branch L_compute")

    def seg(self, srd, vregs, step, n, W=None):
        a = self.a
        W = W or self.W
        slot = (W - 1) % 8
        lab = a.newlab("Lseg")
        a("s_mov_b32 s45, %d" % (n // 8))
        a.label(lab)
        for k in range(8):
            a("s_waitcnt vmcnt(%d)" % (W - 1))
            if k == slot:
                self.publish()
            a("buffer_load_dwordx4 v%d, s[%d:%d], s44 offen nt lds" % (vregs[k % len(vregs)], srd, srd + 3))
            a("s_add_u32 m0, m0, 1024")
            a("s_add_u32 s44, s44, %d" % step)
        a("s_sub_u32 s45, s45, 1")
        a("s_cmp_lg_u32 s45, 0")
        a("s_cbranch_scc1 %s" % lab)

    def publish(self):
        a = self.a
        a("s_mov_b64 exec, 1")
        a("v_add_u32 v14, 8, v14")
        a("ds_write_b32 v15, v14 offset:%d" % C_PROG)
        a("s_mov_b64 exec, -1")

    def drain(self):
        W = self.W
        left = ((W - 1) // 8) * 8
        k = left
        while k >= 0:
            self.a("s_waitcnt vmcnt(%d)" % k)
            self.publish()
            k -= 8

    def srd(self, r, p, n):
        self.a("s_mov_b32 s%d, s%d\ns_mov_b32 s%d, s%d\ns_mov_b32 s%d, %d\ns_mov_b32 s%d, 0x20000" % (r, p, r + 1, p + 1, r + 2, n, r + 3))

    def loader(self):
        a = self.a
        W = self.W
        a.label("L_loader")
        a("s_setprio %d" % self.prio)
        a("v_lshl_add_u32 v1, v0, 2, v15")
        a("v_mov_b32 v2, 0")
        a("s_mov_b64 exec, 0xffff")
        a("ds_write_b32 v1, v2")
        a("s_mov_b64 exec, -1")
        a("v_lshrrev_b32 v4, 3, v0")
        a("v_and_b32 v5, 7, v0")
        a("v_and_b32 v6, 6, v4")
        a("v_xor_b32 v5, v5, v6")
        a("v_lshlrev_b32 v5, 4, v5")
        a("v_mul_u32_u24 v16, 6144, v4")
        a("v_add_u32 v16, v16, v5")
        a("v_lshl_add_u32 v17, v4, 13, v5")
        p0 = -(((W - 1) // 8) * 8) - 8
        a("s_and_b32 s42, s52, 3")
        a("s_mul_i32 s42, s42, %d" % (128 * 6144))
        a("s_lshr_b32 s43, s52, 2")
        a("s_lshl_b32 s43, s43, 7")
        a("s_add_u32 s44, s42, s43")
        a("v_mov_b32 v14, %d" % (p0 + 16))
        a("s_waitcnt lgkmcnt(0)")
        a("s_barrier")
        a("s_cmp_lt_i32 s52, 0")
        a("s_cbranch_scc1 L_nomod")
        self.srd(56, 22, 512 * 3072 * 2)
        a("s_mov_b32 m0, %d" % L_MOD)
        a("v_mov_b32 v14, %d" % p0)
        self.seg(56, [16], 8 * 6144, 16)
        a.label("L_nomod")
        self.srd(60, 10, 512 * 4096 * 2)
        a("s_lshr_b32 s42, s33, 3")
        a("s_lshl_b32 s42, s42, 20")
        a("s_and_b32 s43, s33, 7")
        a("s_lshl_b32 s43, s43, 7")
        a("s_add_u32 s42, s42, s43")
        a("s_lshl_b32 s43, s32, 10")
        a("s_add_u32 s44, s42, s43")
        a("s_mov_b32 m0, %d" % L_WQ)
        self.seg(60, [17], 65536, 16)
        self.stamp(1)
        a("v_lshrrev_b32 v1, 4, v0")
        a("v_and_b32 v2, 15, v0")
        a("v_xor_b32 v3, v2, v1")
        a("v_lshlrev_b32 v3, 4, v3")
        a("v_lshl_add_u32 v18, v1, 8, v3")
        for k in (1, 2, 3):
            a("v_xor_b32 v%d, %d, v18" % (18 + k, k << 6))
        a("v_lshlrev_b32 v3, 1, v1")
        a("v_xor_b32 v3, v2, v3")
        a("v_lshlrev_b32 v3, 4, v3")
        a("v_lshl_add_u32 v22, v1, 8, v3")
        a("v_xor_b32 v23, 0x80, v22")
        a("v_lshl_add_u32 v24, v1, 10, v3")
        a("v_xor_b32 v25, 0x80, v24")
        a("v_mul_u32_u24 v26, 3584, v4")
        a("v_add_u32 v26, v26, v5")
        self.srd(56, 6, 1 << 27)
        self.srd(60, 8, 1 << 27)
        a("s_lshr_b32 s42, s33, 4")
        a("s_lshl_b32 s42, s42, 3")
        a("s_add_u32 s42, s42, s32")
        a("s_lshl_b32 s42, s42, 23")
        a("s_and_b32 s43, s33, 15")
        a("s_lshl_b32 s43, s43, 16")
        a("s_add_u32 s42, s42, s43")
        a("s_add_u32 s46, s42, %d" % (7 << 20))
        a("s_mov_b32 s44, s46")
        self.seg(56, [18, 19, 20, 21], 1024, 64)
        self.stamp(2)
        a("s_mov_b32 s44, s46")
        self.seg(60, [22, 23], 1024, 48)
        a("s_cmp_lt_i32 s52, 0")
        a("s_cbranch_scc1 L_vtail")
        if 'c' not in self.kill: self.lwait(C_MOD, "4")
        a.label("L_vtail")
        self.seg(60, [22, 23], 1024, 16)
        self.stamp(3)
        a("s_cmp_eq_u32 s55, 0")
        a("s_cbranch_scc0 L_ld_notwo")
        self.srd(56, 12, 4096 * 512 * 2)
        a("s_lshl_b32 s42, s53, 17")
        a("s_lshl_b32 s43, s54, 8")
        a("s_add_u32 s44, s42, s43")
        a("s_mov_b32 m0, %d" % L_K)
        if 'c' not in self.kill: self.lwait(C_K, "4")
        self.seg(56, [24, 25], 4096, 32)
        self.drain()
        self.stamp(4)
        self.finish()
        a.label("L_ld_notwo")
        self.drain()
        self.stamp(4)
        a("s_cmp_eq_u32 s55, 1")
        a("s_cbranch_scc0 L_ld_end")
        self.srd(56, 16, 512 * 1792 * 2)
        self.srd(60, 18, 512 * 1792 * 2)
        a("s_mul_i32 s42, s54, %d" % (128 * 3584))
        a("s_lshl_b32 s43, s53, 7")
        a("s_add_u32 s44, s42, s43")
        a("s_mov_b32 m0, %d" % L_K)
        if 'c' not in self.kill: self.lwait(C_K, "4")
        lab = a.newlab("Lseg")
        a("s_mov_b32 s45, 16")
        a.label(lab)
        a("buffer_load_dwordx4 v26, s[56:59], s44 offen nt lds")
        a("s_add_u32 m0, m0, 1024")
        a("s_add_u32 s44, s44, %d" % (8 * 3584))
        a("s_sub_u32 s45, s45, 1")
        a("s_cmp_lg_u32 s45, 0")
        a("s_cbranch_scc1 %s" % lab)
        a("s_lshl_b32 s42, s53, 16")
        a("s_lshl_b32 s43, s54, 8")
        a("s_add_u32 s44, s42, s43")
        lab = a.newlab("Lseg")
        a("s_mov_b32 s45, 8")
        a.label(lab)
        for v in (24, 25):
            a("buffer_load_dwordx4 v%d, s[60:63], s44 offen nt lds" % v)
            a("s_add_u32 m0, m0, 1024")
            a("s_add_u32 s44, s44, 4096")
        a("s_sub_u32 s45, s45, 1")
        a("s_cmp_lg_u32 s45, 0")
        a("s_cbranch_scc1 %s" % lab)
        a("s_waitcnt vmcnt(0)")
        a("v_mov_b32 v14, 184")
        self.publish()
        self.stamp(5)
        a.label("L_ld_end")
        self.finish()

    def aux(self):
        a = self.a
        a.label("L_aux")
        if 'a' in self.kill: self.finish()
        if 't' in self.xe:
            sh = 7 if 'w' in self.xe else 4
            base = 0x180000 if 'w' in self.xe else W_XC
            a("v_and_b32 v1, 31, v0")
            a("v_lshlrev_b32 v1, %d, v1" % sh)
            a("s_lshl_b32 s43, s32, %d" % (sh + 5))
            a("s_add_u32 s43, s43, %d" % base)
            a("buffer_load_dwordx4 v[44:47], v1, s[36:39], s43 offen sc1")
        a("s_cmp_lt_u32 s33, 4")
        a("s_cbranch_scc0 L_nopf")
        a("s_getpc_b64 s[42:43]")
        a.label("L_pc")
        a("s_sub_u32 s42, s42, L_pc-%s" % KNAME)
        a("s_subb_u32 s43, s43, 0")
        a("v_lshlrev_b32 v1, 4, v0")
        a("s_lshl_b32 s44, s33, 10")
        a("v_add_u32 v1, s44, v1")
        a.label("L_pf")
        a("v_cmp_gt_u32 vcc, L_codeend-%s-16, v1" % KNAME)
        a("s_and_saveexec_b64 s[46:47], vcc")
        a("s_cbranch_execz L_pfdone")
        a("global_load_dwordx4 v[40:43], v1, s[42:43]")
        a("v_add_u32 v1, 4096, v1")
        a("s_branch L_pf")
        a.label("L_pfdone")
        a("s_mov_b64 exec, -1")
        a.label("L_nopf")
        a("s_getreg_b32 s42, hwreg(HW_REG_XCC_ID, 0, 4)")
        if self.forcediff:
            a("s_and_b32 s42, s33, 1")
        a("s_lshl_b32 s42, s42, 8")
        a("s_waitcnt lgkmcnt(0)")
        a("s_add_u32 s31, s30, 1")
        a("s_and_b32 s31, s31, 0xff")
        a("s_or_b32 s44, s42, s31")
        a("v_mov_b32 v4, s44\nv_mov_b32 v5, s44\nv_mov_b32 v6, s44\nv_mov_b32 v7, s44")
        xe = self.xe
        sh = 7 if 'w' in xe else 4
        base = 0x180000 if 'w' in xe else W_XC
        a("s_lshl_b32 s43, s32, 5")
        a("s_add_u32 s43, s43, s33")
        a("s_lshl_b32 s43, s43, %d" % sh)
        a("s_add_u32 s43, s43, %d" % base)
        a("v_mov_b32 v1, 0")
        if 'd' in xe:
            a("s_waitcnt vmcnt(0)")
        self.stamp(4)
        if 'p' not in xe:
            a("s_mov_b64 exec, 1")
            a("buffer_store_dwordx4 v[4:7], v1, s[36:39], s43 offen %s" % ("sc1 nt" if 'n' in xe else "" if 'l' in xe else "sc1"))
            a("s_mov_b64 exec, -1")
            if 'v' in xe:
                a("s_waitcnt vmcnt(0)")
                self.stamp(5)
            if 's' in xe:
                a("s_waitcnt vmcnt(0)")
                self.stamp(1)
                self.finish()
        a("v_and_b32 v1, 31, v0")
        a("v_lshlrev_b32 v1, %d, v1" % sh)
        a("s_lshl_b32 s43, s32, %d" % (sh + 5))
        a("s_add_u32 s43, s43, %d" % base)
        if 'p' in xe:
            for it in range(4):
                a("buffer_load_dwordx4 v[20:23], v1, s[36:39], s43 offen %s" % ("sc1 nt" if 'n' in xe else "sc1"))
                a("s_waitcnt vmcnt(0)")
                self.stamp(5 + it)
            self.finish()
        self.gather([(20, "v1", "s43", 0)], fl=("sc1 nt" if 'm' in xe else "sc1"))
        a("v_cmp_ne_u32 vcc, s42, v20")
        a("s_cmp_eq_u64 vcc, 0")
        a("s_cselect_b32 s44, 1, 2")
        a("v_mov_b32 v4, s44")
        a("s_mov_b64 exec, 1")
        a("ds_write_b32 v15, v4 offset:%d" % C_SAME)
        self.stamp(1)
        if self.warm:
            a("s_mov_b64 exec, 0")
            a("s_branch L_pad0")
            a.label("L_warmed")
        a("s_mov_b64 exec, -1")
        self.stamp(2)
        if 'c' in self.kill: self.finish()
        a("s_cmp_eq_u32 s55, 0")
        a("s_cbranch_scc0 L_aux_end")
        a("v_and_b32 v1, 31, v0")
        a("v_lshlrev_b32 v1, 4, v1")
        a("s_lshl_b32 s43, s53, 9")
        a("s_add_u32 s43, s43, %d" % W_ST)
        self.gather([(20, "v1", "s43", 0)])
        a("v_mov_b32 v2, v20")
        for c in ("row_ror:8", "row_ror:4", "row_ror:2", "row_ror:1"):
            self.dpp("v_max_f32", "v2", c)
        a("v_sub_f32 v3, v20, v2")
        a("v_mul_f32 v3, %s, v3" % f2u(L2E))
        a("v_exp_f32 v3, v3")
        a("v_mul_f32 v4, v3, v21")
        for c in ("row_ror:8", "row_ror:4", "row_ror:2", "row_ror:1"):
            self.dpp("v_add_f32", "v4", c)
        a("v_rcp_f32 v4, v4")
        a("v_mul_f32 v3, v3, v4")
        a("v_lshrrev_b32 v1, 2, v1")
        a("v_add_u32 v1, v1, v15")
        a("ds_write_b32 v1, v3 offset:%d" % S_ALPHA)
        a("s_mov_b64 exec, 1")
        a("ds_write_b32 v15, v16 offset:%d" % C_ALPHA)
        self.stamp(3)
        a.label("L_aux_end")
        self.finish()

    def modgather(self, parts, dsts, rbs):
        a = self.a
        a("s_lshl_b32 s42, %s, 1" % rbs)
        a("s_lshr_b32 s43, s3, 1")
        a("s_add_u32 s42, s42, s43")
        a("s_lshl_b32 s42, s42, 11")
        a("s_and_b32 s43, s3, 1")
        a("s_lshl_b32 s43, s43, 8")
        a("s_add_u32 s42, s42, s43")
        loads = []
        for i, p in enumerate(parts):
            a("s_add_u32 s%d, s42, %d" % (44 + i, W_MOD + p * 16384))
            loads.append((96 + 4 * i, "v7", "s%d" % (44 + i), 0))
        self.gather(loads)
        for i, d in enumerate(dsts):
            self.tred(96 + 4 * i, d)
        for d in dsts:
            self.rbf(d)

    def compute(self):
        a = self.a
        a.label("L_compute")
        if 'c' in self.kill: self.finish()
        a("v_lshrrev_b32 v1, 4, v0")
        a("v_bfe_u32 v2, v0, 3, 1")
        a("v_and_b32 v3, 7, v0")
        a("v_lshl_add_u32 v4, v1, 3, v3")
        a("v_lshlrev_b32 v4, 5, v4")
        a("v_lshl_add_u32 v4, v2, 10, v4")
        a("global_load_dwordx4 v[64:67], v4, s[4:5]")
        a("global_load_dwordx4 v[68:71], v4, s[4:5] offset:16")
        a("v_lshl_add_u32 v5, v3, 2, v1")
        a("s_lshl_b32 s42, s3, 5")
        a("v_add_u32 v5, s42, v5")
        a("v_lshl_add_u32 v5, v2, 9, v5")
        a("v_lshlrev_b32 v148, 1, v5")
        a("s_lshr_b32 s42, s33, 3")
        a("s_lshl_b32 s42, s42, 8")
        a("v_add_u32 v5, s42, v148")
        a("global_load_ushort v18, v5, s[4:5]")
        a("s_lshl_b32 s42, s54, 8")
        a("v_add_u32 v148, s42, v148")
        a("global_load_ushort v19, v148, s[4:5]")
        a("v_and_b32 v4, 1, v0")
        a("v_mul_u32_u24 v4, 320, v4")
        a("v_lshl_add_u32 v4, v1, 4, v4")
        a("v_add_u32 v10, v4, v15")
        a("v_and_b32 v4, 3, v0")
        a("v_lshlrev_b32 v4, 4, v4")
        a("v_bfe_u32 v5, v0, 2, 1")
        a("v_lshl_add_u32 v4, v5, 3, v4")
        a("v_lshl_add_u32 v4, v1, 1, v4")
        a("s_lshl_b32 s42, s3, 6")
        a("s_add_u32 s42, s42, %d" % L_S)
        a("v_add_u32 v4, s42, v4")
        a("v_mul_u32_u24 v6, 320, v2")
        a("v_add_u32 v11, v6, v4")
        a("v_mul_u32_u24 v6, 272, v2")
        a("v_add_u32 v149, v6, v4")
        a("v_bfe_u32 v4, v0, 2, 2")
        a("v_lshl_add_u32 v5, v1, 2, v4")
        a("v_bfe_u32 v6, v0, 1, 1")
        a("v_and_b32 v8, 1, v0")
        a("v_lshlrev_b32 v8, 3, v8")
        a("s_lshl_b32 s42, s3, 1")
        a("v_add_u32 v9, s42, v6")
        a("v_and_b32 v12, 6, v5")
        a("v_xor_b32 v9, v9, v12")
        a("v_lshl_add_u32 v9, v9, 4, v8")
        a("v_lshl_add_u32 v12, v5, 7, v9")
        a("s_lshl_b32 s42, s3, 2")
        a("v_add_u32 v9, s42, v6")
        a("v_and_b32 v13, 7, v5")
        a("v_lshlrev_b32 v13, 1, v13")
        a("v_xor_b32 v9, v9, v13")
        a("v_lshl_add_u32 v9, v9, 4, v8")
        a("v_lshl_add_u32 v13, v5, 8, v9")
        a("v_xor_b32 v14, 32, v13")
        a("v_and_b32 v4, 3, v0")
        a("v_lshlrev_b32 v4, 4, v4")
        a("v_lshl_add_u32 v4, v2, 6, v4")
        a("v_bfe_u32 v5, v0, 2, 1")
        a("v_lshl_add_u32 v4, v5, 7, v4")
        a("v_lshl_add_u32 v7, v1, 9, v4")
        a("v_and_b32 v4, 1, v0")
        a("v_lshlrev_b32 v150, 4, v1")
        a("s_mov_b32 s40, 0")
        a("s_cmp_lt_i32 s52, 0")
        a("s_cbranch_scc1 L_c_nomod")
        a("v_lshl_add_u32 v151, v4, 6, v150")
        a("v_lshrrev_b32 v4, 5, v0")
        a("v_mul_u32_u24 v4, 320, v4")
        a("v_bfe_u32 v5, v0, 3, 2")
        a("v_lshl_add_u32 v4, v5, 6, v4")
        a("v_and_b32 v5, 3, v0")
        a("v_lshl_add_u32 v4, v5, 4, v4")
        a("v_bfe_u32 v5, v0, 2, 1")
        a("v_lshl_add_u32 v4, v5, 3, v4")
        a("s_mul_i32 s42, s3, 640")
        a("s_add_u32 s43, s42, %d" % (L_S + S_C))
        a("v_add_u32 v4, s43, v4")
        a("v_add_u32 v5, s42, v10")
        a("s_waitcnt vmcnt(4)")
        a("v_lshlrev_b32 v26, 16, v24")
        a("v_and_b32 v27, 0xffff0000, v24")
        a("v_lshlrev_b32 v28, 16, v25")
        a("v_and_b32 v29, 0xffff0000, v25")
        for k in range(4):
            a("v_mul_f32 v%d, %s, v%d" % (32 + k, f2u(-L2E), 26 + k))
        for k in range(4):
            a("v_exp_f32 v%d, v%d" % (32 + k, 32 + k))
        for k in range(4):
            a("v_add_f32 v%d, 1.0, v%d" % (32 + k, 32 + k))
        for k in range(4):
            a("v_rcp_f32 v%d, v%d" % (32 + k, 32 + k))
        for k in range(4):
            a("v_mul_f32 v%d, v%d, v%d" % (26 + k, 26 + k, 32 + k))
        a("v_cvt_pk_bf16_f32 v24, v26, v27")
        a("v_cvt_pk_bf16_f32 v25, v28, v29")
        a("ds_write_b64 v4, v[24:25]")
        for t in range(4):
            a("ds_read_b128 v[%d:%d], v5 offset:%d" % (48 + 4 * t, 51 + 4 * t, S_C + 64 * t))
        a("v_add_u32 v6, %d, v12" % L_MOD)
        self.lwait(C_PROG, "16", cache="s40")
        self.stamp(1)
        self.tr64(32, "v6", 0)
        a("s_add_u32 s31, s30, 1")
        a("s_and_b32 s31, s31, 0xff")
        a("v_mov_b32 v17, s31")
        a("s_lshl_b32 s42, s52, 9")
        a("s_lshl_b32 s43, s3, 7")
        a("s_add_u32 s42, s42, s43")
        a("s_add_u32 s42, s42, %d" % W_MOD)
        a("s_waitcnt lgkmcnt(0)")
        for t in range(4):
            self.mfma(128, 32 + 4 * t, 48 + 4 * t, t == 0)
        self.lsignal(C_MOD)
        self.tag4(128)
        self.execm(0x0003)
        self.store_ws(128, "v151", "s42", False)
        self.execall()
        self.stamp(2)
        a.label("L_c_nomod")
        a("s_waitcnt lgkmcnt(0)")
        a("s_add_u32 s31, s30, 1")
        a("s_and_b32 s31, s31, 0xff")
        a("v_mov_b32 v17, s31")
        a("s_cmp_lt_i32 s52, 0")
        a("s_cbranch_scc1 L_c_w0")
        a("s_waitcnt vmcnt(1)")
        a("s_branch L_c_w1")
        a.label("L_c_w0")
        a("s_waitcnt vmcnt(0)")
        a.label("L_c_w1")
        for k in range(8):
            a("v_lshlrev_b32 v%d, 16, v%d" % (72 + 2 * k, 64 + k))
            a("v_and_b32 v%d, 0xffff0000, v%d" % (73 + 2 * k, 64 + k))
        a("v_add_f32 v4, v72, v73")
        for k in range(2, 16):
            a("v_add_f32 v4, v4, v%d" % (72 + k))
        for c in ("quad_perm:[1,0,3,2]", "quad_perm:[2,3,0,1]", "row_half_mirror"):
            self.dpp("v_add_f32", "v4", c)
        self.allred_hi("v4", "v5", "v_add_f32")
        a("v_mul_f32 v4, %s, v4" % f2u(1.0 / 512))
        for k in range(16):
            a("v_sub_f32 v%d, v%d, v4" % (72 + k, 72 + k))
        a("v_mul_f32 v6, v72, v72")
        for k in range(1, 16):
            a("v_fmac_f32 v6, v%d, v%d" % (72 + k, 72 + k))
        for c in ("quad_perm:[1,0,3,2]", "quad_perm:[2,3,0,1]", "row_half_mirror"):
            self.dpp("v_add_f32", "v6", c)
        self.allred_hi("v6", "v5", "v_add_f32")
        a("v_mul_f32 v6, %s, v6" % f2u(1.0 / 512))
        self.rbf("v4"); self.rbf("v6")
        a("v_add_f32 v6, %s, v6" % f2u(1e-5))
        self.rbf("v6")
        a("v_sqrt_f32 v6, v6")
        self.rbf("v6")
        a("v_rcp_f32 v6, v6")
        a("v_lshlrev_b32 v18, 16, v18")
        a("v_lshlrev_b32 v19, 16, v19")
        a("v_sub_f32 v18, v18, v4")
        self.rbf("v18")
        a("v_mul_f32 v18, v18, v6")
        self.rbf("v18")
        self.lwait(C_PROG, "32", cache="s40")
        self.tr64(32, "v12", L_WQ)
        a("s_lshr_b32 s50, s33, 3")
        self.modgather([0, 1], ["v4", "v5"], "s50")
        self.stamp(3)
        a("v_add_f32 v5, 1.0, v5")
        self.rbf("v5")
        a("v_mul_f32 v5, v18, v5")
        self.rbf("v5")
        a("v_add_f32 v5, v5, v4")
        a("v_cvt_pk_bf16_f32 v5, v5, v5")
        a("ds_write_b16 v11, v5 offset:%d" % S_H)
        self.lsignal(C_A)
        a("v_and_b32 v4, 1, v0")
        a("v_lshl_add_u32 v6, v4, 13, v150")
        a("s_lshl_b32 s42, s32, 14")
        a("s_and_b32 s43, s33, 7")
        a("s_lshl_b32 s43, s43, 10")
        a("s_add_u32 s42, s42, s43")
        a("s_lshl_b32 s43, s50, 8")
        a("s_add_u32 s42, s42, s43")
        a("s_lshl_b32 s43, s3, 6")
        a("s_add_u32 s42, s42, s43")
        a("s_add_u32 s51, s42, %d" % W_Q)
        self.lwait(C_A, "4")
        for t in range(4):
            a("ds_read_b128 v[%d:%d], v10 offset:%d" % (48 + 4 * t, 51 + 4 * t, S_H + 64 * t))
        a("s_waitcnt lgkmcnt(0)")
        for t in range(4):
            self.mfma(128, 32 + 4 * t, 48 + 4 * t, t == 0)
        self.tag4(128)
        self.execm(0x0003)
        self.store_ws(128, "v6", "s51", False)
        self.execall()
        self.stamp(4)
        a("s_cmp_eq_u32 s55, 1")
        a("s_cbranch_scc0 L_c_noffn")
        self.modgather([2, 3, 4, 5], ["v20", "v4", "v22", "v21"], "s54")
        a("v_add_f32 v22, 1.0, v22")
        self.rbf("v22")
        a("v_lshrrev_b32 v5, 16, v22")
        a("ds_write_b16 v149, v5 offset:%d" % (S_X + 2 * 272))
        a("v_lshrrev_b32 v5, 16, v4")
        a("ds_write_b16 v149, v5 offset:%d" % (S_X + 8 * 272))
        a("v_mov_b32 v5, 0x3f80")
        a("ds_write_b16 v149, v5 offset:%d" % (S_X + 6 * 272))
        a.label("L_c_noffn")
        a("v_and_b32 v4, 15, v0")
        a("v_xor_b32 v5, v4, v1")
        a("v_lshlrev_b32 v5, 4, v5")
        a("v_lshl_add_u32 v5, v4, 8, v5")
        a("s_lshl_b32 s42, s3, 14")
        a("s_add_u32 s42, s42, %d" % L_K)
        a("v_add_u32 v24, s42, v5")
        for t in (1, 2, 3):
            a("v_xor_b32 v%d, %d, v24" % (24 + t, 64 * t))
        a("s_lshl_b32 s43, s3, 4")
        a("s_add_u32 s43, s43, 48")
        self.lwait(C_PROG, "s43", cache="s40")
        self.stamp(5)
        for tau in range(4):
            for t in range(4):
                r = 64 + 16 * tau + 4 * t
                a("ds_read_b128 v[%d:%d], v%d offset:%d" % (r, r + 3, 24 + t, 4096 * tau))
        a("v_lshlrev_b32 v6, 4, v0")
        a("s_lshl_b32 s42, s32, 1")
        a("s_lshr_b32 s43, s33, 4")
        a("s_add_u32 s42, s42, s43")
        a("s_lshl_b32 s42, s42, 13")
        a("s_lshl_b32 s43, s3, 11")
        a("s_add_u32 s42, s42, s43")
        a("s_add_u32 s44, s42, %d" % W_Q)
        self.smask(56, 0x00f0); self.smask(58, 0x0f00); self.smask(60, 0xf000)
        a("v_and_b32 v4, 15, v0")
        a("v_lshl_add_u32 v4, v4, 2, v1")
        a("v_lshlrev_b32 v4, 1, v4")
        a("s_mul_i32 s42, s3, 320")
        a("s_add_u32 s42, s42, %d" % (L_S + S_Q))
        a("v_add_u32 v28, s42, v4")
        a("v_and_b32 v4, 3, v0")
        a("v_mul_u32_u24 v5, 320, v4")
        a("v_add_u32 v5, v5, v150")
        a("v_add_u32 v29, v5, v15")
        a("v_mul_u32_u24 v5, 576, v4")
        a("v_add_u32 v5, v5, v150")
        a("v_add_u32 v30, v5, v15")
        a("v_bfe_u32 v8, v0, 2, 1")
        a("v_lshl_add_u32 v5, v8, 3, v30")
        a("v_bfe_u32 v8, v0, 3, 1")
        a("v_lshl_add_u32 v5, v8, 6, v5")
        a("s_lshl_b32 s42, s3, 7")
        a("v_add_u32 v31, s42, v5")
        a("v_lshl_add_u32 v144, v4, 4, v15")
        a("s_lshl_b32 s42, s3, 2")
        a("v_add_u32 v145, s42, v144")
        a("s_waitcnt lgkmcnt(0)")
        self.lsignal(C_K)
        self.gather([(32, "v6", "s44", 0), (36, "v6", "s44", 1024)])
        self.stamp(6)
        self.tred(32, "v4")
        self.tred(36, "v5")
        a("v_cvt_pk_bf16_f32 v4, v4, v5")
        a("ds_write_b16 v28, v4")
        a("ds_write_b16_d16_hi v28, v4 offset:128")
        self.lsignal(C_B)
        self.lwait(C_B, "4")
        for t in range(4):
            a("ds_read_b128 v[%d:%d], v29 offset:%d" % (48 + 4 * t, 51 + 4 * t, S_Q + 64 * t))
        for t in range(4):
            a("s_waitcnt lgkmcnt(%d)" % (3 - t))
            for tau in range(4):
                self.mfma(128 + 4 * tau, 64 + 16 * tau + 4 * t, 48 + 4 * t, t == 0)
        for tau in (1, 2, 3):
            for r in range(4):
                a("v_cndmask_b32 v%d, v%d, v%d, s[%d:%d]" % (128 + r, 128 + r, 128 + 4 * tau + r, 54 + 2 * tau, 55 + 2 * tau))
        def unpack(dlo, src):
            a("v_lshlrev_b32 v%d, 16, v%d" % (dlo, src))
            a("v_and_b32 v%d, 0xffff0000, v%d" % (dlo + 1, src))
        a("v_cvt_pk_bf16_f32 v4, v128, v129")
        a("v_cvt_pk_bf16_f32 v5, v130, v131")
        unpack(128, 4); unpack(130, 5)
        for r in range(4):
            a("v_mul_f32 v%d, %s, v%d" % (128 + r, f2u(128 ** -0.5), 128 + r))
        a("v_cvt_pk_bf16_f32 v4, v128, v129")
        a("v_cvt_pk_bf16_f32 v5, v130, v131")
        unpack(128, 4); unpack(130, 5)
        a("v_max3_f32 v4, v128, v129, v130")
        a("v_max_f32 v4, v4, v131")
        self.dpp("v_max_f32", "v4", "row_ror:4")
        self.dpp("v_max_f32", "v4", "row_ror:8")
        self.allred_hi("v4", "v5", "v_max_f32")
        a("s_mov_b64 exec, 15")
        a("ds_write_b32 v145, v4 offset:%d" % S_WM)
        self.lsignal(C_C)
        self.lwait(C_C, "4")
        a("ds_read_b128 v[32:35], v144 offset:%d" % S_WM)
        a("s_mov_b32 s42, %s" % f2u(L2E))
        a("s_waitcnt lgkmcnt(0)")
        a("v_max3_f32 v146, v32, v33, v34")
        a("v_max_f32 v146, v146, v35")
        a("v_mul_f32 v4, %s, v146" % f2u(-L2E))
        for r in range(4):
            a("v_fma_f32 v%d, v%d, s42, v4" % (128 + r, 128 + r))
        for r in range(4):
            a("v_exp_f32 v%d, v%d" % (128 + r, 128 + r))
        a("v_cvt_pk_bf16_f32 v4, v128, v129")
        a("v_cvt_pk_bf16_f32 v5, v130, v131")
        a("ds_write_b64 v31, v[4:5] offset:%d" % S_P)
        unpack(128, 4); unpack(130, 5)
        a("v_add_f32 v128, v128, v129")
        a("v_add_f32 v130, v130, v131")
        a("v_add_f32 v6, v128, v130")
        self.dpp("v_add_f32", "v6", "row_ror:4")
        self.dpp("v_add_f32", "v6", "row_ror:8")
        self.allred_hi("v6", "v8", "v_add_f32")
        a("s_mov_b64 exec, 15")
        a("ds_write_b32 v145, v6 offset:%d" % S_WL)
        self.lsignal(C_D)
        self.lwait(C_SAME, "1", st="s41")
        self.lwait(C_D, "4")
        self.stamp(7)
        a("s_cmp_eq_u32 s3, 0")
        a("s_cbranch_scc0 L_c_nost")
        a("ds_read_b128 v[32:35], v144 offset:%d" % S_WL)
        a("v_and_b32 v4, 3, v0")
        a("v_lshlrev_b32 v4, 9, v4")
        a("s_lshl_b32 s42, s32, 11")
        a("s_lshl_b32 s43, s33, 4")
        a("s_add_u32 s42, s42, s43")
        a("s_add_u32 s42, s42, %d" % W_ST)
        a("s_waitcnt lgkmcnt(0)")
        a("v_add_f32 v32, v32, v33")
        a("v_add_f32 v34, v34, v35")
        a("v_add_f32 v33, v32, v34")
        a("v_mov_b32 v32, v146")
        a("v_mov_b32 v34, v146")
        a("v_mov_b32 v35, v33")
        self.tag4(32)
        a("s_mov_b64 exec, 15")
        self.store_ws(32, "v4", "s42", True)
        self.execall()
        a.label("L_c_nost")
        self.pad()
        a("v_add_u32 v24, %d, v13" % L_V)
        a("v_add_u32 v25, %d, v14" % L_V)
        for r in range(8):
            a("v_mov_b32 v%d, 0" % (128 + r))
        a("v_and_b32 v4, 3, v0")
        a("v_lshl_add_u32 v4, v4, 14, v150")
        a("v_bfe_u32 v5, v0, 2, 1")
        a("v_lshl_add_u32 v26, v5, 6, v4")
        a("s_lshl_b32 s42, s32, 16")
        a("s_lshl_b32 s43, s33, 9")
        a("s_add_u32 s42, s42, s43")
        a("s_lshl_b32 s43, s3, 7")
        a("s_add_u32 s42, s42, s43")
        a("s_add_u32 s44, s42, %d" % W_O)
        a("s_mov_b32 s45, 104")
        a.label("L_pv")
        a("ds_read_b128 v[48:51], v30 offset:%d" % S_P)
        self.lwait(C_PROG, "s45", cache="s40")
        a("ds_read_b64_tr_b16 v[32:33], v24")
        a("ds_read_b64_tr_b16 v[34:35], v24 offset:4096")
        a("ds_read_b64_tr_b16 v[36:37], v25")
        a("ds_read_b64_tr_b16 v[38:39], v25 offset:4096")
        a("v_add_u32 v24, 0x2000, v24")
        a("v_add_u32 v25, 0x2000, v25")
        a("v_add_u32 v30, 64, v30")
        a("s_add_u32 s45, s45, 8")
        a("s_cmp_le_u32 s45, 160")
        a("s_waitcnt lgkmcnt(2)")
        self.mfma(128, 32, 48, False)
        a("s_waitcnt lgkmcnt(0)")
        self.mfma(132, 36, 48, False)
        a("s_cbranch_scc1 L_pv")
        self.stamp(8)
        for r in range(4):
            a("v_cndmask_b32 v%d, v%d, v%d, s[56:57]" % (128 + r, 128 + r, 132 + r))
        self.tag4(128)
        self.execm(0x00ff)
        self.store_ws(128, "v26", "s44", True)
        self.execall()
        self.stamp(9)
        a("s_cmp_eq_u32 s55, 1")
        a("s_cbranch_scc1 L_ffn")
        a("s_cmp_eq_u32 s55, 0")
        a("s_cbranch_scc1 L_wo")
        self.finish()

    def out2(self, d0, d1):
        for r in range(4):
            self.a("v_cndmask_b32 v%d, v%d, v%d, s[62:63]" % (d0 + r, d0 + r, d1 + r))
        self.tag4(d0)

    def wo_stage(self):
        a = self.a
        a.label("L_wo")
        self.pad()
        a("v_lshlrev_b32 v4, 4, v3")
        a("v_lshl_add_u32 v4, v1, 11, v4")
        a("v_lshl_add_u32 v6, v2, 13, v4")
        a("s_lshl_b32 s42, s53, 14")
        a("s_lshl_b32 s43, s3, 7")
        a("s_add_u32 s42, s42, s43")
        a("s_add_u32 s44, s42, %d" % W_O)
        a("v_and_b32 v4, 1, v0")
        a("v_lshl_add_u32 v4, v4, 7, v150")
        a("v_bfe_u32 v5, v0, 1, 1")
        a("v_lshl_add_u32 v26, v5, 6, v4")
        a("s_lshl_b32 s42, s54, 5")
        a("s_add_u32 s42, s42, s53")
        a("s_lshl_b32 s42, s42, 2")
        a("s_add_u32 s42, s42, s3")
        a("s_lshl_b32 s42, s42, 8")
        a("s_add_u32 s45, s42, %d" % W_W)
        self.smask(62, 0x000c)
        a("v_lshl_add_u32 v4, v2, 6, v150")
        a("v_add_u32 v4, v4, v15")
        self.lwait(C_ALPHA, "1")
        a("ds_read_b128 v[20:23], v4 offset:%d" % S_ALPHA)
        self.lwait(C_PROG, "192", cache="s40")
        self.pad()
        self.tr128(64, L_K, 4)
        self.stamp(10)
        self.gather([(32 + 4 * i, "v6", "s44", 512 * i) for i in range(4)])
        self.pad()
        self.stamp(11)
        a("s_waitcnt lgkmcnt(0)")
        for r in range(4):
            a("v_mul_f32 v%d, v%d, v20" % (32 + r, 32 + r))
        for i in (1, 2, 3):
            for r in range(4):
                a("v_fmac_f32 v%d, v%d, v%d" % (32 + r, 32 + 4 * i + r, 20 + i))
        self.tred(32, "v4")
        a("v_cvt_pk_bf16_f32 v4, v4, v4")
        a("ds_write_b16 v11, v4 offset:%d" % S_O)
        a("s_waitcnt lgkmcnt(0)")
        a("s_barrier")
        for t in range(4):
            a("ds_read_b128 v[%d:%d], v10 offset:%d" % (48 + 4 * t, 51 + 4 * t, S_O + 64 * t))
        self.pad()
        for t in range(4):
            a("s_waitcnt lgkmcnt(%d)" % (3 - t))
            self.mfma(128, 64 + 8 * t, 48 + 4 * t, t == 0)
            self.mfma(132, 68 + 8 * t, 48 + 4 * t, t == 0)
        self.out2(128, 132)
        self.execm(0x000f)
        self.store_ws(128, "v26", "s45", False)
        self.execall()
        self.stamp(12)
        self.finish()

    def ffn_stage(self):
        a = self.a
        a.label("L_ffn")
        self.pad()
        a("v_lshlrev_b32 v4, 4, v3")
        a("v_lshl_add_u32 v4, v2, 7, v4")
        a("v_lshl_add_u32 v6, v1, 10, v4")
        a("s_lshl_b32 s42, s54, 15")
        a("s_lshl_b32 s43, s3, 8")
        a("s_add_u32 s42, s42, s43")
        for i in range(8):
            a("s_add_u32 s%d, s42, %d" % (44 + i, W_W + 4096 * i))
        a("v_and_b32 v4, 15, v0")
        a("v_mul_u32_u24 v5, 272, v4")
        a("v_add_u32 v5, v5, v150")
        a("v_add_u32 v24, v5, v15")
        a("v_bfe_u32 v5, v0, 3, 1")
        a("v_lshlrev_b32 v5, 1, v5")
        a("v_sub_u32 v4, v4, v5")
        a("v_lshl_add_u32 v25, v4, 6, v150")
        a("s_lshl_b32 s42, s53, 2")
        a("s_add_u32 s42, s42, s3")
        a("s_lshl_b32 s42, s42, 11")
        a("s_add_u32 s57, s42, %d" % W_U)
        a("s_lshl_b32 s43, s54, 9")
        a("s_add_u32 s56, s57, s43")
        self.pad()
        a("v_and_b32 v4, 15, v0")
        a("v_lshlrev_b32 v4, 4, v4")
        a("v_lshl_add_u32 v27, v1, 9, v4")
        a("v_bfe_u32 v4, v0, 2, 1")
        a("v_mul_u32_u24 v4, 320, v4")
        a("v_and_b32 v5, 3, v0")
        a("v_lshl_add_u32 v4, v5, 4, v4")
        a("v_lshl_add_u32 v4, v1, 1, v4")
        a("s_lshr_b32 s42, s3, 1")
        a("s_lshl_b32 s42, s42, 6")
        a("s_and_b32 s43, s3, 1")
        a("s_lshl_b32 s43, s43, 3")
        a("s_add_u32 s42, s42, s43")
        a("s_add_u32 s42, s42, %d" % (L_S + S_U))
        a("v_add_u32 v28, s42, v4")
        a("v_and_b32 v4, 1, v0")
        a("v_mul_u32_u24 v4, 3584, v4")
        a("v_add_u32 v4, v4, v150")
        a("v_bfe_u32 v5, v0, 1, 1")
        a("v_lshl_add_u32 v26, v5, 6, v4")
        a("s_lshl_b32 s42, s54, 2")
        a("s_add_u32 s42, s42, s3")
        a("s_mul_i32 s42, s42, 7168")
        a("s_add_u32 s59, s42, %d" % W_F)
        a("s_lshl_b32 s43, s53, 7")
        a("s_add_u32 s58, s59, s43")
        self.smask(62, 0x000c)
        self.smask(60, 0x0030)
        self.pad()
        self.lwait(C_PROG, "192", cache="s40")
        self.tr64(32, "v12", L_K)
        self.tr128(64, L_K + 16384, 2)
        self.stamp(10)
        self.pad()
        self.gather([(96 + 4 * i, "v6", "s%d" % (44 + i), 0) for i in range(8)])
        self.pad()
        self.stamp(11)
        for i in (0, 2, 4, 6):
            for r in range(4):
                a("v_add_f32 v%d, v%d, v%d" % (96 + 4 * i + r, 96 + 4 * i + r, 100 + 4 * i + r))
        for r in range(4):
            a("v_add_f32 v%d, v%d, v%d" % (96 + r, 96 + r, 104 + r))
            a("v_add_f32 v%d, v%d, v%d" % (112 + r, 112 + r, 120 + r))
        for r in range(4):
            a("v_add_f32 v%d, v%d, v%d" % (96 + r, 96 + r, 112 + r))
        self.tred(96, "v4")
        a("v_fma_f32 v23, v20, v4, v19")
        a("v_cvt_pk_bf16_f32 v5, v23, v23")
        a("v_lshlrev_b32 v23, 16, v5")
        a("ds_write_b16 v149, v5 offset:%d" % (S_X + 4 * 272))
        a("v_mul_f32 v4, v23, v22")
        a("v_cvt_pk_bf16_f32 v4, v4, v4")
        a("ds_write_b16 v149, v4 offset:%d" % S_X)
        self.pad()
        a("s_waitcnt lgkmcnt(0)")
        a("s_barrier")
        for t in range(4):
            a("ds_read_b128 v[%d:%d], v24 offset:%d" % (48 + 4 * t, 51 + 4 * t, S_X + 64 * t))
        for t in range(4):
            a("s_waitcnt lgkmcnt(%d)" % (3 - t))
            self.mfma(128, 32 + 4 * t, 48 + 4 * t, t == 0)
            self.mfma(132, 48 + 4 * t, 48 + 4 * t, t == 0)
        for r in range(4):
            a("v_cndmask_b32 v%d, v%d, v%d, s[60:61]" % (128 + r, 128 + r, 132 + r))
        self.tag4(128)
        self.execm(0x033f)
        self.store_ws(128, "v25", "s56", True)
        self.execall()
        self.stamp(12)
        self.pad()
        self.gather([(96, "v27", "s57", 0), (100, "v27", "s57", 256)])
        self.stamp(13)
        self.tred(96, "v4")
        self.tred(100, "v5")
        self.pad()
        a("v_readlane_b32 s42, v5, 1")
        a("v_readlane_b32 s43, v5, 21")
        a("v_readlane_b32 s44, v5, 33")
        a("v_readlane_b32 s45, v5, 37")
        a("v_mov_b32_dpp v6, v4 row_ror:8 row_mask:0xf bank_mask:0xf")
        a("v_mov_b32_dpp v7, v5 row_ror:8 row_mask:0xf bank_mask:0xf")
        a("v_mov_b32 v8, s42")
        a("v_mov_b32 v9, s44")
        self.execm(0x00f0)
        a("v_mov_b32 v8, s43")
        a("v_mov_b32 v9, s45")
        self.execm(0x00ff)
        a("v_mul_f32 v9, %s, v9" % f2u(1.0 / 512))
        a("v_mul_f32 v8, %s, v8" % f2u(1.0 / 512))
        a("v_fma_f32 v8, -v9, v9, v8")
        a("v_max_f32 v8, 0, v8")
        a("v_add_f32 v8, %s, v8" % f2u(1e-5))
        a("v_rsq_f32 v8, v8")
        a("v_fma_f32 v4, -v9, v6, v4")
        a("v_fma_f32 v4, v4, v8, v7")
        a("v_mul_f32 v5, %s, v4" % f2u(-L2E))
        a("v_exp_f32 v5, v5")
        a("v_add_f32 v5, 1.0, v5")
        a("v_rcp_f32 v5, v5")
        a("v_mul_f32 v4, v4, v5")
        a("v_cvt_pk_bf16_f32 v4, v4, v4")
        a("ds_write_b16 v28, v4")
        self.execall()
        self.pad()
        a("s_waitcnt lgkmcnt(0)")
        a("s_barrier")
        for t in range(2):
            a("ds_read_b128 v[%d:%d], v10 offset:%d" % (48 + 4 * t, 51 + 4 * t, S_U + 64 * t))
        for t in range(2):
            a("s_waitcnt lgkmcnt(%d)" % (1 - t))
            self.mfma(128, 64 + 8 * t, 48 + 4 * t, t == 0)
            self.mfma(132, 68 + 8 * t, 48 + 4 * t, t == 0)
        self.out2(128, 132)
        self.execm(0x000f)
        self.store_ws(128, "v26", "s58", False)
        self.execall()
        self.stamp(14)
        a("s_lshr_b32 s42, s53, 1")
        a("s_cmp_eq_u32 s42, s3")
        a("s_cbranch_scc0 L_ffn_end")
        self.pad()
        a("s_and_b32 s46, s53, 1")
        a("s_mul_i32 s42, s46, 3584")
        a("s_add_u32 s59, s59, s42")
        a("v_lshlrev_b32 v6, 4, v0")
        a("v_and_b32 v7, 0x1ff, v6")
        self.gather([(96, "v6", "s59", 0), (100, "v6", "s59", 1024), (104, "v6", "s59", 2048), (108, "v7", "s59", 3072)])
        self.pad()
        for r in range(4):
            a("v_add_f32 v%d, v%d, v%d" % (96 + r, 96 + r, 100 + r))
        a("s_mov_b32 exec_hi, 0")
        for r in range(4):
            a("v_add_f32 v%d, v%d, v%d" % (104 + r, 104 + r, 108 + r))
        self.execall()
        for r in range(4):
            a("v_add_f32 v%d, v%d, v%d" % (96 + r, 96 + r, 104 + r))
        self.tred(96, "v4")
        self.dpp("v_add_f32", "v4", "row_ror:8")
        a("v_fma_f32 v4, v21, v4, v23")
        a("v_cvt_pk_bf16_f32 v4, v4, v4")
        a("s_lshl_b32 s42, s46, 3")
        a("s_lshl_b32 s42, 0x00ff00ff, s42")
        a("s_mov_b32 exec_lo, s42\ns_mov_b32 exec_hi, s42")
        a("global_store_short v148, v4, s[24:25]")
        a("s_cmp_eq_u32 s2, 128")
        a("s_cbranch_scc0 L_ffn_end")
        a("s_add_u32 s42, s30, 1")
        a("s_mov_b64 exec, 1")
        a("v_mov_b32 v5, s42")
        a("v_mov_b32 v6, 0")
        a("buffer_store_dword v5, v6, s[36:39], 0 offen sc1")
        a.label("L_ffn_end")
        self.stamp(15)
        self.finish()

    def dump(self):
        a = self.a
        a.label("L_dump")
        a("s_mov_b64 exec, -1")
        a("s_waitcnt lgkmcnt(0)")
        for i in range(16):
            a("v_writelane_b32 v1, s%d, %d" % (64 + 2 * i, i))
        if self.hdebug:
            a("s_cmp_lg_u32 s3, 0")
            a("s_cbranch_scc1 L_end")
            a("s_not_b32 s42, s64")
            a("v_writelane_b32 v1, s42, 1")
            a("v_lshlrev_b32 v2, 2, v0")
            a("s_mov_b64 exec, 0xffff")
            a("global_atomic_umax v2, v1, s[26:27]")
            a("s_endpgm")
        a("s_lshl_b32 s42, s2, 3")
        a("s_add_u32 s42, s42, s3")
        a("s_lshl_b32 s42, s42, 6")
        a("s_add_u32 s42, s42, %d" % W_STAMP)
        a("v_lshlrev_b32 v2, 2, v0")
        a("v_add_u32 v2, s42, v2")
        a("s_mov_b64 exec, 0xffff")
        a("global_store_dword v2, v1, s[28:29]")
        a("s_endpgm")

if __name__ == "__main__":
    import argparse
    ap = argparse.ArgumentParser()
    ap.add_argument("-o", default="cdna_kernels/" + NAME + ".s")
    ap.add_argument("--debug", action="store_true")
    ap.add_argument("--W", type=int, default=24)
    ap.add_argument("--nowarm", action="store_true")
    ap.add_argument("--cfg", default="")
    args = ap.parse_args()
    g = Gen(**{**dict(W=args.W, debug=args.debug, warm=not args.nowarm), **eval('dict(%s)' % args.cfg)})
    open(args.o, "w").write(g.build())
    print("written", args.o, "nops inserted", g.a.nops)
```

```python
import sys
from asmlib import Asm

NAME = "adaLN_cond__sliding_block_cached__dense_activation_silu__decode"
KNAME = NAME + "_kernel"

L_WQ = 0
L_K = 16384
L_V = L_K + 65536
L_MOD = L_V + 49152
L_S = L_V + 65536
C_PROG, C_MOD, C_A, C_K, C_B, C_C, C_D, C_SAME, C_ALPHA = 0, 4, 8, 12, 16, 20, 24, 28, 32
S_ALPHA = 128
S_WM = 256
S_WL = 320
S_C = 512
S_H = 3072
S_Q = 3712
S_P = 4992
S_O = 7296
S_U = 7936
S_X = 8576
LDS_BYTES = 163840
W_E = 0
W_XC = 0x1000
W_MOD = 0x2000
W_Q = 0x20000
W_ST = 0x40000
W_W = 0x48000
W_U = 0x68000
W_F = 0xA0000
W_O = 0x100000
W_STAMP = 0x200000
WS_SIZE = 0x400000

L2E = 1.4426950408889634
TO_V = 30000
TO_L = 600000

def f2u(x):
    import struct
    return "0x%08x" % struct.unpack("<I", struct.pack("<f", x))[0]

class Gen:
    def __init__(self, W=24, debug=False, warm=True, forcediff=False, sleepv=0, sleepl=0, kill=None, prio=3, xe='', hdebug=False, calib=0):
        self.a = Asm()
        self.W = W
        self.debug = debug
        self.warm = warm
        self.forcediff = forcediff
        self.npad = 0
        self.sleepv = sleepv; self.sleepl = sleepl; self.kill = kill or ''; self.prio = prio; self.xe = xe; self.hdebug = hdebug; self.calib = calib
        if hdebug: self.debug = True

    def stamp(self, i):
        if self.debug:
            self.a("s_memrealtime s[%d:%d]" % (64 + 2 * i, 65 + 2 * i))

    def pad(self):
        if self.warm:
            self.a.label("L_pad%d" % self.npad)
            self.npad += 1
            self.a("s_cbranch_execz L_pad%d" % self.npad)

    def execm(self, m16):
        v = m16 | (m16 << 16)
        self.a("s_mov_b32 exec_lo, 0x%08x\ns_mov_b32 exec_hi, 0x%08x" % (v, v))

    def execall(self):
        self.a("s_mov_b64 exec, -1")

    def smask(self, s, m16):
        v = m16 | (m16 << 16)
        self.a("s_mov_b32 s%d, 0x%08x\ns_mov_b32 s%d, 0x%08x" % (s, v, s + 1, v))

    def lwait(self, cnt, needv, cache=None, vt="v9", vls="v15", st="s42"):
        a = self.a
        ok = a.newlab("Lok"); sp = a.newlab("Lsp")
        s = cache or st
        if cache:
            a("s_cmp_ge_i32 %s, %s" % (cache, needv))
            a("s_cbranch_scc1 %s" % ok)
        a("s_mov_b32 s35, 0")
        a.label(sp)
        a("ds_read_b32 %s, %s offset:%d" % (vt, vls, cnt))
        a("s_waitcnt lgkmcnt(0)")
        a("v_readfirstlane_b32 %s, %s" % (s, vt))
        a("s_add_u32 s35, s35, 1")
        a("s_cmp_ge_i32 %s, %s" % (s, needv))
        a("s_cbranch_scc1 %s" % ok)
        if self.sleepl: a("s_sleep %d" % self.sleepl)
        a("s_cmp_lt_u32 s35, %d" % TO_L)
        a("s_cbranch_scc1 %s" % sp)
        a("s_endpgm")
        a.label(ok)

    def lsignal(self, cnt):
        a = self.a
        a("s_mov_b64 exec, 1")
        a("ds_add_u32 v15, v16 offset:%d" % cnt)
        a("s_mov_b64 exec, -1")

    def gather(self, loads, acc="v9", pre=None, fl="sc1"):
        a = self.a
        tr = a.newlab("Ltry"); ok = a.newlab("Lok")
        a("s_mov_b32 s35, 0")
        a.label(tr)
        n = len(loads)
        for (r, va, so, imm) in loads:
            a("buffer_load_dwordx4 v[%d:%d], %s, s[36:39], %s offen offset:%d %s" % (r, r + 3, va, so, imm, fl))
        for i, (r, va, so, imm) in enumerate(loads):
            a("s_waitcnt vmcnt(%d)" % (n - 1 - i))
            for k in range(4):
                a("v_xor_b32 v%d, s31, v%d" % (r + k, r + k))
            if i == 0:
                a("v_or3_b32 %s, v%d, v%d, v%d" % (acc, r, r + 1, r + 2))
                a("v_or_b32 %s, %s, v%d" % (acc, acc, r + 3))
            else:
                a("v_or3_b32 %s, v%d, v%d, %s" % (acc, r, r + 1, acc))
                a("v_or3_b32 %s, v%d, v%d, %s" % (acc, r + 2, r + 3, acc))
        a("v_and_b32 %s, 0xff, %s" % (acc, acc))
        a("v_cmp_ne_u32 vcc, 0, %s" % acc)
        a("s_cbranch_vccz %s" % ok)
        if self.sleepv: a("s_sleep %d" % self.sleepv)
        a("s_add_u32 s35, s35, 1")
        a("s_cmp_lt_u32 s35, %d" % TO_V)
        a("s_cbranch_scc1 %s" % tr)
        a("s_endpgm")
        a.label(ok)

    def tred(self, r, dst):
        a = self.a
        a("v_permlane32_swap_b32 v%d, v%d" % (r, r + 2))
        a("v_permlane32_swap_b32 v%d, v%d" % (r + 1, r + 3))
        a("v_add_f32 v%d, v%d, v%d" % (r, r, r + 2))
        a("v_add_f32 v%d, v%d, v%d" % (r + 1, r + 1, r + 3))
        a("v_permlane16_swap_b32 v%d, v%d" % (r, r + 1))
        a("v_add_f32 %s, v%d, v%d" % (dst, r, r + 1))

    def allred_hi(self, x, t, op):
        a = self.a
        a("v_mov_b32 %s, %s" % (t, x))
        a("v_permlane16_swap_b32 %s, %s" % (x, t))
        a("%s %s, %s, %s" % (op, x, x, t))
        a("v_mov_b32 %s, %s" % (t, x))
        a("v_permlane32_swap_b32 %s, %s" % (x, t))
        a("%s %s, %s, %s" % (op, x, x, t))

    def dpp(self, op, x, ctl):
        self.a("%s_dpp %s, %s, %s %s row_mask:0xf bank_mask:0xf" % (op, x, x, x, ctl))

    def rbf(self, x, t="v8"):
        self.a("v_cvt_pk_bf16_f32 %s, %s, %s" % (t, x, x))
        self.a("v_lshlrev_b32 %s, 16, %s" % (x, t))

    def tag4(self, r):
        for k in range(4):
            self.a("v_and_or_b32 v%d, v%d, s34, v17" % (r + k, r + k))

    def store_ws(self, r, va, so, local):
        a = self.a
        if not local:
            a("buffer_store_dwordx4 v[%d:%d], %s, s[36:39], %s offen sc1" % (r, r + 3, va, so))
            return
        l1 = a.newlab("Lst"); l2 = a.newlab("Lst")
        a("s_cmp_eq_u32 s41, 1")
        a("s_cbranch_scc0 %s" % l1)
        a("buffer_store_dwordx4 v[%d:%d], %s, s[36:39], %s offen" % (r, r + 3, va, so))
        a("s_branch %s" % l2)
        a.label(l1)
        a("buffer_store_dwordx4 v[%d:%d], %s, s[36:39], %s offen sc1" % (r, r + 3, va, so))
        a.label(l2)

    def tr64(self, dst, va, base):
        for t in range(4):
            for h in range(2):
                r = dst + 4 * t + 2 * h
                self.a("ds_read_b64_tr_b16 v[%d:%d], %s offset:%d" % (r, r + 1, va, base + 4096 * t + 2048 * h))

    def tr128(self, dst, base, nt):
        for t in range(nt):
            for ct in range(2):
                for h in range(2):
                    r = dst + 8 * t + 4 * ct + 2 * h
                    self.a("ds_read_b64_tr_b16 v[%d:%d], v%d offset:%d" % (r, r + 1, 13 + ct, base + 8192 * t + 4096 * h))

    def mfma(self, d, A, B, first):
        c = "0" if first else "v[%d:%d]" % (d, d + 3)
        self.a("v_mfma_f32_16x16x32_bf16 v[%d:%d], v[%d:%d], v[%d:%d], %s" % (d, d + 3, A, A + 3, B, B + 3, c))

    def finish(self):
        if self.debug:
            self.a("s_branch L_dump")
        else:
            self.a("s_endpgm")

    def build(self):
        a = self.a
        a.raw("; @launch grid=(256,1,1) block=(384,1,1) lds=%d" % LDS_BYTES)
        a.raw('.amdgcn_target "amdgcn-amd-amdhsa--gfx950"')
        a.raw(".text\n.globl %s\n.p2align 8\n.type %s,@function" % (KNAME, KNAME))
        a.label(KNAME)
        self.prologue()
        self.loader()
        self.aux()
        self.compute()
        self.wo_stage()
        self.ffn_stage()
        if self.warm:
            a.label("L_pad%d" % self.npad)
            a("s_branch L_warmed")
        if self.debug:
            self.dump()
        a.label("L_end")
        a("s_endpgm")
        a.label("L_codeend")
        a.raw('.section .rodata,"a"\n.p2align 6\n.amdhsa_kernel %s' % KNAME)
        a.raw("  .amdhsa_next_free_vgpr 160\n  .amdhsa_next_free_sgpr 102\n  .amdhsa_accum_offset 160")
        a.raw("  .amdhsa_group_segment_fixed_size 0\n  .amdhsa_kernarg_size 104\n  .amdhsa_user_sgpr_count 2")
        a.raw("  .amdhsa_user_sgpr_kernarg_segment_ptr 1\n  .amdhsa_system_sgpr_workgroup_id_x 1\n  .amdhsa_float_denorm_mode_32 3\n.end_amdhsa_kernel")
        return a.text()

    def prologue(self):
        a = self.a
        if self.debug:
            for i in range(1, 16):
                a("s_mov_b32 s%d, 0" % (64 + 2 * i))
        self.stamp(0)
        a("s_load_dwordx16 s[4:19], s[0:1], 0")
        a("s_load_dwordx8 s[20:27], s[0:1], 64")
        a("s_load_dwordx2 s[28:29], s[0:1], 96")
        a("s_cmp_ge_u32 s2, 256")
        a("s_cbranch_scc1 L_end")
        a("v_lshrrev_b32 v1, 6, v0")
        a("v_and_b32 v0, 63, v0")
        a("v_readfirstlane_b32 s3, v1")
        a("s_and_b32 s32, s2, 7")
        a("s_lshr_b32 s33, s2, 3")
        a("s_lshl_b32 s42, s32, 4")
        a("s_add_u32 s42, s42, s33")
        a("s_lshl_b32 s43, s32, 3")
        a("s_add_u32 s43, s43, s33")
        a("s_add_u32 s43, s43, 112")
        a("s_cmp_lt_u32 s33, 24")
        a("s_cselect_b32 s52, s43, -1")
        a("s_cmp_lt_u32 s33, 16")
        a("s_cselect_b32 s52, s42, s52")
        a("s_and_b32 s54, s33, 3")
        a("s_lshr_b32 s44, s33, 2")
        a("s_lshl_b32 s42, s32, 2")
        a("s_add_u32 s53, s42, s44")
        a("s_mov_b32 s55, 0")
        a("s_cmp_lt_u32 s33, 16")
        a("s_cbranch_scc1 L_roled")
        a("s_mov_b32 s55, 1")
        a("s_sub_u32 s53, s53, 4")
        a("s_cmp_lt_u32 s32, 4")
        a("s_cbranch_scc1 L_roled")
        a("s_mul_i32 s42, s32, 3")
        a("s_add_u32 s53, s42, s44")
        a("s_cmp_lt_u32 s33, 28")
        a("s_cselect_b32 s55, 1, 2")
        a.label("L_roled")
        a("v_mov_b32 v15, %d" % L_S)
        a("s_cmp_eq_u32 s3, 4")
        a("s_cbranch_scc1 L_loader")
        a("s_barrier")
        a("s_mov_b32 s34, 0xffffff00")
        a("v_mov_b32 v16, 1")
        a("v_lshrrev_b32 v1, 5, v0")
        a("v_and_b32 v2, 31, v0")
        a("v_lshlrev_b32 v1, 10, v1")
        a("v_lshl_add_u32 v1, v2, 3, v1")
        a("s_and_b32 s42, s52, 3")
        a("s_lshl_b32 s42, s42, 8")
        a("v_add_u32 v1, s42, v1")
        a("s_waitcnt lgkmcnt(0)")
        a("s_load_dword s30, s[28:29], 0")
        a("s_mov_b32 s36, s28\ns_mov_b32 s37, s29\ns_mov_b32 s38, %d\ns_mov_b32 s39, 0x20000" % WS_SIZE)
        a("s_cmp_eq_u32 s3, 5")
        a("s_cbranch_scc1 L_aux")
        a("global_load_dwordx2 v[24:25], v1, s[20:21]")
        a("s_branch L_compute")

    def seg(self, srd, vregs, step, n, W=None):
        a = self.a
        W = W or self.W
        slot = (W - 1) % 8
        lab = a.newlab("Lseg")
        a("s_mov_b32 s45, %d" % (n // 8))
        a.label(lab)
        for k in range(8):
            a("s_waitcnt vmcnt(%d)" % (W - 1))
            if k == slot:
                self.publish()
            a("buffer_load_dwordx4 v%d, s[%d:%d], s44 offen nt lds" % (vregs[k % len(vregs)], srd, srd + 3))
            a("s_add_u32 m0, m0, 1024")
            a("s_add_u32 s44, s44, %d" % step)
        a("s_sub_u32 s45, s45, 1")
        a("s_cmp_lg_u32 s45, 0")
        a("s_cbranch_scc1 %s" % lab)

    def publish(self):
        a = self.a
        a("s_mov_b64 exec, 1")
        a("v_add_u32 v14, 8, v14")
        a("ds_write_b32 v15, v14 offset:%d" % C_PROG)
        a("s_mov_b64 exec, -1")

    def drain(self):
        W = self.W
        left = ((W - 1) // 8) * 8
        k = left
        while k >= 0:
            self.a("s_waitcnt vmcnt(%d)" % k)
            self.publish()
            k -= 8

    def srd(self, r, p, n):
        self.a("s_mov_b32 s%d, s%d\ns_mov_b32 s%d, s%d\ns_mov_b32 s%d, %d\ns_mov_b32 s%d, 0x20000" % (r, p, r + 1, p + 1, r + 2, n, r + 3))

    def loader(self):
        a = self.a
        W = self.W
        a.label("L_loader")
        a("s_setprio %d" % self.prio)
        a("v_lshl_add_u32 v1, v0, 2, v15")
        a("v_mov_b32 v2, 0")
        a("s_mov_b64 exec, 0xffff")
        a("ds_write_b32 v1, v2")
        a("s_mov_b64 exec, -1")
        a("v_lshrrev_b32 v4, 3, v0")
        a("v_and_b32 v5, 7, v0")
        a("v_and_b32 v6, 6, v4")
        a("v_xor_b32 v5, v5, v6")
        a("v_lshlrev_b32 v5, 4, v5")
        a("v_mul_u32_u24 v16, 6144, v4")
        a("v_add_u32 v16, v16, v5")
        a("v_lshl_add_u32 v17, v4, 13, v5")
        p0 = -(((W - 1) // 8) * 8) - 8
        a("s_and_b32 s42, s52, 3")
        a("s_mul_i32 s42, s42, %d" % (128 * 6144))
        a("s_lshr_b32 s43, s52, 2")
        a("s_lshl_b32 s43, s43, 7")
        a("s_add_u32 s44, s42, s43")
        a("v_mov_b32 v14, %d" % (p0 + 16))
        a("s_waitcnt lgkmcnt(0)")
        a("s_barrier")
        a("s_cmp_lt_i32 s52, 0")
        a("s_cbranch_scc1 L_nomod")
        self.srd(56, 22, 512 * 3072 * 2)
        a("s_mov_b32 m0, %d" % L_MOD)
        a("v_mov_b32 v14, %d" % p0)
        self.seg(56, [16], 8 * 6144, 16)
        a.label("L_nomod")
        self.srd(60, 10, 512 * 4096 * 2)
        a("s_lshr_b32 s42, s33, 3")
        a("s_lshl_b32 s42, s42, 20")
        a("s_and_b32 s43, s33, 7")
        a("s_lshl_b32 s43, s43, 7")
        a("s_add_u32 s42, s42, s43")
        a("s_lshl_b32 s43, s32, 10")
        a("s_add_u32 s44, s42, s43")
        a("s_mov_b32 m0, %d" % L_WQ)
        self.seg(60, [17], 65536, 16)
        self.stamp(1)
        a("v_lshrrev_b32 v1, 4, v0")
        a("v_and_b32 v2, 15, v0")
        a("v_xor_b32 v3, v2, v1")
        a("v_lshlrev_b32 v3, 4, v3")
        a("v_lshl_add_u32 v18, v1, 8, v3")
        for k in (1, 2, 3):
            a("v_xor_b32 v%d, %d, v18" % (18 + k, k << 6))
        a("v_lshlrev_b32 v3, 1, v1")
        a("v_xor_b32 v3, v2, v3")
        a("v_lshlrev_b32 v3, 4, v3")
        a("v_lshl_add_u32 v22, v1, 8, v3")
        a("v_xor_b32 v23, 0x80, v22")
        a("v_lshl_add_u32 v24, v1, 10, v3")
        a("v_xor_b32 v25, 0x80, v24")
        a("v_mul_u32_u24 v26, 3584, v4")
        a("v_add_u32 v26, v26, v5")
        self.srd(56, 6, 1 << 27)
        self.srd(60, 8, 1 << 27)
        a("s_lshr_b32 s42, s33, 4")
        a("s_lshl_b32 s42, s42, 3")
        a("s_add_u32 s42, s42, s32")
        a("s_lshl_b32 s42, s42, 23")
        a("s_and_b32 s43, s33, 15")
        a("s_lshl_b32 s43, s43, 16")
        a("s_add_u32 s42, s42, s43")
        a("s_add_u32 s46, s42, %d" % (7 << 20))
        a("s_mov_b32 s44, s46")
        self.seg(56, [18, 19, 20, 21], 1024, 64)
        self.stamp(2)
        a("s_mov_b32 s44, s46")
        self.seg(60, [22, 23], 1024, 48)
        a("s_cmp_lt_i32 s52, 0")
        a("s_cbranch_scc1 L_vtail")
        if 'c' not in self.kill: self.lwait(C_MOD, "4")
        a.label("L_vtail")
        self.seg(60, [22, 23], 1024, 16)
        self.stamp(3)
        a("s_cmp_eq_u32 s55, 0")
        a("s_cbranch_scc0 L_ld_notwo")
        self.srd(56, 12, 4096 * 512 * 2)
        a("s_lshl_b32 s42, s53, 17")
        a("s_lshl_b32 s43, s54, 8")
        a("s_add_u32 s44, s42, s43")
        a("s_mov_b32 m0, %d" % L_K)
        if 'c' not in self.kill: self.lwait(C_K, "4")
        self.seg(56, [24, 25], 4096, 32)
        self.drain()
        self.stamp(4)
        self.finish()
        a.label("L_ld_notwo")
        self.drain()
        self.stamp(4)
        a("s_cmp_eq_u32 s55, 1")
        a("s_cbranch_scc0 L_ld_end")
        self.srd(56, 16, 512 * 1792 * 2)
        self.srd(60, 18, 512 * 1792 * 2)
        a("s_mul_i32 s42, s54, %d" % (128 * 3584))
        a("s_lshl_b32 s43, s53, 7")
        a("s_add_u32 s44, s42, s43")
        a("s_mov_b32 m0, %d" % L_K)
        if 'c' not in self.kill: self.lwait(C_K, "4")
        lab = a.newlab("Lseg")
        a("s_mov_b32 s45, 16")
        a.label(lab)
        a("buffer_load_dwordx4 v26, s[56:59], s44 offen nt lds")
        a("s_add_u32 m0, m0, 1024")
        a("s_add_u32 s44, s44, %d" % (8 * 3584))
        a("s_sub_u32 s45, s45, 1")
        a("s_cmp_lg_u32 s45, 0")
        a("s_cbranch_scc1 %s" % lab)
        a("s_lshl_b32 s42, s53, 16")
        a("s_lshl_b32 s43, s54, 8")
        a("s_add_u32 s44, s42, s43")
        lab = a.newlab("Lseg")
        a("s_mov_b32 s45, 8")
        a.label(lab)
        for v in (24, 25):
            a("buffer_load_dwordx4 v%d, s[60:63], s44 offen nt lds" % v)
            a("s_add_u32 m0, m0, 1024")
            a("s_add_u32 s44, s44, 4096")
        a("s_sub_u32 s45, s45, 1")
        a("s_cmp_lg_u32 s45, 0")
        a("s_cbranch_scc1 %s" % lab)
        a("s_waitcnt vmcnt(0)")
        a("v_mov_b32 v14, 184")
        self.publish()
        self.stamp(5)
        a.label("L_ld_end")
        self.finish()

    def aux(self):
        a = self.a
        a.label("L_aux")
        if 'a' in self.kill: self.finish()
        if 't' in self.xe:
            sh = 7 if 'w' in self.xe else 4
            base = 0x180000 if 'w' in self.xe else W_XC
            a("v_and_b32 v1, 31, v0")
            a("v_lshlrev_b32 v1, %d, v1" % sh)
            a("s_lshl_b32 s43, s32, %d" % (sh + 5))
            a("s_add_u32 s43, s43, %d" % base)
            a("buffer_load_dwordx4 v[44:47], v1, s[36:39], s43 offen sc1")
        a("s_cmp_lt_u32 s33, 4")
        a("s_cbranch_scc0 L_nopf")
        a("s_getpc_b64 s[42:43]")
        a.label("L_pc")
        a("s_sub_u32 s42, s42, L_pc-%s" % KNAME)
        a("s_subb_u32 s43, s43, 0")
        a("v_lshlrev_b32 v1, 4, v0")
        a("s_lshl_b32 s44, s33, 10")
        a("v_add_u32 v1, s44, v1")
        a.label("L_pf")
        a("v_cmp_gt_u32 vcc, L_codeend-%s-16, v1" % KNAME)
        a("s_and_saveexec_b64 s[46:47], vcc")
        a("s_cbranch_execz L_pfdone")
        a("global_load_dwordx4 v[40:43], v1, s[42:43]")
        a("v_add_u32 v1, 4096, v1")
        a("s_branch L_pf")
        a.label("L_pfdone")
        a("s_mov_b64 exec, -1")
        a.label("L_nopf")
        a("s_getreg_b32 s42, hwreg(HW_REG_XCC_ID, 0, 4)")
        if self.forcediff:
            a("s_and_b32 s42, s33, 1")
        a("s_lshl_b32 s42, s42, 8")
        a("s_waitcnt lgkmcnt(0)")
        a("s_add_u32 s31, s30, 1")
        a("s_and_b32 s31, s31, 0xff")
        a("s_or_b32 s44, s42, s31")
        a("v_mov_b32 v4, s44\nv_mov_b32 v5, s44\nv_mov_b32 v6, s44\nv_mov_b32 v7, s44")
        xe = self.xe
        sh = 7 if 'w' in xe else 4
        base = 0x180000 if 'w' in xe else W_XC
        a("s_lshl_b32 s43, s32, 5")
        a("s_add_u32 s43, s43, s33")
        a("s_lshl_b32 s43, s43, %d" % sh)
        a("s_add_u32 s43, s43, %d" % base)
        a("v_mov_b32 v1, 0")
        if 'd' in xe:
            a("s_waitcnt vmcnt(0)")
        self.stamp(4)
        if 'p' not in xe:
            a("s_mov_b64 exec, 1")
            a("buffer_store_dwordx4 v[4:7], v1, s[36:39], s43 offen %s" % ("sc1 nt" if 'n' in xe else "" if 'l' in xe else "sc1"))
            a("s_mov_b64 exec, -1")
            if 'v' in xe:
                a("s_waitcnt vmcnt(0)")
                self.stamp(5)
            if 's' in xe:
                a("s_waitcnt vmcnt(0)")
                self.stamp(1)
                self.finish()
        a("v_and_b32 v1, 31, v0")
        a("v_lshlrev_b32 v1, %d, v1" % sh)
        a("s_lshl_b32 s43, s32, %d" % (sh + 5))
        a("s_add_u32 s43, s43, %d" % base)
        if 'p' in xe:
            for it in range(4):
                a("buffer_load_dwordx4 v[20:23], v1, s[36:39], s43 offen %s" % ("sc1 nt" if 'n' in xe else "sc1"))
                a("s_waitcnt vmcnt(0)")
                self.stamp(5 + it)
            self.finish()
        self.gather([(20, "v1", "s43", 0)], fl=("sc1 nt" if 'm' in xe else "sc1"))
        a("v_cmp_ne_u32 vcc, s42, v20")
        a("s_cmp_eq_u64 vcc, 0")
        a("s_cselect_b32 s44, 1, 2")
        a("v_mov_b32 v4, s44")
        a("s_mov_b64 exec, 1")
        a("ds_write_b32 v15, v4 offset:%d" % C_SAME)
        self.stamp(1)
        if self.warm:
            a("s_mov_b64 exec, 0")
            a("s_branch L_pad0")
            a.label("L_warmed")
        a("s_mov_b64 exec, -1")
        self.stamp(2)
        if 'c' in self.kill: self.finish()
        a("s_cmp_eq_u32 s55, 0")
        a("s_cbranch_scc0 L_aux_end")
        a("v_and_b32 v1, 31, v0")
        a("v_lshlrev_b32 v1, 4, v1")
        a("s_lshl_b32 s43, s53, 9")
        a("s_add_u32 s43, s43, %d" % W_ST)
        self.gather([(20, "v1", "s43", 0)])
        a("v_mov_b32 v2, v20")
        for c in ("row_ror:8", "row_ror:4", "row_ror:2", "row_ror:1"):
            self.dpp("v_max_f32", "v2", c)
        a("v_sub_f32 v3, v20, v2")
        a("v_mul_f32 v3, %s, v3" % f2u(L2E))
        a("v_exp_f32 v3, v3")
        a("v_mul_f32 v4, v3, v21")
        for c in ("row_ror:8", "row_ror:4", "row_ror:2", "row_ror:1"):
            self.dpp("v_add_f32", "v4", c)
        a("v_rcp_f32 v4, v4")
        a("v_mul_f32 v3, v3, v4")
        a("v_lshrrev_b32 v1, 2, v1")
        a("v_add_u32 v1, v1, v15")
        a("ds_write_b32 v1, v3 offset:%d" % S_ALPHA)
        a("s_mov_b64 exec, 1")
        a("ds_write_b32 v15, v16 offset:%d" % C_ALPHA)
        self.stamp(3)
        a.label("L_aux_end")
        self.finish()

    def modgather(self, parts, dsts, rbs):
        a = self.a
        a("s_lshl_b32 s42, %s, 1" % rbs)
        a("s_lshr_b32 s43, s3, 1")
        a("s_add_u32 s42, s42, s43")
        a("s_lshl_b32 s42, s42, 11")
        a("s_and_b32 s43, s3, 1")
        a("s_lshl_b32 s43, s43, 8")
        a("s_add_u32 s42, s42, s43")
        loads = []
        for i, p in enumerate(parts):
            a("s_add_u32 s%d, s42, %d" % (44 + i, W_MOD + p * 16384))
            loads.append((96 + 4 * i, "v7", "s%d" % (44 + i), 0))
        self.gather(loads)
        for i, d in enumerate(dsts):
            self.tred(96 + 4 * i, d)
        for d in dsts:
            self.rbf(d)

    def compute(self):
        a = self.a
        a.label("L_compute")
        if 'c' in self.kill: self.finish()
        a("v_lshrrev_b32 v1, 4, v0")
        a("v_bfe_u32 v2, v0, 3, 1")
        a("v_and_b32 v3, 7, v0")
        a("v_lshl_add_u32 v4, v1, 3, v3")
        a("v_lshlrev_b32 v4, 5, v4")
        a("v_lshl_add_u32 v4, v2, 10, v4")
        a("global_load_dwordx4 v[64:67], v4, s[4:5]")
        a("global_load_dwordx4 v[68:71], v4, s[4:5] offset:16")
        a("v_lshl_add_u32 v5, v3, 2, v1")
        a("s_lshl_b32 s42, s3, 5")
        a("v_add_u32 v5, s42, v5")
        a("v_lshl_add_u32 v5, v2, 9, v5")
        a("v_lshlrev_b32 v148, 1, v5")
        a("s_lshr_b32 s42, s33, 3")
        a("s_lshl_b32 s42, s42, 8")
        a("v_add_u32 v5, s42, v148")
        a("global_load_ushort v18, v5, s[4:5]")
        a("s_lshl_b32 s42, s54, 8")
        a("v_add_u32 v148, s42, v148")
        a("global_load_ushort v19, v148, s[4:5]")
        a("v_and_b32 v4, 1, v0")
        a("v_mul_u32_u24 v4, 320, v4")
        a("v_lshl_add_u32 v4, v1, 4, v4")
        a("v_add_u32 v10, v4, v15")
        a("v_and_b32 v4, 3, v0")
        a("v_lshlrev_b32 v4, 4, v4")
        a("v_bfe_u32 v5, v0, 2, 1")
        a("v_lshl_add_u32 v4, v5, 3, v4")
        a("v_lshl_add_u32 v4, v1, 1, v4")
        a("s_lshl_b32 s42, s3, 6")
        a("s_add_u32 s42, s42, %d" % L_S)
        a("v_add_u32 v4, s42, v4")
        a("v_mul_u32_u24 v6, 320, v2")
        a("v_add_u32 v11, v6, v4")
        a("v_mul_u32_u24 v6, 272, v2")
        a("v_add_u32 v149, v6, v4")
        a("v_bfe_u32 v4, v0, 2, 2")
        a("v_lshl_add_u32 v5, v1, 2, v4")
        a("v_bfe_u32 v6, v0, 1, 1")
        a("v_and_b32 v8, 1, v0")
        a("v_lshlrev_b32 v8, 3, v8")
        a("s_lshl_b32 s42, s3, 1")
        a("v_add_u32 v9, s42, v6")
        a("v_and_b32 v12, 6, v5")
        a("v_xor_b32 v9, v9, v12")
        a("v_lshl_add_u32 v9, v9, 4, v8")
        a("v_lshl_add_u32 v12, v5, 7, v9")
        a("s_lshl_b32 s42, s3, 2")
        a("v_add_u32 v9, s42, v6")
        a("v_and_b32 v13, 7, v5")
        a("v_lshlrev_b32 v13, 1, v13")
        a("v_xor_b32 v9, v9, v13")
        a("v_lshl_add_u32 v9, v9, 4, v8")
        a("v_lshl_add_u32 v13, v5, 8, v9")
        a("v_xor_b32 v14, 32, v13")
        a("v_and_b32 v4, 3, v0")
        a("v_lshlrev_b32 v4, 4, v4")
        a("v_lshl_add_u32 v4, v2, 6, v4")
        a("v_bfe_u32 v5, v0, 2, 1")
        a("v_lshl_add_u32 v4, v5, 7, v4")
        a("v_lshl_add_u32 v7, v1, 9, v4")
        a("v_and_b32 v4, 1, v0")
        a("v_lshlrev_b32 v150, 4, v1")
        a("s_mov_b32 s40, 0")
        a("s_cmp_lt_i32 s52, 0")
        a("s_cbranch_scc1 L_c_nomod")
        a("v_lshl_add_u32 v151, v4, 6, v150")
        a("v_lshrrev_b32 v4, 5, v0")
        a("v_mul_u32_u24 v4, 320, v4")
        a("v_bfe_u32 v5, v0, 3, 2")
        a("v_lshl_add_u32 v4, v5, 6, v4")
        a("v_and_b32 v5, 3, v0")
        a("v_lshl_add_u32 v4, v5, 4, v4")
        a("v_bfe_u32 v5, v0, 2, 1")
        a("v_lshl_add_u32 v4, v5, 3, v4")
        a("s_mul_i32 s42, s3, 640")
        a("s_add_u32 s43, s42, %d" % (L_S + S_C))
        a("v_add_u32 v4, s43, v4")
        a("v_add_u32 v5, s42, v10")
        a("s_waitcnt vmcnt(4)")
        a("v_lshlrev_b32 v26, 16, v24")
        a("v_and_b32 v27, 0xffff0000, v24")
        a("v_lshlrev_b32 v28, 16, v25")
        a("v_and_b32 v29, 0xffff0000, v25")
        for k in range(4):
            a("v_mul_f32 v%d, %s, v%d" % (32 + k, f2u(-L2E), 26 + k))
        for k in range(4):
            a("v_exp_f32 v%d, v%d" % (32 + k, 32 + k))
        for k in range(4):
            a("v_add_f32 v%d, 1.0, v%d" % (32 + k, 32 + k))
        for k in range(4):
            a("v_rcp_f32 v%d, v%d" % (32 + k, 32 + k))
        for k in range(4):
            a("v_mul_f32 v%d, v%d, v%d" % (26 + k, 26 + k, 32 + k))
        a("v_cvt_pk_bf16_f32 v24, v26, v27")
        a("v_cvt_pk_bf16_f32 v25, v28, v29")
        a("ds_write_b64 v4, v[24:25]")
        for t in range(4):
            a("ds_read_b128 v[%d:%d], v5 offset:%d" % (48 + 4 * t, 51 + 4 * t, S_C + 64 * t))
        a("v_add_u32 v6, %d, v12" % L_MOD)
        self.lwait(C_PROG, "16", cache="s40")
        self.stamp(1)
        self.tr64(32, "v6", 0)
        a("s_add_u32 s31, s30, 1")
        a("s_and_b32 s31, s31, 0xff")
        a("v_mov_b32 v17, s31")
        a("s_lshl_b32 s42, s52, 9")
        a("s_lshl_b32 s43, s3, 7")
        a("s_add_u32 s42, s42, s43")
        a("s_add_u32 s42, s42, %d" % W_MOD)
        a("s_waitcnt lgkmcnt(0)")
        for t in range(4):
            self.mfma(128, 32 + 4 * t, 48 + 4 * t, t == 0)
        self.lsignal(C_MOD)
        self.tag4(128)
        self.execm(0x0003)
        self.store_ws(128, "v151", "s42", False)
        self.execall()
        self.stamp(2)
        a.label("L_c_nomod")
        a("s_waitcnt lgkmcnt(0)")
        a("s_add_u32 s31, s30, 1")
        a("s_and_b32 s31, s31, 0xff")
        a("v_mov_b32 v17, s31")
        a("s_cmp_lt_i32 s52, 0")
        a("s_cbranch_scc1 L_c_w0")
        a("s_waitcnt vmcnt(1)")
        a("s_branch L_c_w1")
        a.label("L_c_w0")
        a("s_waitcnt vmcnt(0)")
        a.label("L_c_w1")
        for k in range(8):
            a("v_lshlrev_b32 v%d, 16, v%d" % (72 + 2 * k, 64 + k))
            a("v_and_b32 v%d, 0xffff0000, v%d" % (73 + 2 * k, 64 + k))
        a("v_add_f32 v4, v72, v73")
        for k in range(2, 16):
            a("v_add_f32 v4, v4, v%d" % (72 + k))
        for c in ("quad_perm:[1,0,3,2]", "quad_perm:[2,3,0,1]", "row_half_mirror"):
            self.dpp("v_add_f32", "v4", c)
        self.allred_hi("v4", "v5", "v_add_f32")
        a("v_mul_f32 v4, %s, v4" % f2u(1.0 / 512))
        for k in range(16):
            a("v_sub_f32 v%d, v%d, v4" % (72 + k, 72 + k))
        a("v_mul_f32 v6, v72, v72")
        for k in range(1, 16):
            a("v_fmac_f32 v6, v%d, v%d" % (72 + k, 72 + k))
        for c in ("quad_perm:[1,0,3,2]", "quad_perm:[2,3,0,1]", "row_half_mirror"):
            self.dpp("v_add_f32", "v6", c)
        self.allred_hi("v6", "v5", "v_add_f32")
        a("v_mul_f32 v6, %s, v6" % f2u(1.0 / 512))
        self.rbf("v4"); self.rbf("v6")
        a("v_add_f32 v6, %s, v6" % f2u(1e-5))
        self.rbf("v6")
        a("v_sqrt_f32 v6, v6")
        self.rbf("v6")
        a("v_rcp_f32 v6, v6")
        a("v_lshlrev_b32 v18, 16, v18")
        a("v_lshlrev_b32 v19, 16, v19")
        a("v_sub_f32 v18, v18, v4")
        self.rbf("v18")
        a("v_mul_f32 v18, v18, v6")
        self.rbf("v18")
        self.lwait(C_PROG, "32", cache="s40")
        self.tr64(32, "v12", L_WQ)
        a("s_lshr_b32 s50, s33, 3")
        self.modgather([0, 1], ["v4", "v5"], "s50")
        self.stamp(3)
        a("v_add_f32 v5, 1.0, v5")
        self.rbf("v5")
        a("v_mul_f32 v5, v18, v5")
        self.rbf("v5")
        a("v_add_f32 v5, v5, v4")
        a("v_cvt_pk_bf16_f32 v5, v5, v5")
        a("ds_write_b16 v11, v5 offset:%d" % S_H)
        self.lsignal(C_A)
        a("v_and_b32 v4, 1, v0")
        a("v_lshl_add_u32 v6, v4, 13, v150")
        a("s_lshl_b32 s42, s32, 14")
        a("s_and_b32 s43, s33, 7")
        a("s_lshl_b32 s43, s43, 10")
        a("s_add_u32 s42, s42, s43")
        a("s_lshl_b32 s43, s50, 8")
        a("s_add_u32 s42, s42, s43")
        a("s_lshl_b32 s43, s3, 6")
        a("s_add_u32 s42, s42, s43")
        a("s_add_u32 s51, s42, %d" % W_Q)
        self.lwait(C_A, "4")
        for t in range(4):
            a("ds_read_b128 v[%d:%d], v10 offset:%d" % (48 + 4 * t, 51 + 4 * t, S_H + 64 * t))
        a("s_waitcnt lgkmcnt(0)")
        for t in range(4):
            self.mfma(128, 32 + 4 * t, 48 + 4 * t, t == 0)
        self.tag4(128)
        self.execm(0x0003)
        self.store_ws(128, "v6", "s51", False)
        self.execall()
        self.stamp(4)
        a("s_cmp_eq_u32 s55, 1")
        a("s_cbranch_scc0 L_c_noffn")
        self.modgather([2, 3, 4, 5], ["v20", "v4", "v22", "v21"], "s54")
        a("v_add_f32 v22, 1.0, v22")
        self.rbf("v22")
        a("v_lshrrev_b32 v5, 16, v22")
        a("ds_write_b16 v149, v5 offset:%d" % (S_X + 2 * 272))
        a("v_lshrrev_b32 v5, 16, v4")
        a("ds_write_b16 v149, v5 offset:%d" % (S_X + 8 * 272))
        a("v_mov_b32 v5, 0x3f80")
        a("ds_write_b16 v149, v5 offset:%d" % (S_X + 6 * 272))
        a.label("L_c_noffn")
        a("v_and_b32 v4, 15, v0")
        a("v_xor_b32 v5, v4, v1")
        a("v_lshlrev_b32 v5, 4, v5")
        a("v_lshl_add_u32 v5, v4, 8, v5")
        a("s_lshl_b32 s42, s3, 14")
        a("s_add_u32 s42, s42, %d" % L_K)
        a("v_add_u32 v24, s42, v5")
        for t in (1, 2, 3):
            a("v_xor_b32 v%d, %d, v24" % (24 + t, 64 * t))
        a("s_lshl_b32 s43, s3, 4")
        a("s_add_u32 s43, s43, 48")
        self.lwait(C_PROG, "s43", cache="s40")
        self.stamp(5)
        for tau in range(4):
            for t in range(4):
                r = 64 + 16 * tau + 4 * t
                a("ds_read_b128 v[%d:%d], v%d offset:%d" % (r, r + 3, 24 + t, 4096 * tau))
        a("v_lshlrev_b32 v6, 4, v0")
        a("s_lshl_b32 s42, s32, 1")
        a("s_lshr_b32 s43, s33, 4")
        a("s_add_u32 s42, s42, s43")
        a("s_lshl_b32 s42, s42, 13")
        a("s_lshl_b32 s43, s3, 11")
        a("s_add_u32 s42, s42, s43")
        a("s_add_u32 s44, s42, %d" % W_Q)
        self.smask(56, 0x00f0); self.smask(58, 0x0f00); self.smask(60, 0xf000)
        a("v_and_b32 v4, 15, v0")
        a("v_lshl_add_u32 v4, v4, 2, v1")
        a("v_lshlrev_b32 v4, 1, v4")
        a("s_mul_i32 s42, s3, 320")
        a("s_add_u32 s42, s42, %d" % (L_S + S_Q))
        a("v_add_u32 v28, s42, v4")
        a("v_and_b32 v4, 3, v0")
        a("v_mul_u32_u24 v5, 320, v4")
        a("v_add_u32 v5, v5, v150")
        a("v_add_u32 v29, v5, v15")
        a("v_mul_u32_u24 v5, 576, v4")
        a("v_add_u32 v5, v5, v150")
        a("v_add_u32 v30, v5, v15")
        a("v_bfe_u32 v8, v0, 2, 1")
        a("v_lshl_add_u32 v5, v8, 3, v30")
        a("v_bfe_u32 v8, v0, 3, 1")
        a("v_lshl_add_u32 v5, v8, 6, v5")
        a("s_lshl_b32 s42, s3, 7")
        a("v_add_u32 v31, s42, v5")
        a("v_lshl_add_u32 v144, v4, 4, v15")
        a("s_lshl_b32 s42, s3, 2")
        a("v_add_u32 v145, s42, v144")
        a("s_waitcnt lgkmcnt(0)")
        self.lsignal(C_K)
        self.gather([(32, "v6", "s44", 0), (36, "v6", "s44", 1024)])
        self.stamp(6)
        self.tred(32, "v4")
        self.tred(36, "v5")
        a("v_cvt_pk_bf16_f32 v4, v4, v5")
        a("ds_write_b16 v28, v4")
        a("ds_write_b16_d16_hi v28, v4 offset:128")
        self.lsignal(C_B)
        self.lwait(C_B, "4")
        for t in range(4):
            a("ds_read_b128 v[%d:%d], v29 offset:%d" % (48 + 4 * t, 51 + 4 * t, S_Q + 64 * t))
        for t in range(4):
            a("s_waitcnt lgkmcnt(%d)" % (3 - t))
            for tau in range(4):
                self.mfma(128 + 4 * tau, 64 + 16 * tau + 4 * t, 48 + 4 * t, t == 0)
        for tau in (1, 2, 3):
            for r in range(4):
                a("v_cndmask_b32 v%d, v%d, v%d, s[%d:%d]" % (128 + r, 128 + r, 128 + 4 * tau + r, 54 + 2 * tau, 55 + 2 * tau))
        def unpack(dlo, src):
            a("v_lshlrev_b32 v%d, 16, v%d" % (dlo, src))
            a("v_and_b32 v%d, 0xffff0000, v%d" % (dlo + 1, src))
        a("v_cvt_pk_bf16_f32 v4, v128, v129")
        a("v_cvt_pk_bf16_f32 v5, v130, v131")
        unpack(128, 4); unpack(130, 5)
        for r in range(4):
            a("v_mul_f32 v%d, %s, v%d" % (128 + r, f2u(128 ** -0.5), 128 + r))
        a("v_cvt_pk_bf16_f32 v4, v128, v129")
        a("v_cvt_pk_bf16_f32 v5, v130, v131")
        unpack(128, 4); unpack(130, 5)
        a("v_max3_f32 v4, v128, v129, v130")
        a("v_max_f32 v4, v4, v131")
        self.dpp("v_max_f32", "v4", "row_ror:4")
        self.dpp("v_max_f32", "v4", "row_ror:8")
        self.allred_hi("v4", "v5", "v_max_f32")
        a("s_mov_b64 exec, 15")
        a("ds_write_b32 v145, v4 offset:%d" % S_WM)
        self.lsignal(C_C)
        self.lwait(C_C, "4")
        a("ds_read_b128 v[32:35], v144 offset:%d" % S_WM)
        a("s_mov_b32 s42, %s" % f2u(L2E))
        a("s_waitcnt lgkmcnt(0)")
        a("v_max3_f32 v146, v32, v33, v34")
        a("v_max_f32 v146, v146, v35")
        a("v_mul_f32 v4, %s, v146" % f2u(-L2E))
        for r in range(4):
            a("v_fma_f32 v%d, v%d, s42, v4" % (128 + r, 128 + r))
        for r in range(4):
            a("v_exp_f32 v%d, v%d" % (128 + r, 128 + r))
        a("v_cvt_pk_bf16_f32 v4, v128, v129")
        a("v_cvt_pk_bf16_f32 v5, v130, v131")
        a("ds_write_b64 v31, v[4:5] offset:%d" % S_P)
        unpack(128, 4); unpack(130, 5)
        a("v_add_f32 v128, v128, v129")
        a("v_add_f32 v130, v130, v131")
        a("v_add_f32 v6, v128, v130")
        self.dpp("v_add_f32", "v6", "row_ror:4")
        self.dpp("v_add_f32", "v6", "row_ror:8")
        self.allred_hi("v6", "v8", "v_add_f32")
        a("s_mov_b64 exec, 15")
        a("ds_write_b32 v145, v6 offset:%d" % S_WL)
        self.lsignal(C_D)
        self.lwait(C_SAME, "1", st="s41")
        self.lwait(C_D, "4")
        self.stamp(7)
        a("s_cmp_eq_u32 s3, 0")
        a("s_cbranch_scc0 L_c_nost")
        a("ds_read_b128 v[32:35], v144 offset:%d" % S_WL)
        a("v_and_b32 v4, 3, v0")
        a("v_lshlrev_b32 v4, 9, v4")
        a("s_lshl_b32 s42, s32, 11")
        a("s_lshl_b32 s43, s33, 4")
        a("s_add_u32 s42, s42, s43")
        a("s_add_u32 s42, s42, %d" % W_ST)
        a("s_waitcnt lgkmcnt(0)")
        a("v_add_f32 v32, v32, v33")
        a("v_add_f32 v34, v34, v35")
        a("v_add_f32 v33, v32, v34")
        a("v_mov_b32 v32, v146")
        a("v_mov_b32 v34, v146")
        a("v_mov_b32 v35, v33")
        self.tag4(32)
        a("s_mov_b64 exec, 15")
        self.store_ws(32, "v4", "s42", True)
        self.execall()
        a.label("L_c_nost")
        self.pad()
        a("v_add_u32 v24, %d, v13" % L_V)
        a("v_add_u32 v25, %d, v14" % L_V)
        for r in range(8):
            a("v_mov_b32 v%d, 0" % (128 + r))
        a("v_and_b32 v4, 3, v0")
        a("v_lshl_add_u32 v4, v4, 14, v150")
        a("v_bfe_u32 v5, v0, 2, 1")
        a("v_lshl_add_u32 v26, v5, 6, v4")
        a("s_lshl_b32 s42, s32, 16")
        a("s_lshl_b32 s43, s33, 9")
        a("s_add_u32 s42, s42, s43")
        a("s_lshl_b32 s43, s3, 7")
        a("s_add_u32 s42, s42, s43")
        a("s_add_u32 s44, s42, %d" % W_O)
        a("s_mov_b32 s45, 104")
        a.label("L_pv")
        a("ds_read_b128 v[48:51], v30 offset:%d" % S_P)
        self.lwait(C_PROG, "s45", cache="s40")
        a("ds_read_b64_tr_b16 v[32:33], v24")
        a("ds_read_b64_tr_b16 v[34:35], v24 offset:4096")
        a("ds_read_b64_tr_b16 v[36:37], v25")
        a("ds_read_b64_tr_b16 v[38:39], v25 offset:4096")
        a("v_add_u32 v24, 0x2000, v24")
        a("v_add_u32 v25, 0x2000, v25")
        a("v_add_u32 v30, 64, v30")
        a("s_add_u32 s45, s45, 8")
        a("s_cmp_le_u32 s45, 160")
        a("s_waitcnt lgkmcnt(2)")
        self.mfma(128, 32, 48, False)
        a("s_waitcnt lgkmcnt(0)")
        self.mfma(132, 36, 48, False)
        a("s_cbranch_scc1 L_pv")
        self.stamp(8)
        for r in range(4):
            a("v_cndmask_b32 v%d, v%d, v%d, s[56:57]" % (128 + r, 128 + r, 132 + r))
        self.tag4(128)
        self.execm(0x00ff)
        self.store_ws(128, "v26", "s44", True)
        self.execall()
        self.stamp(9)
        a("s_cmp_eq_u32 s55, 1")
        a("s_cbranch_scc1 L_ffn")
        a("s_cmp_eq_u32 s55, 0")
        a("s_cbranch_scc1 L_wo")
        self.finish()

    def out2(self, d0, d1):
        for r in range(4):
            self.a("v_cndmask_b32 v%d, v%d, v%d, s[62:63]" % (d0 + r, d0 + r, d1 + r))
        self.tag4(d0)

    def wo_stage(self):
        a = self.a
        a.label("L_wo")
        self.pad()
        a("v_lshlrev_b32 v4, 4, v3")
        a("v_lshl_add_u32 v4, v1, 11, v4")
        a("v_lshl_add_u32 v6, v2, 13, v4")
        a("s_lshl_b32 s42, s53, 14")
        a("s_lshl_b32 s43, s3, 7")
        a("s_add_u32 s42, s42, s43")
        a("s_add_u32 s44, s42, %d" % W_O)
        a("v_and_b32 v4, 1, v0")
        a("v_lshl_add_u32 v4, v4, 7, v150")
        a("v_bfe_u32 v5, v0, 1, 1")
        a("v_lshl_add_u32 v26, v5, 6, v4")
        a("s_lshl_b32 s42, s54, 5")
        a("s_add_u32 s42, s42, s53")
        a("s_lshl_b32 s42, s42, 2")
        a("s_add_u32 s42, s42, s3")
        a("s_lshl_b32 s42, s42, 8")
        a("s_add_u32 s45, s42, %d" % W_W)
        self.smask(62, 0x000c)
        a("v_lshl_add_u32 v4, v2, 6, v150")
        a("v_add_u32 v4, v4, v15")
        self.lwait(C_ALPHA, "1")
        a("ds_read_b128 v[20:23], v4 offset:%d" % S_ALPHA)
        self.lwait(C_PROG, "192", cache="s40")
        self.pad()
        self.tr128(64, L_K, 4)
        self.stamp(10)
        self.gather([(32 + 4 * i, "v6", "s44", 512 * i) for i in range(4)])
        self.pad()
        self.stamp(11)
        a("s_waitcnt lgkmcnt(0)")
        for r in range(4):
            a("v_mul_f32 v%d, v%d, v20" % (32 + r, 32 + r))
        for i in (1, 2, 3):
            for r in range(4):
                a("v_fmac_f32 v%d, v%d, v%d" % (32 + r, 32 + 4 * i + r, 20 + i))
        self.tred(32, "v4")
        a("v_cvt_pk_bf16_f32 v4, v4, v4")
        a("ds_write_b16 v11, v4 offset:%d" % S_O)
        a("s_waitcnt lgkmcnt(0)")
        a("s_barrier")
        for t in range(4):
            a("ds_read_b128 v[%d:%d], v10 offset:%d" % (48 + 4 * t, 51 + 4 * t, S_O + 64 * t))
        self.pad()
        for t in range(4):
            a("s_waitcnt lgkmcnt(%d)" % (3 - t))
            self.mfma(128, 64 + 8 * t, 48 + 4 * t, t == 0)
            self.mfma(132, 68 + 8 * t, 48 + 4 * t, t == 0)
        self.out2(128, 132)
        self.execm(0x000f)
        self.store_ws(128, "v26", "s45", False)
        self.execall()
        self.stamp(12)
        self.finish()

    def ffn_stage(self):
        a = self.a
        a.label("L_ffn")
        self.pad()
        a("v_lshlrev_b32 v4, 4, v3")
        a("v_lshl_add_u32 v4, v2, 7, v4")
        a("v_lshl_add_u32 v6, v1, 10, v4")
        a("s_lshl_b32 s42, s54, 15")
        a("s_lshl_b32 s43, s3, 8")
        a("s_add_u32 s42, s42, s43")
        for i in range(8):
            a("s_add_u32 s%d, s42, %d" % (44 + i, W_W + 4096 * i))
        a("v_and_b32 v4, 15, v0")
        a("v_mul_u32_u24 v5, 272, v4")
        a("v_add_u32 v5, v5, v150")
        a("v_add_u32 v24, v5, v15")
        a("v_bfe_u32 v5, v0, 3, 1")
        a("v_lshlrev_b32 v5, 1, v5")
        a("v_sub_u32 v4, v4, v5")
        a("v_lshl_add_u32 v25, v4, 6, v150")
        a("s_lshl_b32 s42, s53, 2")
        a("s_add_u32 s42, s42, s3")
        a("s_lshl_b32 s42, s42, 11")
        a("s_add_u32 s57, s42, %d" % W_U)
        a("s_lshl_b32 s43, s54, 9")
        a("s_add_u32 s56, s57, s43")
        self.pad()
        a("v_and_b32 v4, 15, v0")
        a("v_lshlrev_b32 v4, 4, v4")
        a("v_lshl_add_u32 v27, v1, 9, v4")
        a("v_bfe_u32 v4, v0, 2, 1")
        a("v_mul_u32_u24 v4, 320, v4")
        a("v_and_b32 v5, 3, v0")
        a("v_lshl_add_u32 v4, v5, 4, v4")
        a("v_lshl_add_u32 v4, v1, 1, v4")
        a("s_lshr_b32 s42, s3, 1")
        a("s_lshl_b32 s42, s42, 6")
        a("s_and_b32 s43, s3, 1")
        a("s_lshl_b32 s43, s43, 3")
        a("s_add_u32 s42, s42, s43")
        a("s_add_u32 s42, s42, %d" % (L_S + S_U))
        a("v_add_u32 v28, s42, v4")
        a("v_and_b32 v4, 1, v0")
        a("v_mul_u32_u24 v4, 3584, v4")
        a("v_add_u32 v4, v4, v150")
        a("v_bfe_u32 v5, v0, 1, 1")
        a("v_lshl_add_u32 v26, v5, 6, v4")
        a("s_lshl_b32 s42, s54, 2")
        a("s_add_u32 s42, s42, s3")
        a("s_mul_i32 s42, s42, 7168")
        a("s_add_u32 s59, s42, %d" % W_F)
        a("s_lshl_b32 s43, s53, 7")
        a("s_add_u32 s58, s59, s43")
        self.smask(62, 0x000c)
        self.smask(60, 0x0030)
        self.pad()
        self.lwait(C_PROG, "192", cache="s40")
        self.tr64(32, "v12", L_K)
        self.tr128(64, L_K + 16384, 2)
        self.stamp(10)
        self.pad()
        self.gather([(96 + 4 * i, "v6", "s%d" % (44 + i), 0) for i in range(8)])
        self.pad()
        self.stamp(11)
        for i in (0, 2, 4, 6):
            for r in range(4):
                a("v_add_f32 v%d, v%d, v%d" % (96 + 4 * i + r, 96 + 4 * i + r, 100 + 4 * i + r))
        for r in range(4):
            a("v_add_f32 v%d, v%d, v%d" % (96 + r, 96 + r, 104 + r))
            a("v_add_f32 v%d, v%d, v%d" % (112 + r, 112 + r, 120 + r))
        for r in range(4):
            a("v_add_f32 v%d, v%d, v%d" % (96 + r, 96 + r, 112 + r))
        self.tred(96, "v4")
        a("v_fma_f32 v23, v20, v4, v19")
        a("v_cvt_pk_bf16_f32 v5, v23, v23")
        a("v_lshlrev_b32 v23, 16, v5")
        a("ds_write_b16 v149, v5 offset:%d" % (S_X + 4 * 272))
        a("v_mul_f32 v4, v23, v22")
        a("v_cvt_pk_bf16_f32 v4, v4, v4")
        a("ds_write_b16 v149, v4 offset:%d" % S_X)
        self.pad()
        a("s_waitcnt lgkmcnt(0)")
        a("s_barrier")
        for t in range(4):
            a("ds_read_b128 v[%d:%d], v24 offset:%d" % (48 + 4 * t, 51 + 4 * t, S_X + 64 * t))
        for t in range(4):
            a("s_waitcnt lgkmcnt(%d)" % (3 - t))
            self.mfma(128, 32 + 4 * t, 48 + 4 * t, t == 0)
            self.mfma(132, 48 + 4 * t, 48 + 4 * t, t == 0)
        for r in range(4):
            a("v_cndmask_b32 v%d, v%d, v%d, s[60:61]" % (128 + r, 128 + r, 132 + r))
        self.tag4(128)
        self.execm(0x033f)
        self.store_ws(128, "v25", "s56", True)
        self.execall()
        self.stamp(12)
        self.pad()
        self.gather([(96, "v27", "s57", 0), (100, "v27", "s57", 256)])
        self.stamp(13)
        self.tred(96, "v4")
        self.tred(100, "v5")
        self.pad()
        a("v_readlane_b32 s42, v5, 1")
        a("v_readlane_b32 s43, v5, 21")
        a("v_readlane_b32 s44, v5, 33")
        a("v_readlane_b32 s45, v5, 37")
        a("v_mov_b32_dpp v6, v4 row_ror:8 row_mask:0xf bank_mask:0xf")
        a("v_mov_b32_dpp v7, v5 row_ror:8 row_mask:0xf bank_mask:0xf")
        a("v_mov_b32 v8, s42")
        a("v_mov_b32 v9, s44")
        self.execm(0x00f0)
        a("v_mov_b32 v8, s43")
        a("v_mov_b32 v9, s45")
        self.execm(0x00ff)
        a("v_mul_f32 v9, %s, v9" % f2u(1.0 / 512))
        a("v_mul_f32 v8, %s, v8" % f2u(1.0 / 512))
        a("v_fma_f32 v8, -v9, v9, v8")
        a("v_max_f32 v8, 0, v8")
        a("v_add_f32 v8, %s, v8" % f2u(1e-5))
        a("v_rsq_f32 v8, v8")
        a("v_fma_f32 v4, -v9, v6, v4")
        a("v_fma_f32 v4, v4, v8, v7")
        a("v_mul_f32 v5, %s, v4" % f2u(-L2E))
        a("v_exp_f32 v5, v5")
        a("v_add_f32 v5, 1.0, v5")
        a("v_rcp_f32 v5, v5")
        a("v_mul_f32 v4, v4, v5")
        a("v_cvt_pk_bf16_f32 v4, v4, v4")
        a("ds_write_b16 v28, v4")
        self.execall()
        self.pad()
        a("s_waitcnt lgkmcnt(0)")
        a("s_barrier")
        for t in range(2):
            a("ds_read_b128 v[%d:%d], v10 offset:%d" % (48 + 4 * t, 51 + 4 * t, S_U + 64 * t))
        for t in range(2):
            a("s_waitcnt lgkmcnt(%d)" % (1 - t))
            self.mfma(128, 64 + 8 * t, 48 + 4 * t, t == 0)
            self.mfma(132, 68 + 8 * t, 48 + 4 * t, t == 0)
        self.out2(128, 132)
        self.execm(0x000f)
        self.store_ws(128, "v26", "s58", False)
        self.execall()
        self.stamp(14)
        a("s_lshr_b32 s42, s53, 1")
        a("s_cmp_eq_u32 s42, s3")
        a("s_cbranch_scc0 L_ffn_end")
        self.pad()
        a("s_and_b32 s46, s53, 1")
        a("s_mul_i32 s42, s46, 3584")
        a("s_add_u32 s59, s59, s42")
        a("v_lshlrev_b32 v6, 4, v0")
        a("v_and_b32 v7, 0x1ff, v6")
        self.gather([(96, "v6", "s59", 0), (100, "v6", "s59", 1024), (104, "v6", "s59", 2048), (108, "v7", "s59", 3072)])
        self.pad()
        for r in range(4):
            a("v_add_f32 v%d, v%d, v%d" % (96 + r, 96 + r, 100 + r))
        a("s_mov_b32 exec_hi, 0")
        for r in range(4):
            a("v_add_f32 v%d, v%d, v%d" % (104 + r, 104 + r, 108 + r))
        self.execall()
        for r in range(4):
            a("v_add_f32 v%d, v%d, v%d" % (96 + r, 96 + r, 104 + r))
        self.tred(96, "v4")
        self.dpp("v_add_f32", "v4", "row_ror:8")
        a("v_fma_f32 v4, v21, v4, v23")
        a("v_cvt_pk_bf16_f32 v4, v4, v4")
        a("s_lshl_b32 s42, s46, 3")
        a("s_lshl_b32 s42, 0x00ff00ff, s42")
        a("s_mov_b32 exec_lo, s42\ns_mov_b32 exec_hi, s42")
        a("global_store_short v148, v4, s[24:25]")
        a("s_cmp_eq_u32 s2, 128")
        a("s_cbranch_scc0 L_ffn_end")
        a("s_add_u32 s42, s30, 1")
        a("s_mov_b64 exec, 1")
        a("v_mov_b32 v5, s42")
        a("v_mov_b32 v6, 0")
        a("buffer_store_dword v5, v6, s[36:39], 0 offen sc1")
        a.label("L_ffn_end")
        self.stamp(15)
        self.finish()

    def dump(self):
        a = self.a
        a.label("L_dump")
        a("s_mov_b64 exec, -1")
        a("s_waitcnt lgkmcnt(0)")
        for i in range(16):
            a("v_writelane_b32 v1, s%d, %d" % (64 + 2 * i, i))
        if self.calib:
            a.label("L_cal")
            a("s_memrealtime s[42:43]")
            a("s_waitcnt lgkmcnt(0)")
            a("s_sub_u32 s42, s42, s64")
            a("s_cmp_lt_u32 s42, %d" % self.calib)
            a("s_cbranch_scc1 L_cal")
        if self.hdebug:
            a("s_cmp_lg_u32 s3, 0")
            a("s_cbranch_scc1 L_end")
            a("s_not_b32 s42, s64")
            a("v_writelane_b32 v1, s42, 1")
            a("v_lshlrev_b32 v2, 2, v0")
            a("s_mov_b64 exec, 0xffff")
            a("global_atomic_umax v2, v1, s[26:27]")
            a("s_endpgm")
        a("s_lshl_b32 s42, s2, 3")
        a("s_add_u32 s42, s42, s3")
        a("s_lshl_b32 s42, s42, 6")
        a("s_add_u32 s42, s42, %d" % W_STAMP)
        a("v_lshlrev_b32 v2, 2, v0")
        a("v_add_u32 v2, s42, v2")
        a("s_mov_b64 exec, 0xffff")
        a("global_store_dword v2, v1, s[28:29]")
        a("s_endpgm")

if __name__ == "__main__":
    import argparse
    ap = argparse.ArgumentParser()
    ap.add_argument("-o", default="cdna_kernels/" + NAME + ".s")
    ap.add_argument("--debug", action="store_true")
    ap.add_argument("--W", type=int, default=24)
    ap.add_argument("--nowarm", action="store_true")
    ap.add_argument("--cfg", default="")
    args = ap.parse_args()
    g = Gen(**{**dict(W=args.W, debug=args.debug, warm=not args.nowarm), **eval('dict(%s)' % args.cfg)})
    open(args.o, "w").write(g.build())
    print("written", args.o, "nops inserted", g.a.nops)
```

```python
import re

TRANS = ("v_exp_f32", "v_log_f32", "v_rcp_f32", "v_rsq_f32", "v_sqrt_f32", "v_sin_f32", "v_cos_f32")

def _regs(tok):
    tok = tok.strip()
    if tok.startswith("-"): tok = tok[1:]
    m = re.fullmatch(r"abs\((.*)\)|\|(.*)\|", tok)
    if m: tok = m.group(1) or m.group(2)
    m = re.fullmatch(r"([vs])(\d+)", tok)
    if m: return {(m.group(1), int(m.group(2)))}
    m = re.fullmatch(r"([vs])\[(\d+):(\d+)\]", tok)
    if m: return {(m.group(1), i) for i in range(int(m.group(2)), int(m.group(3)) + 1)}
    if tok == "vcc": return {("s", "vcc_lo"), ("s", "vcc_hi")}
    if tok in ("vcc_lo", "vcc_hi"): return {("s", tok)}
    if tok == "m0": return {("s", "m0")}
    if tok == "exec": return {("s", "exec_lo"), ("s", "exec_hi")}
    if tok in ("exec_lo", "exec_hi"): return {("s", tok)}
    return set()

class Ins:
    def __init__(self, text):
        self.text = text
        body = text.split(";")[0].strip()
        parts = body.split(None, 1)
        self.op = parts[0]
        rest = parts[1] if len(parts) > 1 else ""
        toks = [t.strip() for t in rest.split(",")] if rest else []
        mods = ""
        if toks:
            sp = toks[-1].split(None, 1)
            toks[-1] = sp[0]
            mods = sp[1] if len(sp) > 1 else ""
        self.toks = toks; self.mods = mods
        op = self.op
        self.states = 1
        self.kind = "other"
        self.w = set(); self.r = set()
        self.srcc = set(); self.ab = set(); self.stdata = set()
        R = [_regs(t) for t in toks]
        if op == "s_nop":
            self.states = int(toks[0]) + 1
        elif op.startswith("v_mfma"):
            self.kind = "mfma"; self.w = R[0]; self.ab = R[1] | R[2]; self.srcc = R[3]; self.r = self.ab | self.srcc
        elif op.startswith("v_"):
            self.kind = "valu"
            if op.startswith("v_cmp"):
                self.w = R[0]; self.r = set().union(*R[1:])
            elif op.startswith("v_permlane"):
                self.w = R[0] | R[1]; self.r = R[0] | R[1]
            elif op.startswith(("v_add_co", "v_sub_co", "v_addc_co", "v_subb_co")):
                self.w = R[0] | R[1]; self.r = set().union(*R[2:])
            else:
                self.w = R[0]; self.r = set().union(*R[1:]) if len(R) > 1 else set()
                if op.startswith(("v_fmac", "v_dot2c", "v_writelane")): self.r |= R[0]
                if op.startswith("v_cndmask") and len(toks) == 3: self.r |= _regs("vcc")
            self.dpp = ("_dpp" in op) or any(k in mods for k in ("row_", "quad_perm", "wave_"))
            if self.dpp: self.r |= R[0]
            self.trans = op.replace("_e32", "").replace("_e64", "") in TRANS
            self.lane = op.startswith(("v_readlane", "v_readfirstlane"))
            self.perm = op.startswith("v_permlane")
        elif op.startswith(("buffer_", "global_", "flat_")):
            self.kind = "vmem"
            self.lds = " lds" in (" " + mods) or "load_lds" in op
            allr = set().union(*R) if R else set()
            if "load" in op and not self.lds:
                self.w = R[0]; self.r = set().union(*R[1:])
            else:
                self.r = allr
                if "store" in op and ("x4" in op or "x3" in op):
                    self.stdata = R[0] if op.startswith("buffer_") else R[1]
        elif op.startswith("ds_"):
            self.kind = "ds"
            if "read" in op or "permute" in op or "_rtn" in op:
                self.w = R[0]; self.r = set().union(*R[1:])
            else:
                self.r = set().union(*R)
        elif op.startswith("s_"):
            self.kind = "salu"
            if op.startswith(("s_cmp", "s_cbranch", "s_branch", "s_waitcnt", "s_barrier", "s_endpgm", "s_sleep", "s_setprio", "s_bitcmp", "s_setpc")):
                self.r = set().union(*R) if R else set()
            else:
                self.w = R[0] if R else set(); self.r = set().union(*R[1:]) if len(R) > 1 else set()
                if "saveexec" in op: self.w |= _regs("exec")

def need(prev, cur):
    n = 0
    pv = {x for x in prev.w if x[0] == "v"}; ps = {x for x in prev.w if x[0] == "s"}
    if prev.kind == "valu":
        if cur.kind == "valu":
            if cur.lane and (pv & cur.r): n = max(n, 1)
            if (cur.dpp or cur.perm) and (pv & cur.r): n = max(n, 2)
            if prev.trans and not cur.trans and (pv & cur.r): n = max(n, 1)
            if ps & cur.r: n = max(n, 4 if cur.op.startswith(("v_readlane", "v_writelane")) else 2)
        if cur.kind == "mfma" and ((pv | ps) & cur.r): n = max(n, 2)
        if cur.kind == "vmem" and (ps & cur.r): n = max(n, 5)
    if prev.kind == "mfma":
        if cur.kind == "mfma":
            if prev.w & cur.ab: n = max(n, 8)
            if prev.w & cur.srcc and prev.w != cur.srcc: n = max(n, 6)
            if prev.w & cur.w and not (prev.w == cur.srcc): n = max(n, 8)
        elif cur.kind in ("valu", "vmem", "ds"):
            if prev.w & (cur.r | cur.w): n = max(n, 8)
            if cur.kind == "valu" and (prev.srcc & cur.w): n = max(n, 3)
    if prev.kind == "vmem" and prev.stdata:
        if prev.stdata & cur.w: n = max(n, 2)
    if prev.kind == "salu" and ("s", "m0") in prev.w and cur.kind == "vmem" and getattr(cur, "lds", False): n = max(n, 1)
    return n

def est_size(ins):
    op = ins.op
    lit = any(re.fullmatch(r"-?(0x[0-9a-fA-F]+|\d+)", t) and not (-16 <= int(t, 0) <= 64) for t in ins.toks) or any("L_" in t for t in ins.toks if not op.startswith(("s_cbranch", "s_branch")))
    if ins.kind in ("mfma", "vmem", "ds") or op.startswith(("s_load", "s_memreal")): return 8
    if ins.kind == "valu":
        vop3 = op.startswith(("v_lshl_add", "v_add3", "v_or3", "v_and_or", "v_bfe", "v_fma_", "v_max3", "v_cvt_pk", "v_mad", "v_readlane", "v_writelane", "v_perm_", "v_bitop", "v_pk_", "v_mul_lo")) or (op.startswith("v_cndmask") and len(ins.toks) == 4 and ins.toks[3] != "vcc") or ins.dpp
        return 8 if (vop3 or lit) else 4
    if op.startswith(("s_waitcnt", "s_nop", "s_cbranch", "s_branch", "s_sleep", "s_setprio", "s_movk", "s_getreg")): return 4
    return 8 if lit else 4

class Asm:
    def __init__(self):
        self.lines = []
        self.autopad = 0
        self.since = 0
        self.npad = 0
        self.hist = []
        self.nlab = 0
        self.nops = 0
    def raw(self, s):
        self.lines.append(s)
    def label(self, name):
        self.lines.append(name + ":")
    def newlab(self, p="L"):
        self.nlab += 1
        return "%s_%d" % (p, self.nlab)
    def __call__(self, text):
        for t in text.split("\n"):
            t = t.strip()
            if not t: continue
            if t.endswith(":") or t.startswith((".", ";")):
                self.lines.append(t); continue
            ins = Ins(t)
            if self.autopad and self.since >= self.autopad and self.hist:
                self.pad()
            self.since += est_size(ins)
            dist = 0; req = 0
            for p in reversed(self.hist):
                req = max(req, need(p, ins) - dist)
                dist += p.states
                if dist >= 10: break
            if req > 0:
                nop = Ins("s_nop %d" % (req - 1))
                self.lines.append("    " + nop.text); self.hist.append(nop); self.nops += 1
            self.lines.append("    " + t); self.hist.append(ins)
            if ins.op in ("s_branch", "s_endpgm", "s_setpc_b64"):
                self.hist = []
            self.hist = self.hist[-12:]
    def pad(self):
        self.lines.append("L_pad%d:" % self.npad)
        self.npad += 1
        p = Ins("s_cbranch_execz L_pad%d" % self.npad)
        self.lines.append("    " + p.text); self.hist.append(p)
        self.since = 4
    def text(self):
        return "\n".join(self.lines) + "\n"
```

```python
import sys, struct
from asmlib import Asm

NAME = "adaLN_cond__sliding_block_cached__dense_activation_silu__decode"
KNAME = NAME + "_kernel"

L_WQ = 0
L_K = 16384
L_V = L_K + 65536
L_MOD = L_V + 49152
L_S = L_V + 65536
C_PROG, C_MOD, C_A, C_K, C_B, C_C, C_D, C_DIFF, C_ALPHA, C_O, C_X = 0, 4, 8, 12, 16, 20, 24, 28, 32, 36, 40
S_ALPHA = 128
S_WM = 256
S_WL = 320
S_C = 512
S_H = 3072
S_Q = 3712
S_P = 4992
S_O = 7296
S_U = 7936
S_X = 8576
LDS_BYTES = 163840
W_E = 0
W_MOD = 0x2000
W_Q = 0x20000
W_ST = 0x40000
W_W = 0x48000
W_U = 0x68000
W_F = 0xA0000
W_O = 0x100000
W_DUAL = 0x200000
W_STAMP = 0x300000
WS_SIZE = 0x400000

PF_CHUNK = 512
L2E = 1.4426950408889634
TO_V = 30000
TO_L = 600000
N_ALT = 24

def f2u(x):
    return "0x%08x" % struct.unpack("<I", struct.pack("<f", x))[0]

class Gen:
    def __init__(self, W=24, debug=False, warm=256, forcediff=False, sleepv=0, sleepl=0, kill='', prio=3,
                 hdebug=False, calib=0, prew=True, th_h=40, th_q=80, pb=16, fd=2, stamps=None, sdet=False, qb=True, Wa=None, ksplit=64, Wf=None, xpoll=None, preq=True, qfl='sc1', hfl='sc1', nsh=1, nsq=2, dh=16, dq=16, prex=True, clk=False, lfl='sc1', pfl='', tmode='np', tth=0, rth=136, Ww=None, mg=True, kfirst=True, Wz=None, vsplit=48, tlb=False, Wn=None, etouch='sc1', rot=(2, 8)):
        self.a = Asm()
        self.W = W
        self.debug = debug or hdebug
        self.warm = warm
        self.forcediff = forcediff
        self.sleepv = sleepv; self.sleepl = sleepl; self.kill = kill; self.prio = prio
        self.hdebug = hdebug; self.calib = calib; self.prew = prew
        self.th_h = th_h; self.th_q = th_q; self.pb = pb; self.fd = fd; self.stamps = stamps; self.sdet = sdet; self.qb = qb
        self.Wa = Wa or W; self.ksplit = ksplit; self.Wf = Wf or self.Wa; self.xpoll = xpoll; self.preq = preq; self.qfl = qfl; self.hfl = hfl
        self.nsh = nsh; self.nsq = nsq; self.dh = dh; self.dq = dq; self.prex = prex; self.clk = clk; self.lfl = lfl; self.pfl = pfl; self.tmode = tmode; self.tth = tth; self.rth = rth; self.Ww = Ww; self.mg = mg; self.kfirst = kfirst; self.Wz = Wz; self.vsplit = vsplit; self.tlb = tlb; self.Wn = Wn; self.etouch = etouch; self.rot = rot

    def sstamp(self, i):
        if self.debug and self.sdet:
            self.a("s_memrealtime s[%d:%d]" % (64 + 2 * i, 65 + 2 * i))

    def rounds(self, slot):
        if self.debug and self.sdet == 3:
            self.a("s_add_u32 s%d, s35, 1" % (64 + 2 * slot))

    def stamp(self, i):
        if self.sdet in (3, 4) and i in (1, 2, 3) and not getattr(self, 'inld', False): return
        if self.clk and self.debug:
            if i in (1, 9, 14): return
            if i in (0, 8, 15): self.a("s_memtime s[%d:%d]" % (64 + 2 * {0: 1, 8: 9, 15: 14}[i], 65 + 2 * {0: 1, 8: 9, 15: 14}[i]))
        if self.sdet in (1, 2) and i in (10, 11, 12, 13, 14): return
        if self.debug and (self.stamps is None or i == 0 or i in self.stamps):
            self.a("s_memrealtime s[%d:%d]" % (64 + 2 * i, 65 + 2 * i))

    def execm(self, m16):
        v = m16 | (m16 << 16)
        self.a("s_mov_b32 exec_lo, 0x%08x\ns_mov_b32 exec_hi, 0x%08x" % (v, v))

    def execall(self):
        self.a("s_mov_b64 exec, -1")

    def smask(self, s, m16):
        v = m16 | (m16 << 16)
        self.a("s_mov_b32 s%d, 0x%08x\ns_mov_b32 s%d, 0x%08x" % (s, v, s + 1, v))

    def lwait(self, cnt, needv, cache=None, vt="v9", vls="v15", st="s42", hook=None):
        a = self.a
        ok = a.newlab("Lok"); sp = a.newlab("Lsp")
        s = cache or st
        if cache:
            a("s_cmp_ge_i32 %s, %s" % (cache, needv))
            a("s_cbranch_scc1 %s" % ok)
        a("s_mov_b32 s35, 0")
        a.label(sp)
        a("ds_read_b32 %s, %s offset:%d" % (vt, vls, cnt))
        a("s_waitcnt lgkmcnt(0)")
        a("v_readfirstlane_b32 %s, %s" % (s, vt))
        a("s_add_u32 s35, s35, 1")
        a("s_cmp_ge_i32 %s, %s" % (s, needv))
        a("s_cbranch_scc1 %s" % ok)
        if self.sleepl: a("s_sleep %d" % self.sleepl)
        if hook:
            a("s_cmp_lg_u32 s35, 256")
            a("s_cbranch_scc1 %s_n" % sp)
            hook()
            a.label("%s_n" % sp)
        a("s_cmp_lt_u32 s35, %d" % TO_L)
        a("s_cbranch_scc1 %s" % sp)
        a("s_endpgm")
        a.label(ok)

    def lsignal(self, cnt):
        a = self.a
        a("s_mov_b64 exec, 1")
        a("ds_add_u32 v15, v16 offset:%d" % cnt)
        a("s_mov_b64 exec, -1")

    def gather(self, loads, acc="v9", fl="sc1", alt=(), tag="s31", tmask=0xff, mid=None):
        a = self.a
        tr = a.newlab("Ltry"); ok = a.newlab("Lok")
        a("s_mov_b32 s35, 0")
        a.label(tr)
        n = len(loads)
        for (r, va, so, imm) in loads:
            a("buffer_load_dwordx4 v[%d:%d], %s, s[36:39], %s offen offset:%d %s" % (r, r + 3, va, so, imm, fl))
        for i, (r, va, so, imm) in enumerate(loads):
            a("s_waitcnt vmcnt(%d)" % (n - 1 - i))
            for k in (0, 2):
                a("v_xor_b32 v%d, %s, v%d" % (r + k, tag, r + k))
            if i == 0:
                a("v_or_b32 %s, v%d, v%d" % (acc, r, r + 2))
            else:
                a("v_or3_b32 %s, v%d, v%d, %s" % (acc, r, r + 2, acc))
            if mid and mid[0] == i: mid[1]()
        a("v_and_b32 v8, 0x%x, %s" % (tmask, acc))
        a("v_cmp_ne_u32 vcc, 0, v8")
        a("s_cbranch_vccz %s" % ok)
        if self.sleepv: a("s_sleep %d" % self.sleepv)
        a("s_add_u32 s35, s35, 1")
        if alt:
            a("s_cmp_lt_u32 s35, %d" % N_ALT)
            a("s_cbranch_scc1 %s" % tr)
            for so in alt:
                a("s_or_b32 %s, %s, 0x%x" % (so, so, W_DUAL))
        a("s_cmp_lt_u32 s35, %d" % TO_V)
        a("s_cbranch_scc1 %s" % tr)
        a("s_endpgm")
        a.label(ok)

    def mgather(self, loads, m0=4):
        a = self.a
        ap = a.autopad; a.autopad = 0
        if self.warm: a.pad()
        tr = a.newlab("Ltry"); ok = a.newlab("Lok")
        n = len(loads)
        for i in range(n):
            a("s_mov_b64 s[%d:%d], -1" % (m0 + 2 * i, m0 + 2 * i + 1))
        a("s_mov_b32 s35, 0")
        a.label(tr)
        for i, (r, va, so, imm) in enumerate(loads):
            a("s_mov_b64 exec, s[%d:%d]" % (m0 + 2 * i, m0 + 2 * i + 1))
            a("buffer_load_dwordx4 v[%d:%d], %s, s[36:39], %s offen offset:%d sc1" % (r, r + 3, va, so, imm))
        for i, (r, va, so, imm) in enumerate(loads):
            a("s_mov_b64 exec, s[%d:%d]" % (m0 + 2 * i, m0 + 2 * i + 1))
            a("s_waitcnt vmcnt(%d)" % (n - 1 - i))
            a("v_xor_b32 v%d, s31, v%d" % (r, r))
            a("v_xor_b32 v%d, s31, v%d" % (r + 2, r + 2))
            a("v_or_b32 v8, v%d, v%d" % (r, r + 2))
            a("v_cmp_ne_u32_sdwa s[%d:%d], v8, v159 src0_sel:BYTE_0 src1_sel:DWORD" % (m0 + 2 * i, m0 + 2 * i + 1))
        a("s_or_b64 vcc, s[%d:%d], s[%d:%d]" % (m0, m0 + 1, m0 + 2, m0 + 3))
        for i in range(2, n):
            a("s_or_b64 vcc, vcc, s[%d:%d]" % (m0 + 2 * i, m0 + 2 * i + 1))
        a("s_cbranch_scc0 %s" % ok)
        a("s_add_u32 s35, s35, 1")
        a("s_cmp_lt_u32 s35, %d" % TO_V)
        a("s_cbranch_scc1 %s" % tr)
        a("s_endpgm")
        a.label(ok)
        a("s_mov_b64 exec, -1")
        if self.warm: a.pad()
        a.autopad = ap

    def pgather(self, sets, loads, done, delay, alt=(), tag="s31", tmask=0xff, onalt=None, pre=None):
        a = self.a
        n = len(loads); ns = len(sets)
        tr = a.newlab("Ltry"); fin = a.newlab("Lfin")
        oks = [a.newlab("Lok") for _ in sets]
        def issue(b):
            for i, (va, so, imm) in enumerate(loads):
                a("buffer_load_dwordx4 v[%d:%d], %s, s[36:39], %s offen offset:%d sc1" % (b + 4 * i, b + 4 * i + 3, va, so, imm))
        a("s_mov_b32 s35, 0")
        for k, b in enumerate(sets[:-1]):
            issue(b)
            if delay: a("s_sleep %d" % delay)
        if pre:
            pre()
            a("s_mov_b32 s35, 0")
        a.label(tr)
        for k, b in enumerate(sets):
            issue(sets[(k - 1) % ns])
            for i in range(n):
                r = b + 4 * i
                a("s_waitcnt vmcnt(%d)" % (n * ns - 1 - i))
                for q in (0, 2):
                    a("v_xor_b32 v%d, %s, v%d" % (r + q, tag, r + q))
                if i == 0:
                    a("v_or_b32 v9, v%d, v%d" % (r, r + 2))
                else:
                    a("v_or3_b32 v9, v%d, v%d, v9" % (r, r + 2))
            a("v_and_b32 v8, 0x%x, v9" % tmask)
            a("v_cmp_ne_u32 vcc, 0, v8")
            a("s_cbranch_vccz %s" % oks[k])
        a("s_add_u32 s35, s35, 1")
        if alt:
            a("s_cmp_lg_u32 s35, %d" % N_ALT)
            a("s_cbranch_scc1 %s_n" % tr)
            for so in alt:
                a("s_or_b32 %s, %s, 0x%x" % (so, so, W_DUAL))
            if onalt: onalt()
            a.label("%s_n" % tr)
        a("s_cmp_lt_u32 s35, %d" % TO_V)
        a("s_cbranch_scc1 %s" % tr)
        a("s_endpgm")
        for k in reversed(range(ns)):
            a.label(oks[k])
            done(sets[k])
            if k: a("s_branch %s" % fin)
        a.label(fin)

    def tred(self, r, dst):
        a = self.a
        a("v_permlane32_swap_b32 v%d, v%d" % (r, r + 2))
        a("v_permlane32_swap_b32 v%d, v%d" % (r + 1, r + 3))
        a("v_add_f32 v%d, v%d, v%d" % (r, r, r + 2))
        a("v_add_f32 v%d, v%d, v%d" % (r + 1, r + 1, r + 3))
        a("v_permlane16_swap_b32 v%d, v%d" % (r, r + 1))
        a("v_add_f32 %s, v%d, v%d" % (dst, r, r + 1))

    def tred2(self, rs, dsts):
        a = self.a
        for r in rs:
            a("v_permlane32_swap_b32 v%d, v%d" % (r, r + 2))
            a("v_permlane32_swap_b32 v%d, v%d" % (r + 1, r + 3))
        for r in rs:
            a("v_add_f32 v%d, v%d, v%d" % (r, r, r + 2))
            a("v_add_f32 v%d, v%d, v%d" % (r + 1, r + 1, r + 3))
        for r in rs:
            a("v_permlane16_swap_b32 v%d, v%d" % (r, r + 1))
        for r, d in zip(rs, dsts):
            a("v_add_f32 %s, v%d, v%d" % (d, r, r + 1))

    def allred_hi(self, x, t, op):
        a = self.a
        a("v_mov_b32 %s, %s" % (t, x))
        a("v_permlane16_swap_b32 %s, %s" % (x, t))
        a("%s %s, %s, %s" % (op, x, x, t))
        a("v_mov_b32 %s, %s" % (t, x))
        a("v_permlane32_swap_b32 %s, %s" % (x, t))
        a("%s %s, %s, %s" % (op, x, x, t))

    def dpp(self, op, x, ctl):
        self.a("%s_dpp %s, %s, %s %s row_mask:0xf bank_mask:0xf" % (op, x, x, x, ctl))

    def rbf(self, x, t="v8"):
        self.a("v_cvt_pk_bf16_f32 %s, %s, %s" % (t, x, x))
        self.a("v_lshlrev_b32 %s, 16, %s" % (x, t))

    def tag4(self, r, vt="v17"):
        for k in (0, 2):
            self.a("v_and_or_b32 v%d, v%d, s34, %s" % (r + k, r + k, vt))

    def st(self, r, va, so, fl, x=4):
        self.a("buffer_store_dwordx%d v[%d:%d], %s, s[36:39], %s offen %s" % (x, r, r + x - 1, va, so, fl))

    def touch(self, r, va, so):
        self.a("buffer_load_dwordx4 v[%d:%d], %s, s[36:39], %s offen %s" % (r, r + 3, va, so, self.pfl))

    def store_dual(self, r, va, so):
        self.st(r, va, so, "")
        self.a("s_or_b32 %s, %s, 0x%x" % (so, so, W_DUAL))
        self.st(r, va, so, "sc1")

    def store_local(self, r, va, so, x=4):
        a = self.a
        l1 = a.newlab("Lst"); l2 = a.newlab("Lst")
        a("s_cmp_eq_u32 s41, 0")
        a("s_cbranch_scc1 %s" % l1)
        self.st(r, va, so, "sc1", x)
        a("s_branch %s" % l2)
        a.label(l1)
        self.st(r, va, so, "", x)
        a.label(l2)

    def tr64(self, dst, va, base):
        for t in range(4):
            for h in range(2):
                r = dst + 4 * t + 2 * h
                self.a("ds_read_b64_tr_b16 v[%d:%d], %s offset:%d" % (r, r + 1, va, base + 4096 * t + 2048 * h))

    def tr128(self, dst, base, ts, va=13):
        for i, t in enumerate(ts):
            for ct in range(2):
                for h in range(2):
                    r = dst + 8 * i + 4 * ct + 2 * h
                    self.a("ds_read_b64_tr_b16 v[%d:%d], v%d offset:%d" % (r, r + 1, va + ct, base + 8192 * t + 4096 * h))

    def mfma(self, d, A, B, first):
        c = "0" if first else "v[%d:%d]" % (d, d + 3)
        self.a("v_mfma_f32_16x16x32_bf16 v[%d:%d], v[%d:%d], v[%d:%d], %s" % (d, d + 3, A, A + 3, B, B + 3, c))

    def finish(self):
        if self.debug:
            self.a("s_branch L_dump")
        else:
            self.a("s_endpgm")

    def build(self):
        a = self.a
        a.raw("; @launch grid=(256,1,1) block=(384,1,1) lds=%d" % LDS_BYTES)
        a.raw('.amdgcn_target "amdgcn-amd-amdhsa--gfx950"')
        a.raw(".text\n.globl %s\n.p2align 8\n.type %s,@function" % (KNAME, KNAME))
        a.label(KNAME)
        self.prologue()
        self.loader()
        self.others()
        a.autopad = self.warm
        self.compute()
        self.wo_stage()
        self.ffn_stage()
        self.loader2()
        a.autopad = 0
        if self.warm:
            a.label("L_pad%d" % a.npad)
            a("s_branch L_warmed")
        self.aux()
        if self.debug:
            self.dump()
        a.label("L_end")
        a("s_endpgm")
        a.label("L_codeend")
        a.raw('.section .rodata,"a"\n.p2align 6\n.amdhsa_kernel %s' % KNAME)
        a.raw("  .amdhsa_next_free_vgpr 216\n  .amdhsa_next_free_sgpr 102\n  .amdhsa_accum_offset 216")
        a.raw("  .amdhsa_group_segment_fixed_size 0\n  .amdhsa_kernarg_size 104\n  .amdhsa_user_sgpr_count 2")
        a.raw("  .amdhsa_user_sgpr_kernarg_segment_ptr 1\n  .amdhsa_system_sgpr_workgroup_id_x 1\n  .amdhsa_float_denorm_mode_32 3\n.end_amdhsa_kernel")
        return a.text()

    def roles(self):
        a = self.a
        lab = a.newlab("Lrole")
        a("s_and_b32 s54, s33, 3")
        a("s_lshr_b32 s44, s33, 2")
        a("s_lshl_b32 s42, s32, 2")
        a("s_add_u32 s53, s42, s44")
        a("s_mov_b32 s55, 0")
        a("s_cmp_lt_u32 s33, 16")
        a("s_cbranch_scc1 %s" % lab)
        a("s_mov_b32 s55, 1")
        a("s_sub_u32 s53, s53, 4")
        a("s_cmp_lt_u32 s32, 4")
        a("s_cbranch_scc1 %s" % lab)
        a("s_mul_i32 s42, s32, 3")
        a("s_add_u32 s53, s42, s44")
        a("s_cmp_lt_u32 s33, 28")
        a("s_cselect_b32 s55, 1, 2")
        a.label(lab)

    def prologue(self):
        a = self.a
        self.stamp(0)
        a("s_load_dwordx16 s[4:19], s[0:1], 0")
        a("s_load_dwordx8 s[20:27], s[0:1], 64")
        a("s_load_dwordx2 s[28:29], s[0:1], 96")
        a("v_lshrrev_b32 v1, 6, v0")
        a("s_cmp_ge_u32 s2, 256")
        a("s_cbranch_scc1 L_end")
        a("v_and_b32 v0, 63, v0")
        a("v_readfirstlane_b32 s3, v1")
        a("s_and_b32 s32, s2, 7")
        a("s_lshr_b32 s33, s2, 3")
        a("s_lshl_b32 s43, s32, 3")
        a("s_add_u32 s42, s43, s33")
        a("s_add_u32 s43, s43, s42")
        a("s_add_u32 s42, s42, 0x70")
        a("s_cmp_lt_u32 s33, 24")
        a("s_cselect_b32 s52, s42, -1")
        a("s_cmp_lt_u32 s33, 16")
        a("s_cselect_b32 s52, s43, s52")
        a("v_mov_b32 v15, %d" % L_S)
        a("s_cmp_eq_u32 s3, 4")
        a("s_cbranch_scc1 L_loader")
        a("s_barrier")
        a("s_cmp_eq_u32 s3, 5")
        a("s_cbranch_scc0 L_nopf")
        a("s_getpc_b64 s[42:43]")
        a.label("L_pc")
        a("s_lshl_b32 s44, s33, 9")
        a("v_lshl_add_u32 v1, v0, 4, s44")
        a("v_min_u32 v1, L_codeend-L_pc-16, v1")
        a("s_mov_b32 exec_hi, 0")
        a("global_load_dwordx4 v[40:43], v1, s[42:43]")
        a("s_mov_b64 exec, -1")
        a("s_branch L_others")
        a.label("L_nopf")
        a("v_lshlrev_b32 v1, 5, v0")
        a("v_and_b32 v1, 0x400, v1")
        a("v_and_b32 v2, 31, v0")
        a("v_lshl_add_u32 v1, v2, 3, v1")
        a("s_and_b32 s42, s52, 3")
        a("v_lshl_add_u32 v1, s42, 8, v1")
        a("s_waitcnt lgkmcnt(0)")
        a("global_load_dwordx2 v[24:25], v1, s[20:21]")
        a("s_branch L_others")

    def others(self):
        a = self.a
        a.label("L_others")
        a("s_waitcnt lgkmcnt(0)")
        a("s_load_dword s30, s[28:29], 0")
        if self.debug:
            for i in range(1, 16):
                if not (self.clk and i == 1): a("s_mov_b32 s%d, 0" % (64 + 2 * i))
        a("s_mov_b32 s36, s28\ns_mov_b32 s37, s29\ns_mov_b32 s38, %d\ns_mov_b32 s39, 0x20000" % WS_SIZE)
        a("s_mov_b32 s34, 0xffffff00")
        a("v_mov_b32 v16, 1")
        self.roles()
        a("s_cmp_eq_u32 s3, 5")
        a("s_cbranch_scc1 L_aux")

    def segloop(self, name, W):
        a = self.a
        slot = (W - 1) % 8
        a.label(name)
        for k in range(8):
            a("s_waitcnt vmcnt(%d)" % (W - 1))
            if k == slot:
                self.publish()
            a("buffer_load_dwordx4 v%d, s[56:59], s44 offen nt lds" % (16 + k % 4))
            a("s_add_u32 m0, m0, s49")
            a("s_add_u32 s44, s44, s47")
            a("s_and_b32 s44, s44, s48")
        a("s_sub_u32 s45, s45, 1")
        a("s_cbranch_scc0 %s" % name)
        a("s_setpc_b64 s[50:51]")

    def seg(self, n, z=False):
        self.a("s_mov_b32 s45, %d" % (n // 8 - 1))
        self.a("s_call_b64 s[50:51], %s" % ("L_segz" if z else "L_seg"))

    def publish(self):
        a = self.a
        a("s_mov_b64 exec, 1")
        a("v_add_u32 v14, 8, v14")
        a("ds_write_b32 v15, v14 offset:%d" % C_PROG)
        a("s_mov_b64 exec, -1")

    def drain(self):
        k = (((self.Wz or self.W) - 1) // 8) * 8
        while k >= 0:
            self.a("s_waitcnt vmcnt(%d)" % k)
            self.publish()
            k -= 8

    def srd(self, r, p, n):
        self.a("s_mov_b32 s%d, s%d\ns_mov_b32 s%d, s%d\ns_mov_b32 s%d, %d\ns_mov_b32 s%d, 0x20000" % (r, p, r + 1, p + 1, r + 2, n, r + 3))

    def loader(self):
        a = self.a
        self.inld = True
        W = self.W
        a.label("L_loader")
        a("s_setprio %d" % self.prio)
        a("v_lshl_add_u32 v1, v0, 2, v15")
        a("v_mov_b32 v2, 0")
        a("s_mov_b64 exec, 0xffff")
        a("ds_write_b32 v1, v2")
        a("s_mov_b64 exec, -1")
        a("v_lshrrev_b32 v4, 3, v0")
        a("v_and_b32 v5, 7, v0")
        a("v_and_b32 v6, 6, v4")
        a("v_xor_b32 v5, v5, v6")
        a("v_lshlrev_b32 v5, 4, v5")
        a("v_mul_u32_u24 v16, 6144, v4")
        a("v_add_u32 v16, v16, v5")
        a("v_mov_b32 v17, v16\nv_mov_b32 v18, v16\nv_mov_b32 v19, v16")
        p0 = -(((W - 1) // 8) * 8) - 8
        a("s_and_b32 s42, s52, 3")
        a("s_mul_i32 s42, s42, %d" % (128 * 6144))
        a("s_lshr_b32 s43, s52, 2")
        a("s_lshl_b32 s43, s43, 7")
        a("s_add_u32 s44, s42, s43")
        a("s_movk_i32 s49, 0x400")
        a("s_mov_b32 s48, -1")
        a("s_mov_b32 s47, %d" % (8 * 6144))
        a("s_mov_b32 m0, %d" % L_MOD)
        a("s_mov_b32 s58, %d" % (512 * 3072 * 2))
        a("s_mov_b32 s59, 0x20000")
        a("s_cmp_lt_i32 s52, 0")
        a("s_cselect_b32 s42, %d, %d" % (p0 + 16, p0))
        a("v_mov_b32 v14, s42")
        if self.sdet == 5: self.sstamp(12)
        a("s_waitcnt lgkmcnt(0)")
        if self.sdet == 5: self.sstamp(13)
        a("s_barrier")
        if self.sdet == 5: self.sstamp(11)
        a("s_mov_b32 s56, s22\ns_mov_b32 s57, s23")
        a("s_cbranch_scc1 L_nomod")
        self.seg(16)
        a.label("L_nomod")
        if self.debug:
            for i in range(1, 16):
                if not (self.sdet == 5 and i in (11, 12, 13)): a("s_mov_b32 s%d, 0" % (64 + 2 * i))
        if self.sdet == 5: self.sstamp(10)
        a("v_lshl_add_u32 v16, v4, 13, v5")
        a("s_mov_b32 s56, s10\ns_mov_b32 s57, s11\ns_mov_b32 s58, %d" % (512 * 4096 * 2))
        a("v_mov_b32 v17, v16\nv_mov_b32 v18, v16\nv_mov_b32 v19, v16")
        a("s_lshr_b32 s42, s33, 3")
        a("s_lshl_b32 s42, s42, 20")
        a("s_and_b32 s43, s33, 7")
        a("s_lshl_b32 s43, s43, 7")
        a("s_add_u32 s42, s42, s43")
        a("s_lshl_b32 s43, s32, 10")
        a("s_add_u32 s44, s42, s43")
        a("s_mov_b32 s47, 0x10000")
        a("s_mov_b32 m0, %d" % L_WQ)
        self.seg(16)
        self.stamp(1)
        a("v_lshrrev_b32 v1, 4, v0")
        a("v_and_b32 v2, 15, v0")
        a("v_xor_b32 v3, v2, v1")
        a("v_lshlrev_b32 v3, 4, v3")
        a("v_lshl_add_u32 v16, v1, 8, v3")
        for k in (1, 2, 3):
            a("v_xor_b32 v%d, %d, v16" % (16 + k, k << 6))
        a("s_lshr_b32 s42, s33, 4")
        a("s_lshl_b32 s42, s42, 3")
        a("s_add_u32 s42, s42, s32")
        a("s_lshl_b32 s42, s42, 7")
        a("s_and_b32 s43, s33, 15")
        a("s_add_u32 s42, s42, s43")
        a("s_add_u32 s42, s42, 0x70")
        a("s_lshl_b32 s46, s42, 16")
        a("s_add_u32 s56, s6, s46\ns_addc_u32 s57, s7, 0\ns_mov_b32 s58, 0x10000")
        ma, mb = self.rot
        a("s_mul_i32 s42, s33, %d" % ma)
        a("s_mul_i32 s43, s32, %d" % mb)
        a("s_add_u32 s42, s42, s43")
        a("s_lshl_b32 s42, s42, 10")
        a("s_mov_b32 s48, 0xffff")
        a("s_and_b32 s44, s42, s48")
        a("s_mov_b32 s47, s49")
        if self.sdet == 5:
            for q in range(4):
                self.sstamp(6 + q)
                self.seg(16)
        else:
            self.seg(64)
        self.stamp(2)
        a("v_lshlrev_b32 v3, 1, v1")
        a("v_xor_b32 v3, v2, v3")
        a("v_lshlrev_b32 v3, 4, v3")
        a("v_lshl_add_u32 v16, v1, 8, v3")
        a("v_xor_b32 v17, 0x80, v16")
        a("v_mov_b32 v18, v16\nv_mov_b32 v19, v17")
        a("s_add_u32 s56, s8, s46\ns_addc_u32 s57, s9, 0")
        self.seg(self.vsplit)
        self.roles_ld()
        a("v_lshl_add_u32 v24, v1, 10, v3")
        a("v_xor_b32 v25, 0x80, v24")
        Wz = self.Wz or W
        sw = ((Wz - 1) // 8 - (W - 1) // 8) * 8
        if sw: a("v_subrev_u32 v14, %d, v14" % sw)
        a("s_cmp_lt_i32 s52, 0")
        a("s_cbranch_scc1 L_vtail")
        if 'c' not in self.kill: self.lwait(C_MOD, "4")
        a.label("L_vtail")
        self.seg(64 - self.vsplit, z=bool(self.Wz))
        self.stamp(3)
        a("s_branch L_loader2")
        self.segloop("L_seg", W)
        self.inld = False

    def roles_ld(self):
        a = self.a
        a("s_mov_b32 s60, s44")
        self.roles()
        a("s_mov_b32 s44, s60")

    def loader2(self):
        a = self.a
        self.inld = True
        if self.Wz: self.segloop("L_segz", self.Wz)
        a.label("L_loader2")
        a("s_cmp_eq_u32 s55, 0")
        a("s_cbranch_scc0 L_ld_notwo")
        self.srd(56, 12, 4096 * 512 * 2)
        a("s_lshl_b32 s42, s53, 17")
        a("s_lshl_b32 s43, s54, 8")
        a("s_add_u32 s44, s42, s43")
        a("s_mov_b32 m0, %d" % L_K)
        if not self.kill: self.lwait(C_K, "4")
        left = (((self.Wz or self.W) - 1) // 8 + 1) * 8
        def burst(n, srd=56):
            lab = a.newlab("Lseg")
            a("s_mov_b32 s45, %d" % (n // 2 - 1))
            a.label(lab)
            for v in (24, 25):
                a("buffer_load_dwordx4 v%d, s[%d:%d], s44 offen nt lds" % (v, srd, srd + 3))
                a("s_add_u32 m0, m0, s49")
                a("s_add_u32 s44, s44, 4096")
            a("s_sub_u32 s45, s45, 1")
            a("s_cbranch_scc0 %s" % lab)
        issued = self.pb
        burst(self.pb)
        while left > 0:
            left -= 8
            a("s_waitcnt vmcnt(%d)" % (left + issued))
            self.publish()
            if issued < 32:
                n = 8 if left > 0 else 32 - issued
                burst(n); issued += n
        a("s_waitcnt vmcnt(0)")
        a("v_mov_b32 v14, 184")
        self.publish()
        self.stamp(4)
        self.finish()
        a.label("L_ld_notwo")
        self.drain()
        self.stamp(4)
        a("s_cmp_eq_u32 s55, 1")
        a("s_cbranch_scc0 L_ld_end")
        a("v_mul_u32_u24 v26, 3584, v4")
        a("v_add_u32 v26, v26, v5")
        self.srd(56, 16, 512 * 1792 * 2)
        self.srd(60, 18, 512 * 1792 * 2)
        a("s_mul_i32 s42, s54, %d" % (128 * 3584))
        a("s_lshl_b32 s43, s53, 7")
        a("s_add_u32 s44, s42, s43")
        a("s_mov_b32 m0, %d" % L_K)
        if not self.kill: self.lwait((C_K, C_O, C_X)[self.fd], "4")
        lab = a.newlab("Lseg")
        a("s_mov_b32 s45, 15")
        a.label(lab)
        a("buffer_load_dwordx4 v26, s[56:59], s44 offen nt lds")
        a("s_add_u32 m0, m0, s49")
        a("s_add_u32 s44, s44, %d" % (8 * 3584))
        a("s_sub_u32 s45, s45, 1")
        a("s_cbranch_scc0 %s" % lab)
        a("s_lshl_b32 s42, s53, 16")
        a("s_lshl_b32 s43, s54, 8")
        a("s_add_u32 s44, s42, s43")
        burst(16, 60)
        a("s_waitcnt vmcnt(0)")
        a("v_mov_b32 v14, 184")
        self.publish()
        self.stamp(5)
        a.label("L_ld_end")
        self.finish()
        self.inld = False

    def aux(self):
        a = self.a
        a.label("L_aux")
        if 'a' in self.kill: self.finish()
        if self.etouch is not None:
            a("v_and_b32 v1, 7, v0")
            a("v_lshlrev_b32 v1, 5, v1")
            a("v_bfe_u32 v2, v0, 3, 1")
            a("v_lshl_add_u32 v2, v2, 13, v1")
            a("s_lshl_b32 s42, s32, 14")
            a("s_and_b32 s43, s33, 7")
            a("s_lshl_b32 s43, s43, 10")
            a("s_add_u32 s42, s42, s43")
            a("s_lshr_b32 s43, s33, 3")
            a("s_lshl_b32 s43, s43, 8")
            a("s_add_u32 s42, s42, s43")
            a("s_add_u32 s42, s42, %d" % W_Q)
            a("v_lshlrev_b32 v1, 5, v0")
            a("s_lshl_b32 s43, s52, 9")
            a("s_add_u32 s43, s43, %d" % W_MOD)
            a("s_cmp_lt_i32 s52, 0")
            a("s_cselect_b32 s43, 0x%x, s43" % WS_SIZE)
            a("s_mov_b64 exec, 0xffff")
            a("buffer_load_dwordx4 v[44:47], v1, s[36:39], s43 offen %s" % self.etouch)
            a("buffer_load_dwordx4 v[48:51], v2, s[36:39], s42 offen %s" % self.etouch)
            a("s_mov_b64 exec, -1")
        if self.tlb:
            a("s_lshr_b32 s42, s33, 4")
            a("s_lshl_b32 s42, s42, 3")
            a("s_add_u32 s42, s42, s32")
            a("s_lshl_b32 s42, s42, 23")
            a("s_and_b32 s43, s33, 15")
            a("s_lshl_b32 s43, s43, 16")
            a("s_add_u32 s42, s42, s43")
            a("s_add_u32 s42, s42, %d" % (7 << 20))
            a("v_mov_b32 v1, s42")
            a("s_lshl_b32 s42, s53, 17")
            a("v_mov_b32 v2, s42")
            a("s_lshl_b32 s42, s53, 16")
            a("s_cmp_eq_u32 s55, 1")
            a("s_cselect_b32 s42, s42, 0")
            a("v_mov_b32 v3, s42")
            a("s_mul_i32 s42, s54, %d" % (128 * 3584))
            a("v_mov_b32 v4, s42")
            a("v_mov_b32 v5, 0")
            a("s_mov_b64 exec, 1")
            a("global_load_dword v44, v1, s[6:7] nt")
            a("global_load_dword v45, v1, s[8:9] nt")
            a("global_load_dword v46, v2, s[12:13] nt")
            a("global_load_dword v47, v3, s[18:19] nt")
            a("global_load_dword v48, v4, s[16:17] nt")
            a("global_load_dword v49, v5, s[24:25] nt")
            a("s_mov_b64 exec, -1")
        a("s_waitcnt vmcnt(0)")
        self.stamp(1)
        if self.warm:
            a("s_mov_b64 exec, 0")
            a("s_branch L_pad0")
            a.label("L_warmed")
            a("s_mov_b64 exec, -1")
        self.stamp(2)
        if self.xpoll:
            R, nl, fl, wait = self.xpoll
            a("v_lshlrev_b32 v1, 4, v0")
            a("s_mov_b32 s44, %d" % R)
            a("s_mov_b32 s45, 0x2000")
            a("s_mov_b32 s46, 0x3000")
            a.label("L_xp")
            for i in range(nl):
                a("buffer_load_dwordx4 v[%d:%d], v1, s[36:39], s%d offen offset:%d %s" % (20 + 4 * i, 23 + 4 * i, 45 + i // 4, 1024 * (i & 3), fl))
            a("s_waitcnt vmcnt(%d)" % wait)
            a("s_sub_u32 s44, s44, 1")
            a("s_cmp_lg_u32 s44, 0")
            a("s_cbranch_scc1 L_xp")
            a("s_waitcnt vmcnt(0)")
            self.stamp(3)
        if self.kill: self.finish()
        if self.tmode:
            a("v_and_b32 v3, 3, v0")
            a("v_lshlrev_b32 v3, 5, v3")
            a("v_bfe_u32 v4, v0, 2, 2")
            a("v_lshrrev_b32 v5, 4, v0")
            a("v_lshl_add_u32 v10, v4, 12, v3")
            a("v_lshl_add_u32 v10, v5, 14, v10")
            a("s_lshl_b32 s46, s32, 9")
            a("s_and_b32 s43, s33, 3")
            a("s_lshl_b32 s43, s43, 3")
            a("s_add_u32 s46, s46, s43")
            a("s_bfe_u32 s43, s33, 0x20002")
            a("s_lshl_b32 s43, s43, 1")
            a("s_add_u32 s46, s46, s43")
            a("s_lshr_b32 s43, s33, 4")
            a("s_add_u32 s46, s46, s43")
            a("s_lshl_b32 s46, s46, 7")
            a("s_add_u32 s46, s46, %d" % W_O)
            a("v_and_b32 v11, 7, v0")
            a("v_lshlrev_b32 v11, 5, v11")
            a("v_lshrrev_b32 v5, 3, v0")
            a("v_lshl_add_u32 v11, v5, 10, v11")
            a("s_lshl_b32 s47, s53, 13")
            a("s_lshl_b32 s43, s54, 8")
            a("s_add_u32 s47, s47, s43")
            a("s_add_u32 s47, s47, %d" % W_U)
            a("s_cmp_eq_u32 s55, 1")
            a("s_cselect_b32 s47, s47, 0x%x" % WS_SIZE)
            a("v_and_b32 v12, 7, v0")
            a("v_lshlrev_b32 v12, 5, v12")
            a("s_lshl_b32 s48, s53, 8")
            a("s_add_u32 s48, s48, %d" % W_ST)
            a("s_cmp_eq_u32 s55, 0")
            a("s_cselect_b32 s48, s48, 0x%x" % WS_SIZE)
            def touch(fl):
                a("buffer_load_dwordx4 v[24:27], v10, s[36:39], s46 offen %s" % fl)
                a("buffer_load_dwordx4 v[28:31], v11, s[36:39], s47 offen %s" % fl)
                a("buffer_load_dwordx4 v[32:35], v12, s[36:39], s48 offen %s" % fl)
            if self.tth: self.lwait(C_PROG, "%d" % self.tth)
            for fl in {'n': ("sc1",), 'np': ("nt", "sc1"), 'npp': ("nt", ""), 'nn': ("nt", "nt")}[self.tmode]:
                touch(fl)
                a("s_waitcnt vmcnt(0)")
            if self.rth:
                self.lwait(C_PROG, "%d" % self.rth)
                touch("sc1")
        if self.prex:
            a("s_waitcnt lgkmcnt(0)")
            a("s_add_u32 s31, s30, 1")
            a("s_and_b32 s31, s31, 0xff")
            a("s_xor_b32 s42, s31, 0x55")
            a("v_mov_b32 v4, s42\nv_mov_b32 v6, s42")
            a("s_cmp_eq_u32 s55, 0")
            a("s_cbranch_scc1 L_aux_wo")
            a("s_cmp_eq_u32 s55, 1")
            a("s_cbranch_scc0 L_aux_end")
            a("v_lshrrev_b32 v2, 3, v0")
            a("v_mul_u32_u24 v2, 3584, v2")
            a("v_and_b32 v3, 7, v0")
            a("v_lshl_add_u32 v2, v3, 4, v2")
            a("s_mul_i32 s43, s54, %d" % (4 * 7168))
            a("s_lshl_b32 s44, s53, 7")
            a("s_add_u32 s43, s43, s44")
            a("s_add_u32 s43, s43, %d" % W_F)
            self.lwait(C_O, "4")
            self.st(4, "v2", "s43", "sc1")
            self.finish()
            a.label("L_aux_wo")
            a("v_lshrrev_b32 v2, 4, v0")
            a("v_and_b32 v3, 15, v0")
            a("v_lshlrev_b32 v3, 4, v3")
            a("v_lshl_add_u32 v2, v2, 13, v3")
            a("s_lshl_b32 s44, s54, 15")
            a("s_lshl_b32 s45, s53, 8")
            a("s_add_u32 s44, s44, s45")
            a("s_add_u32 s44, s44, %d" % W_W)
            self.st(4, "v2", "s44", "sc1")
        self.stamp(3)
        a.label("L_aux_end")
        self.finish()

    def modgather(self, parts, dsts, rbs, ns=1):
        a = self.a
        a("s_lshl_b32 s42, %s, 1" % rbs)
        a("s_lshr_b32 s43, s3, 1")
        a("s_add_u32 s42, s42, s43")
        a("s_lshl_b32 s48, s42, 11")
        a("s_and_b32 s43, s3, 1")
        a("s_lshl_b32 s43, s43, 8")
        a("s_add_u32 s48, s48, s43")
        loads = []
        for i, p in enumerate(parts):
            if p < 4:
                a("s_lshr_b32 s43, s42, 2")
                a("s_add_u32 s43, s43, %d" % (2 * p))
            else:
                a("s_lshr_b32 s43, s42, 1")
                a("s_add_u32 s43, s43, %d" % (4 * (p - 4)))
            a("s_cmp_eq_u32 s43, s32")
            a("s_cselect_b32 s43, 0, 1")
            a("s_lshl_b32 s43, s43, 21")
            a("s_add_u32 s43, s43, s48")
            a("s_add_u32 s%d, s43, %d" % (44 + i, W_MOD + p * 16384))
            loads.append((96 + 4 * i, "v7", "s%d" % (44 + i), 0))
        if ns > 1:
            self.pgather([184 + 8 * k for k in range(ns)], [l[1:] for l in loads], lambda b: self.tred2([b, b + 4], dsts), self.dh, alt=[l[2] for l in loads])
        else:
            self.gather(loads, alt=[l[2] for l in loads], fl=self.hfl)
            self.tred2([96 + 4 * i for i in range(len(dsts))], dsts)
        for d in dsts:
            self.rbf(d)

    def compute(self):
        a = self.a
        a.label("L_compute")
        if 'c' in self.kill: self.finish()
        a("v_lshrrev_b32 v1, 4, v0")
        a("v_bfe_u32 v2, v0, 3, 1")
        a("v_and_b32 v3, 7, v0")
        a("v_lshl_add_u32 v4, v1, 3, v3")
        a("v_lshlrev_b32 v4, 5, v4")
        a("v_lshl_add_u32 v4, v2, 10, v4")
        a("global_load_dwordx4 v[64:67], v4, s[4:5]")
        a("global_load_dwordx4 v[68:71], v4, s[4:5] offset:16")
        a("v_lshl_add_u32 v5, v3, 2, v1")
        a("s_lshl_b32 s42, s3, 5")
        a("v_add_u32 v5, s42, v5")
        a("v_lshl_add_u32 v5, v2, 9, v5")
        a("v_lshlrev_b32 v148, 1, v5")
        a("s_lshr_b32 s50, s33, 3")
        a("s_lshl_b32 s42, s50, 8")
        a("v_add_u32 v5, s42, v148")
        a("global_load_ushort v18, v5, s[4:5]")
        a("s_lshl_b32 s42, s54, 8")
        a("v_add_u32 v148, s42, v148")
        a("global_load_ushort v19, v148, s[4:5]")
        a("v_lshlrev_b32 v150, 4, v1")
        a("v_and_b32 v4, 1, v0")
        a("v_lshl_add_u32 v151, v4, 6, v150")
        a("v_mul_u32_u24 v4, 320, v4")
        a("v_add3_u32 v10, v4, v150, v15")
        a("v_bfe_u32 v4, v0, 2, 2")
        a("v_lshl_add_u32 v5, v1, 2, v4")
        a("v_bfe_u32 v6, v0, 1, 1")
        a("v_and_b32 v8, 1, v0")
        a("v_lshlrev_b32 v8, 3, v8")
        a("s_lshl_b32 s42, s3, 1")
        a("v_add_u32 v9, s42, v6")
        a("v_and_b32 v12, 6, v5")
        a("v_xor_b32 v9, v9, v12")
        a("v_lshl_add_u32 v9, v9, 4, v8")
        a("v_lshl_add_u32 v12, v5, 7, v9")
        a("s_lshl_b32 s42, s3, 2")
        a("v_add_u32 v9, s42, v6")
        a("v_and_b32 v13, 7, v5")
        a("v_lshlrev_b32 v13, 1, v13")
        a("v_xor_b32 v9, v9, v13")
        a("v_lshl_add_u32 v9, v9, 4, v8")
        a("v_lshl_add_u32 v13, v5, 8, v9")
        a("v_xor_b32 v14, 32, v13")
        a("s_mov_b32 s40, 0")
        a("s_cmp_lt_i32 s52, 0")
        a("s_cbranch_scc1 L_c_nomod")
        a("v_lshrrev_b32 v4, 5, v0")
        a("v_mul_u32_u24 v4, 320, v4")
        a("v_bfe_u32 v5, v0, 3, 2")
        a("v_lshl_add_u32 v4, v5, 6, v4")
        a("v_and_b32 v5, 3, v0")
        a("v_lshl_add_u32 v4, v5, 4, v4")
        a("v_bfe_u32 v5, v0, 2, 1")
        a("v_lshl_add_u32 v4, v5, 3, v4")
        a("s_mul_i32 s42, s3, 640")
        a("s_add_u32 s43, s42, %d" % (L_S + S_C))
        a("v_add_u32 v4, s43, v4")
        a("v_add_u32 v5, s42, v10")
        a("s_waitcnt vmcnt(4)")
        a("v_lshlrev_b32 v26, 16, v24")
        a("v_and_b32 v27, 0xffff0000, v24")
        a("v_lshlrev_b32 v28, 16, v25")
        a("v_and_b32 v29, 0xffff0000, v25")
        for k in range(4):
            a("v_mul_f32 v%d, %s, v%d" % (32 + k, f2u(-L2E), 26 + k))
        for k in range(4):
            a("v_exp_f32 v%d, v%d" % (32 + k, 32 + k))
        for k in range(4):
            a("v_add_f32 v%d, 1.0, v%d" % (32 + k, 32 + k))
        for k in range(4):
            a("v_rcp_f32 v%d, v%d" % (32 + k, 32 + k))
        for k in range(4):
            a("v_mul_f32 v%d, v%d, v%d" % (26 + k, 26 + k, 32 + k))
        a("v_cvt_pk_bf16_f32 v24, v26, v27")
        a("v_cvt_pk_bf16_f32 v25, v28, v29")
        a("ds_write_b64 v4, v[24:25]")
        for t in range(4):
            a("ds_read_b128 v[%d:%d], v5 offset:%d" % (48 + 4 * t, 51 + 4 * t, S_C + 64 * t))
        a("v_add_u32 v6, %d, v12" % L_MOD)
        a("s_lshl_b32 s44, s52, 9")
        a("s_lshl_b32 s43, s3, 7")
        a("s_add_u32 s44, s44, s43")
        a("s_add_u32 s44, s44, %d" % W_MOD)
        self.lwait(C_PROG, "16", cache="s40")
        self.stamp(1)
        self.tr64(32, "v6", 0)
        a("s_add_u32 s31, s30, 1")
        a("s_and_b32 s31, s31, 0xff")
        a("v_mov_b32 v17, s31")
        for t in range(4):
            a("s_waitcnt lgkmcnt(%d)" % (0 if self.debug else 6 - 2 * t))
            self.mfma(128, 32 + 4 * t, 48 + 4 * t, t == 0)
        self.lsignal(C_MOD)
        self.tag4(128)
        self.execm(0x0003)
        self.store_dual(128, "v151", "s44")
        self.execall()
        self.stamp(2)
        a("s_waitcnt vmcnt(2)")
        a("s_branch L_c_ln")
        a.label("L_c_nomod")
        a("s_waitcnt vmcnt(0) lgkmcnt(0)")
        a("s_add_u32 s31, s30, 1")
        a("s_and_b32 s31, s31, 0xff")
        a("v_mov_b32 v17, s31")
        a.label("L_c_ln")
        for k in range(8):
            a("v_lshlrev_b32 v%d, 16, v%d" % (72 + 2 * k, 64 + k))
            a("v_and_b32 v%d, 0xffff0000, v%d" % (73 + 2 * k, 64 + k))
        a("v_add_f32 v4, v72, v73")
        for k in range(2, 16):
            a("v_add_f32 v4, v4, v%d" % (72 + k))
        for c in ("quad_perm:[1,0,3,2]", "quad_perm:[2,3,0,1]", "row_half_mirror"):
            self.dpp("v_add_f32", "v4", c)
        self.allred_hi("v4", "v5", "v_add_f32")
        a("v_mul_f32 v4, %s, v4" % f2u(1.0 / 512))
        for k in range(16):
            a("v_sub_f32 v%d, v%d, v4" % (72 + k, 72 + k))
        a("v_mul_f32 v6, v72, v72")
        for k in range(1, 16):
            a("v_fmac_f32 v6, v%d, v%d" % (72 + k, 72 + k))
        for c in ("quad_perm:[1,0,3,2]", "quad_perm:[2,3,0,1]", "row_half_mirror"):
            self.dpp("v_add_f32", "v6", c)
        self.allred_hi("v6", "v5", "v_add_f32")
        a("v_mul_f32 v6, %s, v6" % f2u(1.0 / 512))
        self.rbf("v4"); self.rbf("v6")
        a("v_add_f32 v6, %s, v6" % f2u(1e-5))
        self.rbf("v6")
        a("v_sqrt_f32 v6, v6")
        self.rbf("v6")
        a("v_rcp_f32 v6, v6")
        a("v_lshlrev_b32 v18, 16, v18")
        a("v_lshlrev_b32 v19, 16, v19")
        a("v_sub_f32 v18, v18, v4")
        self.rbf("v18")
        a("v_mul_f32 v18, v18, v6")
        self.rbf("v18")
        a("v_and_b32 v4, 3, v0")
        a("v_lshlrev_b32 v4, 4, v4")
        a("v_bfe_u32 v5, v0, 2, 1")
        a("v_lshl_add_u32 v7, v2, 6, v4")
        a("v_lshl_add_u32 v7, v5, 7, v7")
        a("v_lshl_add_u32 v7, v1, 9, v7")
        a("v_lshl_add_u32 v4, v5, 3, v4")
        a("v_lshl_add_u32 v4, v1, 1, v4")
        a("s_lshl_b32 s42, s3, 6")
        a("s_add_u32 s42, s42, %d" % L_S)
        a("v_add_u32 v4, s42, v4")
        a("v_mul_u32_u24 v6, 320, v2")
        a("v_add_u32 v11, v6, v4")
        a("v_mul_u32_u24 v6, 272, v2")
        a("v_add_u32 v149, v6, v4")
        a("v_lshlrev_b32 v152, 4, v0")
        a("v_and_b32 v4, 1, v0")
        a("v_lshl_add_u32 v159, v4, 13, v150")
        a("s_lshl_b32 s42, s32, 14")
        a("s_and_b32 s43, s33, 7")
        a("s_lshl_b32 s43, s43, 10")
        a("s_add_u32 s42, s42, s43")
        a("s_lshl_b32 s43, s50, 8")
        a("s_add_u32 s42, s42, s43")
        a("s_lshl_b32 s43, s3, 6")
        a("s_add_u32 s42, s42, s43")
        a("s_add_u32 s51, s42, %d" % W_Q)
        a("s_getreg_b32 s42, hwreg(HW_REG_XCC_ID, 0, 4)")
        if self.forcediff:
            a("s_and_b32 s42, s33, 1")
        a("s_lshl_b32 s42, s42, 4")
        a("s_and_b32 s43, s31, 15")
        a("s_or_b32 s101, s42, s43")
        a("v_mov_b32 v153, s101")
        self.lwait(C_PROG, "32", cache="s40")
        self.tr64(32, "v12", L_WQ)
        if 'h' in self.kill: self.finish()
        if self.th_h > 32:
            self.lwait(C_PROG, "%d" % self.th_h, cache="s40")
        if self.sdet == 2: self.sstamp(10)
        self.modgather([0, 1], ["v4", "v5"], "s50", self.nsh)
        if self.sdet == 2 and self.debug: a("s_add_u32 s92, s35, 1")
        self.stamp(3)
        a("v_add_f32 v5, 1.0, v5")
        self.rbf("v5")
        a("v_mul_f32 v5, v18, v5")
        self.rbf("v5")
        a("v_add_f32 v5, v5, v4")
        a("v_cvt_pk_bf16_f32 v5, v5, v5")
        a("ds_write_b16 v11, v5 offset:%d" % S_H)
        self.lsignal(C_A)
        self.lwait(C_A, "4")
        for t in range(4):
            a("ds_read_b128 v[%d:%d], v10 offset:%d" % (48 + 4 * t, 51 + 4 * t, S_H + 64 * t))
        for t in range(4):
            a("s_waitcnt lgkmcnt(%d)" % (3 - t))
            self.mfma(140, 32 + 4 * t, 48 + 4 * t, t == 0)
        self.tag4(140, "v153")
        self.execm(0x0003)
        self.st(140, "v159", "s51", "")
        self.execall()
        a("s_or_b32 s51, s51, 0x%x" % W_DUAL)
        self.stamp(4)
        if 'q' in self.kill: self.finish()
        a("v_and_b32 v4, 3, v0")
        a("v_lshl_add_u32 v4, v4, 14, v150")
        a("v_bfe_u32 v5, v0, 2, 1")
        a("v_lshl_add_u32 v154, v5, 6, v4")
        a("s_lshl_b32 s42, s32, 4")
        a("s_add_u32 s42, s42, s3")
        a("s_lshl_b32 s42, s42, 5")
        a("s_and_b32 s43, s33, 3")
        a("s_lshl_b32 s43, s43, 3")
        a("s_add_u32 s42, s42, s43")
        a("s_bfe_u32 s43, s33, 0x20002")
        a("s_lshl_b32 s43, s43, 1")
        a("s_add_u32 s42, s42, s43")
        a("s_lshr_b32 s43, s33, 4")
        a("s_add_u32 s42, s42, s43")
        a("s_lshl_b32 s42, s42, 7")
        a("s_add_u32 s96, s42, %d" % W_O)
        a("v_and_b32 v4, 1, v0")
        a("v_bfe_u32 v5, v0, 1, 1")
        a("v_lshl_add_u32 v5, v5, 6, v150")
        a("s_cmp_eq_u32 s55, 0")
        a("s_cbranch_scc0 L_c_nowo")
        a("v_lshl_add_u32 v155, v4, 7, v5")
        a("s_lshl_b32 s42, s54, 2")
        a("s_add_u32 s42, s42, s3")
        a("s_lshl_b32 s42, s42, 5")
        a("s_add_u32 s42, s42, s53")
        a("s_lshl_b32 s42, s42, 8")
        a("s_add_u32 s97, s42, %d" % W_W)
        a("s_lshl_b32 s42, s53, 2")
        a("s_add_u32 s42, s42, s3")
        a("s_lshl_b32 s42, s42, 12")
        a("s_add_u32 s99, s42, %d" % W_O)
        a("v_lshlrev_b32 v4, 5, v1")
        a("v_lshl_add_u32 v156, v2, 7, v4")
        a("s_lshl_b32 s42, s53, 8")
        a("s_add_u32 s100, s42, %d" % W_ST)
        a.label("L_c_nowo")
        a("s_cmp_eq_u32 s55, 1")
        a("s_cbranch_scc0 L_c_noffn")
        a("v_mul_u32_u24 v4, 3584, v4")
        a("v_add_u32 v156, v4, v5")
        a("s_lshl_b32 s42, s54, 2")
        a("s_add_u32 s42, s42, s3")
        a("s_lshl_b32 s43, s42, 13")
        a("s_add_u32 s99, s43, %d" % W_W)
        a("s_mul_i32 s42, s42, 7168")
        a("s_lshl_b32 s43, s53, 7")
        a("s_add_u32 s42, s42, s43")
        a("s_add_u32 s98, s42, %d" % W_F)
        a("v_and_b32 v4, 15, v0")
        a("v_mul_u32_u24 v5, 272, v4")
        a("v_add3_u32 v157, v5, v150, v15")
        a("v_lshlrev_b32 v5, 1, v2")
        a("v_sub_u32 v4, v4, v5")
        a("v_and_b32 v5, 3, v4")
        a("v_lshl_add_u32 v5, v5, 6, v150")
        a("v_lshrrev_b32 v4, 2, v4")
        a("v_lshl_add_u32 v155, v4, 10, v5")
        a("s_lshl_b32 s42, s53, 2")
        a("s_add_u32 s42, s42, s3")
        a("s_lshl_b32 s42, s42, 11")
        a("s_add_u32 s100, s42, %d" % W_U)
        a("s_lshl_b32 s43, s54, 8")
        a("s_add_u32 s97, s100, s43")
        a("v_bfe_u32 v4, v0, 2, 1")
        a("v_mul_u32_u24 v4, 320, v4")
        a("v_and_b32 v5, 3, v0")
        a("v_lshl_add_u32 v4, v5, 4, v4")
        a("v_lshl_add_u32 v4, v1, 1, v4")
        a("s_lshr_b32 s42, s3, 1")
        a("s_lshl_b32 s42, s42, 6")
        a("s_and_b32 s43, s3, 1")
        a("s_lshl_b32 s43, s43, 3")
        a("s_add_u32 s42, s42, s43")
        a("s_add_u32 s42, s42, %d" % (L_S + S_U))
        a("v_add_u32 v158, s42, v4")
        a.label("L_c_noffn")
        if 'p' in self.kill: self.finish()
        a("v_and_b32 v4, 15, v0")
        a("v_xor_b32 v5, v4, v1")
        a("v_lshlrev_b32 v5, 4, v5")
        a("v_lshl_add_u32 v5, v4, 8, v5")
        a("s_lshl_b32 s42, s3, 14")
        a("s_add_u32 s42, s42, %d" % L_K)
        a("v_add_u32 v24, s42, v5")
        for t in (1, 2, 3):
            a("v_xor_b32 v%d, %d, v24" % (24 + t, 64 * t))
        a("s_lshl_b32 s42, s32, 1")
        a("s_lshr_b32 s43, s33, 4")
        a("s_add_u32 s42, s42, s43")
        a("s_lshl_b32 s42, s42, 13")
        a("s_lshl_b32 s43, s3, 11")
        a("s_add_u32 s42, s42, s43")
        a("s_add_u32 s44, s42, %d" % W_Q)
        self.smask(56, 0x00f0); self.smask(58, 0x0f00); self.smask(60, 0xf000); self.smask(62, 0x000c)
        a("v_and_b32 v4, 15, v0")
        a("v_lshl_add_u32 v4, v4, 2, v1")
        a("v_lshlrev_b32 v4, 1, v4")
        a("s_mul_i32 s42, s3, 320")
        a("s_add_u32 s42, s42, %d" % (L_S + S_Q))
        a("v_add_u32 v28, s42, v4")
        a("v_and_b32 v4, 3, v0")
        a("v_mul_u32_u24 v5, 320, v4")
        a("v_add3_u32 v29, v5, v150, v15")
        a("v_mul_u32_u24 v5, 576, v4")
        a("v_add3_u32 v30, v5, v150, v15")
        a("v_bfe_u32 v8, v0, 2, 1")
        a("v_lshl_add_u32 v5, v8, 3, v30")
        a("v_lshl_add_u32 v5, v2, 6, v5")
        a("s_lshl_b32 s42, s3, 7")
        a("v_add_u32 v31, s42, v5")
        a("v_lshl_add_u32 v144, v4, 4, v15")
        a("s_lshl_b32 s42, s3, 2")
        a("v_add_u32 v145, s42, v144")
        a("v_lshlrev_b32 v147, 8, v4")
        a("v_add_u32 v153, v152, v15")
        a("v_add_u32 v146, s42, v153")
        if self.th_q:
            self.lwait(C_PROG, "%d" % self.th_q, cache="s40")
        if self.sdet == 2: self.sstamp(12)
        def pubq():
            self.execm(0x0003)
            self.st(140, "v159", "s51", "sc1")
            self.execall()
        def qdone(b):
            for k in range(0, 8, 2):
                a("v_and_b32 v%d, s34, v%d" % (b + k, b + k))
            self.tred2([b, b + 4], ["v4", "v5"])
        def kread():
            a("s_lshl_b32 s43, s3, 4")
            a("s_add_u32 s43, s43, 48")
            self.lwait(C_PROG, "s43", cache="s40")
            self.stamp(5)
            for tau in range(4):
                for t in range(4):
                    r = 64 + 16 * tau + 4 * t
                    a("ds_read_b128 v[%d:%d], v%d offset:%d" % (r, r + 3, 24 + t, 4096 * tau))
        self.pgather([160 + 8 * k for k in range(self.nsq)], [("v152", "s44", 0), ("v152", "s44", 1024)], qdone, self.dq,
                     alt=["s44"], tag="s101", tmask=0x0f, onalt=pubq, pre=(kread if self.kfirst else None))
        if self.sdet == 2 and self.debug: a("s_add_u32 s90, s35, 1")
        self.stamp(6)
        if 'g' in self.kill: self.finish()
        a("v_cvt_pk_bf16_f32 v4, v4, v5")
        a("ds_write_b16 v28, v4")
        a("ds_write_b16_d16_hi v28, v4 offset:128")
        a("v_and_b32 v9, 0xf0, v9")
        a("v_cmp_ne_u32 vcc, 0, v9")
        a("s_cbranch_vccz L_c_same")
        a("ds_write_b32 v15, v16 offset:%d" % C_DIFF)
        a.label("L_c_same")
        self.lsignal(C_B)
        if not self.kfirst: kread()
        if self.sdet == 1: self.sstamp(10)
        self.lwait(C_B, "4", hook=pubq)
        if self.sdet == 1: self.sstamp(11)
        for t in range(4):
            a("ds_read_b128 v[%d:%d], v29 offset:%d" % (48 + 4 * t, 51 + 4 * t, S_Q + 64 * t))
        a("ds_read_b32 v6, v15 offset:%d" % C_DIFF)
        a("ds_read_b32 v9, v15 offset:%d" % C_PROG)
        a("v_add_u32 v24, %d, v13" % L_V)
        a("v_add_u32 v25, %d, v14" % L_V)
        for t in range(4):
            a("s_waitcnt lgkmcnt(%d)" % (5 - t))
            for tau in range(4):
                self.mfma((128, 132, 136, 32)[tau], 64 + 16 * tau + 4 * t, 48 + 4 * t, t == 0)
        a("s_waitcnt lgkmcnt(0)")
        self.lsignal(C_K)
        a("v_readfirstlane_b32 s41, v6")
        a("v_readfirstlane_b32 s40, v9")
        a("s_cmp_eq_u32 s41, 0")
        a("s_cbranch_scc1 L_c_same2")
        pubq()
        a.label("L_c_same2")
        a("s_cmp_ge_i32 s40, 160")
        a("s_cselect_b32 s49, 1, 0")
        a("s_cbranch_scc0 L_c_vlate")
        self.tr128(64, 0, range(8), va=24)
        a.label("L_c_vlate")
        for tau in (1, 2, 3):
            for r in range(4):
                a("v_cndmask_b32 v%d, v%d, v%d, s[%d:%d]" % (128 + r, 128 + r, (128, 132, 136, 32)[tau] + r, 54 + 2 * tau, 55 + 2 * tau))
        def unpack(dlo, src):
            a("v_lshlrev_b32 v%d, 16, v%d" % (dlo, src))
            a("v_and_b32 v%d, 0xffff0000, v%d" % (dlo + 1, src))
        a("v_cvt_pk_bf16_f32 v4, v128, v129")
        a("v_cvt_pk_bf16_f32 v5, v130, v131")
        unpack(128, 4); unpack(130, 5)
        for r in range(4):
            a("v_mul_f32 v%d, %s, v%d" % (128 + r, f2u(128 ** -0.5), 128 + r))
        a("v_cvt_pk_bf16_f32 v4, v128, v129")
        a("v_cvt_pk_bf16_f32 v5, v130, v131")
        unpack(128, 4); unpack(130, 5)
        a("v_max3_f32 v4, v128, v129, v130")
        a("v_max_f32 v4, v4, v131")
        a("s_mov_b32 s42, %s" % f2u(L2E))
        self.dpp("v_max_f32", "v4", "row_ror:4")
        self.dpp("v_max_f32", "v4", "row_ror:8")
        self.allred_hi("v4", "v5", "v_max_f32")
        if self.sdet == 1: self.sstamp(12)
        a("v_mul_f32 v5, %s, v4" % f2u(-L2E))
        for r in range(4):
            a("v_fma_f32 v%d, v%d, s42, v5" % (128 + r, 128 + r))
        for r in range(4):
            a("v_exp_f32 v%d, v%d" % (128 + r, 128 + r))
        a("s_mov_b64 exec, 15")
        a("ds_write_b32 v145, v4 offset:%d" % S_WM)
        a("s_mov_b64 exec, -1")
        a("v_cvt_pk_bf16_f32 v4, v128, v129")
        a("v_cvt_pk_bf16_f32 v5, v130, v131")
        a("ds_write_b64 v31, v[4:5] offset:%d" % S_P)
        unpack(128, 4); unpack(130, 5)
        a("v_add_f32 v128, v128, v129")
        a("v_add_f32 v130, v130, v131")
        a("v_add_f32 v6, v128, v130")
        a("ds_write_b32 v146, v6 offset:%d" % S_C)
        self.lsignal(C_D)
        if self.sdet == 1: self.sstamp(14)
        self.lwait(C_D, "4")
        self.stamp(7)
        a("ds_read_b128 v[136:139], v144 offset:%d" % S_WM)
        for c in range(8):
            a("ds_read_b128 v[%d:%d], v30 offset:%d" % (184 + 4 * c, 187 + 4 * c, S_P + 64 * c))
        a("ds_read_b128 v[140:143], v153 offset:%d" % S_C)
        a("s_lshl_b32 s43, s32, 10")
        a("s_lshl_b32 s44, s33, 3")
        a("s_add_u32 s43, s43, s44")
        a("s_add_u32 s44, s43, %d" % W_ST)
        a("s_mov_b32 s43, %s" % f2u(L2E))
        def pv(c, base):
            for ct in range(2):
                self.mfma(32 + 8 * (c >> 1) + 4 * ct, base + 4 * ct, 184 + 4 * c, c % 2 == 0)
        def factors():
            a("v_max3_f32 v132, v136, v137, v138")
            a("v_max_f32 v132, v132, v139")
            a("v_mul_f32 v4, %s, v132" % f2u(-L2E))
            for i in range(4):
                a("v_fma_f32 v%d, v%d, s43, v4" % (20 + i, 136 + i))
            for i in range(4):
                a("v_exp_f32 v%d, v%d" % (20 + i, 20 + i))
        def comb(w):
            for r in range(4):
                a("v_cndmask_b32 v%d, v%d, v%d, s[56:57]" % (32 + 8 * w + r, 32 + 8 * w + r, 36 + 8 * w + r))
            for r in range(4):
                if w == 0: a("v_mul_f32 v%d, v%d, v20" % (128 + r, 32 + r))
                else: a("v_fmac_f32 v%d, v%d, v%d" % (128 + r, 32 + 8 * w + r, 20 + w))
        def stats():
            a("v_mul_f32 v133, v140, v20")
            for i in (1, 2, 3):
                a("v_fmac_f32 v133, v%d, v%d" % (140 + i, 20 + i))
            self.dpp("v_add_f32", "v133", "row_ror:4")
            self.dpp("v_add_f32", "v133", "row_ror:8")
            self.allred_hi("v133", "v5", "v_add_f32")
            a("v_and_or_b32 v132, v132, s34, v17")
            lab = a.newlab("Lnost")
            a("s_cmp_eq_u32 s3, 0")
            a("s_cbranch_scc0 %s" % lab)
            a("s_mov_b64 exec, 15")
            self.store_local(132, "v147", "s44", x=2)
            self.execall()
            a.label(lab)
        a("s_cmp_eq_u32 s49, 1")
        a("s_cbranch_scc0 L_c_pvslow")
        a("s_waitcnt lgkmcnt(7)")
        pv(0, 64); pv(1, 72)
        factors()
        a("s_waitcnt lgkmcnt(5)")
        pv(2, 80); pv(3, 88)
        a("s_waitcnt lgkmcnt(3)")
        pv(4, 96)
        comb(0)
        pv(5, 104)
        a("s_waitcnt lgkmcnt(0)")
        pv(6, 112)
        comb(1)
        pv(7, 120)
        stats()
        comb(2)
        a("s_branch L_c_pvdone")
        a.label("L_c_pvslow")
        a("s_waitcnt lgkmcnt(0)")
        factors()
        stats()
        for batch in ([0, 1, 2, 3], [4, 5], [6], [7]):
            self.lwait(C_PROG, "%d" % (104 + 8 * batch[-1]), cache="s40")
            self.tr128(64, 0, batch, va=24)
            if batch[0] == 4: comb(0); comb(1)
            if batch[0] == 7: comb(2)
            n = len(batch)
            for i, c in enumerate(batch):
                a("s_waitcnt lgkmcnt(%d)" % min(15, 4 * (n - 1 - i)))
                pv(c, 64 + 8 * i)
        a.label("L_c_pvdone")
        self.stamp(8)
        comb(3)
        self.tag4(128)
        self.execm(0x00ff)
        self.store_local(128, "v154", "s96")
        self.lsignal(C_O)
        self.stamp(9)
        if self.sdet == 4 and self.debug:
            a("s_waitcnt vmcnt(0)")
            self.sstamp(1)
        a("s_cmp_eq_u32 s55, 1")
        a("s_cbranch_scc1 L_ffn")
        a("s_cmp_eq_u32 s55, 0")
        a("s_cbranch_scc1 L_wo")
        self.finish()

    def out2(self, d0, d1):
        for r in range(4):
            self.a("v_cndmask_b32 v%d, v%d, v%d, s[62:63]" % (d0 + r, d0 + r, d1 + r))
        self.tag4(d0)

    def wo_stage(self):
        a = self.a
        a.label("L_wo")
        a("s_mov_b32 s44, %s" % f2u(L2E))
        self.lwait(C_PROG, "192", cache="s40")
        self.tr128(64, L_K, range(4))
        self.stamp(10)
        def factors():
            a("v_max3_f32 v4, v24, v26, v28")
            a("v_max_f32 v4, v4, v30")
            self.allred_hi("v4", "v5", "v_max_f32")
            a("v_mul_f32 v4, %s, v4" % f2u(-L2E))
            for i in range(4):
                a("v_fma_f32 v%d, v%d, s44, v4" % (20 + i, 24 + 2 * i))
            for i in range(4):
                a("v_exp_f32 v%d, v%d" % (20 + i, 20 + i))
            a("v_mul_f32 v5, v20, v25")
            for i in (1, 2, 3):
                a("v_fmac_f32 v5, v%d, v%d" % (20 + i, 25 + 2 * i))
            self.allred_hi("v5", "v6", "v_add_f32")
            a("v_rcp_f32 v5, v5")
        self.gather([(24, "v156", "s100", 0), (28, "v156", "s100", 16)] + [(32 + 4 * i, "v152", "s99", 1024 * i) for i in range(4)],
                    fl=self.lfl, mid=(1, factors))
        self.rounds(1)
        self.stamp(11)
        for r in range(4):
            a("v_mul_f32 v%d, v%d, v20" % (32 + r, 32 + r))
        for i in (1, 2, 3):
            for r in range(4):
                a("v_fmac_f32 v%d, v%d, v%d" % (32 + r, 32 + 4 * i + r, 20 + i))
        self.tred(32, "v4")
        a("v_mul_f32 v4, v4, v5")
        a("v_cvt_pk_bf16_f32 v4, v4, v4")
        a("ds_write_b16 v11, v4 offset:%d" % S_O)
        a("s_waitcnt lgkmcnt(0)")
        a("s_barrier")
        for t in range(4):
            a("ds_read_b128 v[%d:%d], v10 offset:%d" % (48 + 4 * t, 51 + 4 * t, S_O + 64 * t))
        for t in range(4):
            a("s_waitcnt lgkmcnt(%d)" % (3 - t))
            self.mfma(128, 64 + 8 * t, 48 + 4 * t, t == 0)
            self.mfma(132, 68 + 8 * t, 48 + 4 * t, t == 0)
        self.out2(128, 132)
        self.execm(0x000f)
        self.st(128, "v155", "s97", "sc1")
        self.execall()
        self.stamp(12)
        self.finish()

    def ffn_stage(self):
        a = self.a
        a.label("L_ffn")
        self.modgather([2, 3, 4, 5], ["v20", "v4", "v22", "v21"], "s54")
        if self.fd == 2: self.lsignal(C_X)
        a("v_add_f32 v22, 1.0, v22")
        self.rbf("v22")
        a("ds_write_b16_d16_hi v149, v22 offset:%d" % (S_X + 2 * 272))
        a("ds_write_b16_d16_hi v149, v4 offset:%d" % (S_X + 8 * 272))
        a("v_mov_b32 v5, 0x3f80")
        a("ds_write_b16 v149, v5 offset:%d" % (S_X + 6 * 272))
        a("s_add_u32 s44, s99, 4096")
        self.smask(60, 0x0030)
        self.lwait(C_PROG, "192", cache="s40")
        self.tr64(32, "v12", L_K)
        self.tr128(64, L_K + 16384, range(2))
        self.stamp(10)
        a("v_mov_b32 v159, 0")
        (self.mgather if self.mg else self.gather)([(96 + 4 * i, "v152", "s99" if i < 4 else "s44", 1024 * (i & 3)) for i in range(8)])
        self.rounds(1)
        self.stamp(11)
        for (d, s_) in ((96, 100), (104, 108), (112, 116), (120, 124), (96, 104), (112, 120), (96, 112)):
            for r in (0, 2):
                a("v_pk_add_f32 v[%d:%d], v[%d:%d], v[%d:%d]" % (d + r, d + r + 1, d + r, d + r + 1, s_ + r, s_ + r + 1))
        self.tred(96, "v4")
        a("v_fma_f32 v23, v20, v4, v19")
        a("v_cvt_pk_bf16_f32 v5, v23, v23")
        a("v_lshlrev_b32 v23, 16, v5")
        a("ds_write_b16 v149, v5 offset:%d" % (S_X + 4 * 272))
        a("v_mul_f32 v4, v23, v22")
        a("v_cvt_pk_bf16_f32 v4, v4, v4")
        a("ds_write_b16 v149, v4 offset:%d" % S_X)
        a("s_waitcnt lgkmcnt(0)")
        a("s_barrier")
        for t in range(4):
            a("ds_read_b128 v[%d:%d], v157 offset:%d" % (48 + 4 * t, 51 + 4 * t, S_X + 64 * t))
        for t in range(4):
            a("s_waitcnt lgkmcnt(%d)" % (3 - t))
            self.mfma(128, 32 + 4 * t, 48 + 4 * t, t == 0)
            self.mfma(132, 48 + 4 * t, 48 + 4 * t, t == 0)
        for r in range(4):
            a("v_cndmask_b32 v%d, v%d, v%d, s[60:61]" % (128 + r, 128 + r, 132 + r))
        self.tag4(128)
        self.execm(0x033f)
        self.store_local(128, "v155", "s97")
        self.execall()
        self.stamp(12)
        self.gather([(96, "v152", "s100", 0), (100, "v152", "s100", 1024)], fl=self.lfl)
        self.rounds(2)
        self.stamp(13)
        self.tred2([100, 96], ["v5", "v4"])
        a("v_readlane_b32 s42, v5, 1")
        a("v_readlane_b32 s43, v5, 21")
        a("v_readlane_b32 s44, v5, 33")
        a("v_readlane_b32 s45, v5, 37")
        a("v_mov_b32_dpp v6, v4 row_ror:8 row_mask:0xf bank_mask:0xf")
        a("v_mov_b32_dpp v7, v5 row_ror:8 row_mask:0xf bank_mask:0xf")
        a("v_mov_b32 v8, s42")
        a("v_mov_b32 v9, s44")
        self.execm(0x00f0)
        a("v_mov_b32 v8, s43")
        a("v_mov_b32 v9, s45")
        self.execm(0x00ff)
        a("v_mul_f32 v9, %s, v9" % f2u(1.0 / 512))
        a("v_mul_f32 v8, %s, v8" % f2u(1.0 / 512))
        a("v_fma_f32 v8, -v9, v9, v8")
        a("v_max_f32 v8, 0, v8")
        a("v_add_f32 v8, %s, v8" % f2u(1e-5))
        a("v_rsq_f32 v8, v8")
        a("v_fma_f32 v4, -v9, v6, v4")
        a("v_fma_f32 v4, v4, v8, v7")
        a("v_mul_f32 v5, %s, v4" % f2u(-L2E))
        a("v_exp_f32 v5, v5")
        a("v_add_f32 v5, 1.0, v5")
        a("v_rcp_f32 v5, v5")
        a("v_mul_f32 v4, v4, v5")
        a("v_cvt_pk_bf16_f32 v4, v4, v4")
        a("ds_write_b16 v158, v4")
        self.execall()
        a("s_waitcnt lgkmcnt(0)")
        a("s_barrier")
        for t in range(2):
            a("ds_read_b128 v[%d:%d], v10 offset:%d" % (48 + 4 * t, 51 + 4 * t, S_U + 64 * t))
        for t in range(2):
            a("s_waitcnt lgkmcnt(%d)" % (1 - t))
            self.mfma(128, 64 + 8 * t, 48 + 4 * t, t == 0)
            self.mfma(132, 68 + 8 * t, 48 + 4 * t, t == 0)
        self.out2(128, 132)
        self.execm(0x000f)
        self.st(128, "v156", "s98", "sc1")
        self.execall()
        self.stamp(14)
        a("s_lshr_b32 s42, s53, 1")
        a("s_cmp_eq_u32 s42, s3")
        a("s_cbranch_scc0 L_ffn_end")
        a("s_and_b32 s46, s53, 1")
        a("s_mul_i32 s42, s46, 3584")
        a("s_lshl_b32 s43, s53, 7")
        a("s_sub_u32 s42, s42, s43")
        a("s_add_u32 s98, s98, s42")
        a("v_and_b32 v7, 0x1ff, v152")
        self.gather([(96, "v152", "s98", 0), (100, "v152", "s98", 1024), (104, "v152", "s98", 2048), (108, "v7", "s98", 3072)])
        self.rounds(3)
        for r in (0, 2):
            a("v_pk_add_f32 v[%d:%d], v[%d:%d], v[%d:%d]" % (96 + r, 97 + r, 96 + r, 97 + r, 100 + r, 101 + r))
        a("s_mov_b32 exec_hi, 0")
        for r in (0, 2):
            a("v_pk_add_f32 v[%d:%d], v[%d:%d], v[%d:%d]" % (104 + r, 105 + r, 104 + r, 105 + r, 108 + r, 109 + r))
        self.execall()
        for r in (0, 2):
            a("v_pk_add_f32 v[%d:%d], v[%d:%d], v[%d:%d]" % (96 + r, 97 + r, 96 + r, 97 + r, 104 + r, 105 + r))
        self.tred(96, "v4")
        self.dpp("v_add_f32", "v4", "row_ror:8")
        a("v_fma_f32 v4, v21, v4, v23")
        a("v_cvt_pk_bf16_f32 v4, v4, v4")
        ap = a.autopad; a.autopad = 0
        a("s_lshl_b32 s42, s46, 3")
        a("s_lshl_b32 s42, 0x00ff00ff, s42")
        a("s_mov_b32 exec_lo, s42\ns_mov_b32 exec_hi, s42")
        a("global_store_short v148, v4, s[24:25]")
        a("s_cmp_eq_u32 s2, 128")
        a("s_cbranch_scc0 L_ffn_end")
        a("s_add_u32 s42, s30, 1")
        a("s_mov_b64 exec, 1")
        a("v_mov_b32 v5, s42")
        a("v_mov_b32 v6, 0")
        a("buffer_store_dword v5, v6, s[36:39], 0 offen sc1")
        a.label("L_ffn_end")
        self.stamp(15)
        self.finish()
        a.autopad = ap

    def dump(self):
        a = self.a
        a.label("L_dump")
        a("s_mov_b64 exec, -1")
        a("s_waitcnt lgkmcnt(0)")
        for i in range(16):
            a("v_writelane_b32 v1, s%d, %d" % (64 + 2 * i, i))
        if self.calib:
            a("s_cmp_gt_u32 s3, 3")
            a("s_cbranch_scc1 L_nocal")
            a.label("L_cal")
            a("s_memrealtime s[42:43]")
            a("s_waitcnt lgkmcnt(0)")
            a("s_sub_u32 s42, s42, s64")
            a("s_cmp_lt_u32 s42, %d" % self.calib)
            a("s_cbranch_scc1 L_cal")
            a.label("L_nocal")
            if not self.hdebug:
                a("s_endpgm")
        if self.hdebug:
            a("s_cmp_lg_u32 s3, 0")
            a("s_cbranch_scc1 L_end")
            a("s_not_b32 s42, s64")
            a("v_writelane_b32 v1, s42, 1")
            a("v_lshlrev_b32 v2, 2, v0")
            a("s_mov_b64 exec, 0xffff")
            a("global_atomic_umax v2, v1, s[26:27]")
            a("s_endpgm")
        a("s_lshl_b32 s42, s2, 3")
        a("s_add_u32 s42, s42, s3")
        a("s_lshl_b32 s42, s42, 6")
        a("s_add_u32 s42, s42, %d" % W_STAMP)
        a("v_lshlrev_b32 v2, 2, v0")
        a("v_add_u32 v2, s42, v2")
        a("s_mov_b64 exec, 0xffff")
        a("global_store_dword v2, v1, s[28:29]")
        a("s_endpgm")

if __name__ == "__main__":
    import argparse
    ap = argparse.ArgumentParser()
    ap.add_argument("-o", default="cdna_kernels/" + NAME + ".s")
    ap.add_argument("--cfg", default="")
    args = ap.parse_args()
    g = Gen(**eval('dict(%s)' % args.cfg))
    open(args.o, "w").write(g.build())
    print("written", args.o, "nops inserted", g.a.nops, "pads", g.a.npad)
```

```python
import sys, struct
from asmlib import Asm

NAME = "adaLN_cond__sliding_block_cached__dense_activation_silu__decode"
KNAME = NAME + "_kernel"

L_WQ = 0
L_K = 16384
L_V = L_K + 65536
L_MOD = L_V + 49152
L_S = L_V + 65536
C_PROG, C_MOD, C_A, C_K, C_B, C_C, C_D, C_DIFF, C_ALPHA, C_O, C_X = 0, 4, 8, 12, 16, 20, 24, 28, 32, 36, 40
S_ALPHA = 128
S_WM = 256
S_WL = 320
S_C = 512
S_H = 3072
S_Q = 3712
S_P = 4992
S_O = 7296
S_U = 7936
S_X = 8576
LDS_BYTES = 163840
W_E = 0
W_MOD = 0x2000
W_Q = 0x20000
W_ST = 0xC8000
W_H = 0x44000
W_W = 0x48000
W_U = 0x68000
W_F = 0xA0000
W_O = 0x100000
W_DUAL = 0x200000
W_STAMP = 0x300000
WS_SIZE = 0x400000

PF_CHUNK = 512
L2E = 1.4426950408889634
TO_V = 30000
TO_L = 600000
N_ALT = 24

def f2u(x):
    return "0x%08x" % struct.unpack("<I", struct.pack("<f", x))[0]

class Gen:
    def __init__(self, W=17, debug=False, warm=1024, forcediff=False, sleepv=0, sleepl=0, kill='', prio=3,
                 hdebug=False, calib=0, prew=True, th_h=32, th_q=72, pb=16, fd=2, stamps=None, sdet=False, qb=True, Wa=None, ksplit=64, Wf=None, xpoll=None, preq=True, qfl='sc1', hfl='sc1', nsh=1, nsq=2, dh=16, dq=0, prex=True, clk=False, lfl='sc1', pfl='', tmode='np', tth=0, rth=136, Ww=None, mg=True, kfirst=True, Wz=None, vsplit=48, tlb=False, Wn=None, etouch='nt', rot=(2, 8), hint=True, hj=0, fdly=-1, adapt=None, zk=None, peer=None, cls=(20, 23, 'three'), owait=False, xearly=True, oearly=False, xnt=False, pfnt=False, epromo=False):
        self.a = Asm()
        self.cold = []
        self.W = W
        self.debug = debug or hdebug
        self.warm = warm
        self.forcediff = forcediff
        self.sleepv = sleepv; self.sleepl = sleepl; self.kill = kill; self.prio = prio
        self.hdebug = hdebug; self.calib = calib; self.prew = prew
        self.th_h = th_h; self.th_q = th_q; self.pb = pb; self.fd = fd; self.stamps = stamps; self.sdet = sdet; self.qb = qb
        self.Wa = Wa or W; self.ksplit = ksplit; self.Wf = Wf or self.Wa; self.xpoll = xpoll; self.preq = preq; self.qfl = qfl; self.hfl = hfl
        self.nsh = nsh; self.nsq = nsq; self.dh = dh; self.dq = dq; self.prex = prex; self.clk = clk; self.lfl = lfl; self.pfl = pfl; self.tmode = tmode; self.tth = tth; self.rth = rth; self.Ww = Ww; self.mg = mg; self.kfirst = kfirst; self.Wz = Wz; self.vsplit = vsplit; self.tlb = tlb; self.Wn = Wn; self.etouch = etouch; self.rot = rot; self.hint = hint; self.hj = hj; self.fdly = fdly; self.adapt = adapt; self.zk = zk; self.peer = peer; self.cls = cls; self.owait = owait; self.xearly = xearly; self.oearly = oearly; self.xnt = ' nt' if xnt else ''; self.pfnt = ' nt' if pfnt else ''; self.epromo = epromo

    def sstamp(self, i):
        if self.debug and self.sdet:
            self.a("s_memrealtime s[%d:%d]" % (64 + 2 * i, 65 + 2 * i))

    def rounds(self, slot):
        if self.debug and self.sdet == 3:
            self.a("s_add_u32 s%d, s35, 1" % (64 + 2 * slot))

    def stamp(self, i):
        if self.sdet in (3, 4) and i in (1, 2, 3) and not getattr(self, 'inld', False): return
        if self.clk and self.debug:
            if i in (1, 9, 14): return
            if i in (0, 8, 15): self.a("s_memtime s[%d:%d]" % (64 + 2 * {0: 1, 8: 9, 15: 14}[i], 65 + 2 * {0: 1, 8: 9, 15: 14}[i]))
        if self.sdet in (1, 2) and i in (10, 11, 12, 13, 14): return
        if self.debug and (self.stamps is None or i == 0 or i in self.stamps):
            self.a("s_memrealtime s[%d:%d]" % (64 + 2 * i, 65 + 2 * i))

    def execm(self, m16):
        v = m16 | (m16 << 16)
        self.a("s_mov_b32 exec_lo, 0x%08x\ns_mov_b32 exec_hi, 0x%08x" % (v, v))

    def execall(self):
        self.a("s_mov_b64 exec, -1")

    def smask(self, s, m16):
        v = m16 | (m16 << 16)
        self.a("s_mov_b32 s%d, 0x%08x\ns_mov_b32 s%d, 0x%08x" % (s, v, s + 1, v))

    def lwait(self, cnt, needv, cache=None, vt="v9", vls="v15", st="s42", hook=None):
        a = self.a
        ok = a.newlab("Lok"); sp = a.newlab("Lsp")
        s = cache or st
        if cache:
            a("s_cmp_ge_i32 %s, %s" % (cache, needv))
            a("s_cbranch_scc1 %s" % ok)
        a("s_mov_b32 s35, 0")
        a.label(sp)
        a("ds_read_b32 %s, %s offset:%d" % (vt, vls, cnt))
        a("s_waitcnt lgkmcnt(0)")
        a("v_readfirstlane_b32 %s, %s" % (s, vt))
        a("s_add_u32 s35, s35, 1")
        a("s_cmp_ge_i32 %s, %s" % (s, needv))
        a("s_cbranch_scc1 %s" % ok)
        if self.sleepl: a("s_sleep %d" % self.sleepl)
        if hook:
            a("s_cmp_lg_u32 s35, 256")
            a("s_cbranch_scc1 %s_n" % sp)
            hook()
            a.label("%s_n" % sp)
        a("s_cmp_lt_u32 s35, %d" % TO_L)
        a("s_cbranch_scc1 %s" % sp)
        a("s_endpgm")
        a.label(ok)

    def lsignal(self, cnt):
        a = self.a
        a("s_mov_b64 exec, 1")
        a("ds_add_u32 v15, v16 offset:%d" % cnt)
        a("s_mov_b64 exec, -1")

    def gather(self, loads, acc="v9", fl="sc1", alt=(), tag="s31", tmask=0xff, each=None, pre=None):
        a = self.a
        chk = a.newlab("Lchk"); ok = a.newlab("Lok")
        n = len(loads)
        def issue():
            for (r, va, so, imm) in loads:
                a("buffer_load_dwordx4 v[%d:%d], %s, s[36:39], %s offen offset:%d %s" % (r, r + 3, va, so, imm, fl))
        issue()
        if pre: pre()
        a("s_mov_b32 s35, 0")
        a.label(chk)
        for i, (r, va, so, imm) in enumerate(loads):
            a("s_waitcnt vmcnt(%d)" % (n - 1 - i))
            for k in (0, 2):
                a("v_xor_b32 v%d, %s, v%d" % (r + k, tag, r + k))
            if i == 0:
                a("v_or_b32 %s, v%d, v%d" % (acc, r, r + 2))
            else:
                a("v_or3_b32 %s, v%d, v%d, %s" % (acc, r, r + 2, acc))
            if i == n - 1:
                a("v_and_b32 v8, 0x%x, %s" % (tmask, acc))
                a("v_cmp_ne_u32 vcc, 0, v8")
            if each: each(i)
        a("s_cbranch_vccz %s" % ok)
        if self.sleepv: a("s_sleep %d" % self.sleepv)
        a("s_add_u32 s35, s35, 1")
        if alt:
            a("s_cmp_lt_u32 s35, %d" % N_ALT)
            a("s_cbranch_scc1 %s_n" % chk)
            for so in alt:
                a("s_or_b32 %s, %s, 0x%x" % (so, so, W_DUAL))
            a.label("%s_n" % chk)
        issue()
        a("s_cmp_lt_u32 s35, %d" % TO_V)
        a("s_cbranch_scc1 %s" % chk)
        a("s_endpgm")
        a.label(ok)

    def mgather(self, loads, m0=4):
        a = self.a
        ap = a.autopad; a.autopad = 0
        if self.warm: a.pad()
        tr = a.newlab("Ltry"); ok = a.newlab("Lok")
        n = len(loads)
        for i in range(n):
            a("s_mov_b64 s[%d:%d], -1" % (m0 + 2 * i, m0 + 2 * i + 1))
        a("s_mov_b32 s35, 0")
        a.label(tr)
        for i, (r, va, so, imm) in enumerate(loads):
            a("s_mov_b64 exec, s[%d:%d]" % (m0 + 2 * i, m0 + 2 * i + 1))
            a("buffer_load_dwordx4 v[%d:%d], %s, s[36:39], %s offen offset:%d sc1" % (r, r + 3, va, so, imm))
        for i, (r, va, so, imm) in enumerate(loads):
            a("s_mov_b64 exec, s[%d:%d]" % (m0 + 2 * i, m0 + 2 * i + 1))
            a("s_waitcnt vmcnt(%d)" % (n - 1 - i))
            a("v_xor_b32 v%d, s31, v%d" % (r, r))
            a("v_xor_b32 v%d, s31, v%d" % (r + 2, r + 2))
            a("v_or_b32 v8, v%d, v%d" % (r, r + 2))
            a("v_cmp_ne_u32_sdwa s[%d:%d], v8, v159 src0_sel:BYTE_0 src1_sel:DWORD" % (m0 + 2 * i, m0 + 2 * i + 1))
        a("s_or_b64 vcc, s[%d:%d], s[%d:%d]" % (m0, m0 + 1, m0 + 2, m0 + 3))
        for i in range(2, n):
            a("s_or_b64 vcc, vcc, s[%d:%d]" % (m0 + 2 * i, m0 + 2 * i + 1))
        a("s_cbranch_scc0 %s" % ok)
        a("s_add_u32 s35, s35, 1")
        a("s_cmp_lt_u32 s35, %d" % TO_V)
        a("s_cbranch_scc1 %s" % tr)
        a("s_endpgm")
        a.label(ok)
        a("s_mov_b64 exec, -1")
        if self.warm: a.pad()
        a.autopad = ap

    def pgather(self, sets, loads, done, delay, alt=(), tag="s31", tmask=0xff, onalt=None, pre=None):
        a = self.a
        n = len(loads); ns = len(sets)
        tr = a.newlab("Ltry"); fin = a.newlab("Lfin")
        oks = [a.newlab("Lok") for _ in sets]
        def issue(b):
            for i, (va, so, imm) in enumerate(loads):
                a("buffer_load_dwordx4 v[%d:%d], %s, s[36:39], %s offen offset:%d sc1" % (b + 4 * i, b + 4 * i + 3, va, so, imm))
        a("s_mov_b32 s35, 0")
        for k, b in enumerate(sets[:-1]):
            issue(b)
            if delay: a("s_sleep %d" % delay)
        if pre:
            pre()
            a("s_mov_b32 s35, 0")
        a.label(tr)
        for k, b in enumerate(sets):
            issue(sets[(k - 1) % ns])
            for i in range(n):
                r = b + 4 * i
                a("s_waitcnt vmcnt(%d)" % (n * ns - 1 - i))
                for q in (0, 2):
                    a("v_xor_b32 v%d, %s, v%d" % (r + q, tag, r + q))
                if i == 0:
                    a("v_or_b32 v9, v%d, v%d" % (r, r + 2))
                else:
                    a("v_or3_b32 v9, v%d, v%d, v9" % (r, r + 2))
            a("v_and_b32 v8, 0x%x, v9" % tmask)
            a("v_cmp_ne_u32 vcc, 0, v8")
            a("s_cbranch_vccz %s" % oks[k])
        a("s_add_u32 s35, s35, 1")
        if alt:
            a("s_cmp_lg_u32 s35, %d" % N_ALT)
            a("s_cbranch_scc1 %s_n" % tr)
            for so in alt:
                a("s_or_b32 %s, %s, 0x%x" % (so, so, W_DUAL))
            if onalt: onalt()
            a.label("%s_n" % tr)
        a("s_cmp_lt_u32 s35, %d" % TO_V)
        a("s_cbranch_scc1 %s" % tr)
        a("s_endpgm")
        for k in reversed(range(ns)):
            a.label(oks[k])
            done(sets[k])
            if k: a("s_branch %s" % fin)
        a.label(fin)

    def tred(self, r, dst):
        a = self.a
        a("v_permlane32_swap_b32 v%d, v%d" % (r, r + 2))
        a("v_permlane32_swap_b32 v%d, v%d" % (r + 1, r + 3))
        a("v_add_f32 v%d, v%d, v%d" % (r, r, r + 2))
        a("v_add_f32 v%d, v%d, v%d" % (r + 1, r + 1, r + 3))
        a("v_permlane16_swap_b32 v%d, v%d" % (r, r + 1))
        a("v_add_f32 %s, v%d, v%d" % (dst, r, r + 1))

    def tred2(self, rs, dsts):
        a = self.a
        for r in rs:
            a("v_permlane32_swap_b32 v%d, v%d" % (r, r + 2))
            a("v_permlane32_swap_b32 v%d, v%d" % (r + 1, r + 3))
        for r in rs:
            a("v_add_f32 v%d, v%d, v%d" % (r, r, r + 2))
            a("v_add_f32 v%d, v%d, v%d" % (r + 1, r + 1, r + 3))
        for r in rs:
            a("v_permlane16_swap_b32 v%d, v%d" % (r, r + 1))
        for r, d in zip(rs, dsts):
            a("v_add_f32 %s, v%d, v%d" % (d, r, r + 1))

    def allred_hi(self, x, t, op):
        a = self.a
        a("v_mov_b32 %s, %s" % (t, x))
        a("v_permlane16_swap_b32 %s, %s" % (x, t))
        a("%s %s, %s, %s" % (op, x, x, t))
        a("v_mov_b32 %s, %s" % (t, x))
        a("v_permlane32_swap_b32 %s, %s" % (x, t))
        a("%s %s, %s, %s" % (op, x, x, t))

    def dpp(self, op, x, ctl):
        self.a("%s_dpp %s, %s, %s %s row_mask:0xf bank_mask:0xf" % (op, x, x, x, ctl))

    def rbf(self, x, t="v8"):
        self.a("v_cvt_pk_bf16_f32 %s, %s, %s" % (t, x, x))
        self.a("v_lshlrev_b32 %s, 16, %s" % (x, t))

    def tag4(self, r, vt="v17"):
        for k in (0, 2):
            self.a("v_and_or_b32 v%d, v%d, s34, %s" % (r + k, r + k, vt))

    def st(self, r, va, so, fl, x=4):
        self.a("buffer_store_dwordx%d v[%d:%d], %s, s[36:39], %s offen %s" % (x, r, r + x - 1, va, so, fl))

    def touch(self, r, va, so):
        self.a("buffer_load_dwordx4 v[%d:%d], %s, s[36:39], %s offen %s" % (r, r + 3, va, so, self.pfl))

    def store_dual(self, r, va, so):
        self.st(r, va, so, "")
        self.a("s_or_b32 %s, %s, 0x%x" % (so, so, W_DUAL))
        self.st(r, va, so, "sc1")

    def store_local(self, r, va, so, x=4):
        a = self.a
        l1 = a.newlab("Lst"); l2 = a.newlab("Lst")
        a("s_cmp_eq_u32 s41, 0")
        a("s_cbranch_scc0 %s" % l1)
        self.st(r, va, so, "", x)
        a.label(l2)
        self.cold.append((l1, lambda: self.st(r, va, so, "sc1", x), l2))

    def tr64(self, dst, va, base):
        for t in range(4):
            for h in range(2):
                r = dst + 4 * t + 2 * h
                self.a("ds_read_b64_tr_b16 v[%d:%d], %s offset:%d" % (r, r + 1, va, base + 4096 * t + 2048 * h))

    def tr128(self, dst, base, ts, va=13):
        for i, t in enumerate(ts):
            for ct in range(2):
                for h in range(2):
                    r = dst + 8 * i + 4 * ct + 2 * h
                    self.a("ds_read_b64_tr_b16 v[%d:%d], v%d offset:%d" % (r, r + 1, va + ct, base + 8192 * t + 4096 * h))

    def mfma(self, d, A, B, first):
        c = "0" if first else "v[%d:%d]" % (d, d + 3)
        self.a("v_mfma_f32_16x16x32_bf16 v[%d:%d], v[%d:%d], v[%d:%d], %s" % (d, d + 3, A, A + 3, B, B + 3, c))

    def finish(self):
        if self.debug:
            self.a("s_branch L_dump")
        else:
            self.a("s_endpgm")

    def build(self):
        a = self.a
        a.raw("; Fused decode block: adaLN modulation, LayerNorm, GQA sliding-window attention, output projection,")
        a.raw("; LayerNorm, SiLU FFN.  One persistent launch, one workgroup per CU, six waves:")
        a.raw("; @launch grid=(256,1,1) block=(384,1,1) lds=%d" % LDS_BYTES)
        a.raw('.amdgcn_target "amdgcn-amd-amdhsa--gfx950"')
        a.raw(".text\n.globl %s\n.p2align 8\n.type %s,@function" % (KNAME, KNAME))
        a.label(KNAME)
        self.prologue()
        self.loader()
        self.others()
        a.autopad = self.warm
        self.compute()
        self.wo_stage()
        self.ffn_stage()
        self.loader2()
        a.autopad = 0
        if self.warm:
            a.label("L_pad%d" % a.npad)
            a("s_branch L_warmed")
        self.aux()
        for l1, f, l2 in self.cold:
            a.label(l1)
            f()
            a("s_branch %s" % l2)
        if self.debug:
            self.dump()
        a.label("L_end")
        a("s_endpgm")
        a.label("L_codeend")
        a.raw('.section .rodata,"a"\n.p2align 6\n.amdhsa_kernel %s' % KNAME)
        a.raw("  .amdhsa_next_free_vgpr 216\n  .amdhsa_next_free_sgpr 102\n  .amdhsa_accum_offset 216")
        a.raw("  .amdhsa_group_segment_fixed_size 0\n  .amdhsa_kernarg_size 104\n  .amdhsa_user_sgpr_count 2")
        a.raw("  .amdhsa_user_sgpr_kernarg_segment_ptr 1\n  .amdhsa_system_sgpr_workgroup_id_x 1\n  .amdhsa_float_denorm_mode_32 3\n.end_amdhsa_kernel")
        return a.text()

    def roles(self):
        a = self.a
        lab = a.newlab("Lrole")
        a("s_and_b32 s54, s33, 3")
        a("s_lshr_b32 s44, s33, 2")
        a("s_lshl_b32 s42, s32, 2")
        a("s_add_u32 s53, s42, s44")
        a("s_mov_b32 s55, 0")
        a("s_cmp_lt_u32 s33, 16")
        a("s_cbranch_scc1 %s" % lab)
        a("s_mov_b32 s55, 1")
        a("s_sub_u32 s53, s53, 4")
        a("s_cmp_lt_u32 s32, 4")
        a("s_cbranch_scc1 %s" % lab)
        a("s_mul_i32 s42, s32, 3")
        a("s_add_u32 s53, s42, s44")
        a("s_cmp_lt_u32 s33, 28")
        a("s_cselect_b32 s55, 1, 2")
        a.label(lab)

    def prologue(self):
        a = self.a
        self.stamp(0)
        a("s_load_dwordx16 s[4:19], s[0:1], 0")
        a("s_load_dwordx8 s[20:27], s[0:1], 64")
        a("s_load_dwordx2 s[28:29], s[0:1], 96")
        a("v_lshrrev_b32 v1, 6, v0")
        a("s_cmp_ge_u32 s2, 256")
        a("s_cbranch_scc1 L_end")
        a("v_and_b32 v0, 63, v0")
        a("v_readfirstlane_b32 s3, v1")
        a("s_and_b32 s32, s2, 7")
        a("s_lshr_b32 s33, s2, 3")
        a("s_lshl_b32 s43, s32, 3")
        a("s_add_u32 s42, s43, s33")
        a("s_add_u32 s43, s43, s42")
        a("s_add_u32 s42, s42, 0x70")
        a("s_cmp_lt_u32 s33, 24")
        a("s_cselect_b32 s52, s42, -1")
        a("s_cmp_lt_u32 s33, 16")
        a("s_cselect_b32 s52, s43, s52")
        a("v_mov_b32 v15, %d" % L_S)
        a("s_cmp_eq_u32 s3, 4")
        a("s_cbranch_scc1 L_loader")
        a("s_barrier")
        a("s_cmp_eq_u32 s3, 5")
        a("s_cbranch_scc0 L_nopf")
        a("s_getpc_b64 s[42:43]")
        a.label("L_pc")
        a("s_lshl_b32 s44, s33, 9")
        a("v_lshl_add_u32 v1, v0, 4, s44")
        a("v_min_u32 v1, L_codeend-L_pc-16, v1")
        a("s_mov_b32 exec_hi, 0")
        a("global_load_dwordx4 v[40:43], v1, s[42:43]" + self.pfnt)
        a("s_mov_b64 exec, -1")
        a.label("L_nopf")
        a("s_branch L_others")

    def wssrd(self):
        a = self.a
        a("s_waitcnt lgkmcnt(0)")
        a("s_load_dword s30, s[28:29], 0")
        a("s_mov_b32 s36, s28\ns_mov_b32 s37, s29")

    def others(self):
        a = self.a
        a.label("L_others")
        if self.debug:
            for i in range(1, 16):
                if not (self.clk and i == 1): a("s_mov_b32 s%d, 0" % (64 + 2 * i))
        a("s_mov_b32 s38, %d\ns_mov_b32 s39, 0x20000" % WS_SIZE)
        a("s_mov_b32 s34, 0xffffff00")
        a("v_mov_b32 v16, 1")
        self.roles()
        a("s_cmp_eq_u32 s3, 5")
        a("s_cbranch_scc0 L_compute")
        if self.etouch is not None:
            a("v_and_b32 v1, 7, v0")
            a("v_lshlrev_b32 v1, 5, v1")
            a("v_bfe_u32 v2, v0, 3, 1")
            a("v_lshl_add_u32 v2, v2, 13, v1")
            a("s_lshl_b32 s42, s32, 14")
            a("s_and_b32 s43, s33, 7")
            a("s_lshl_b32 s43, s43, 10")
            a("s_add_u32 s42, s42, s43")
            a("s_lshr_b32 s43, s33, 3")
            a("s_lshl_b32 s43, s43, 8")
            a("s_add_u32 s42, s42, s43")
            a("s_add_u32 s42, s42, %d" % W_Q)
            a("v_lshlrev_b32 v1, 5, v0")
            a("s_lshl_b32 s43, s52, 9")
            a("s_add_u32 s43, s43, %d" % W_MOD)
            a("s_cmp_lt_i32 s52, 0")
            a("s_cselect_b32 s43, 0x%x, s43" % WS_SIZE)
            a("s_mov_b64 exec, 0xffff")
            self.wssrd()
            a("buffer_load_dwordx4 v[44:47], v1, s[36:39], s43 offen %s" % self.etouch)
            a("buffer_load_dwordx4 v[48:51], v2, s[36:39], s42 offen %s" % self.etouch)
            a("s_mov_b64 exec, -1")
        else:
            self.wssrd()
        a("s_branch L_aux")

    def segloop(self, name, W):
        a = self.a
        def group(W, pub, ex=0):
            for k in range(8):
                a("s_waitcnt vmcnt(%d)" % (W - 1 + ex * (-(-(W - k) // 8))))
                if k == (W - 1) % 8:
                    pub()
                a("buffer_load_dwordx4 v%d, s[56:59], s44 offen nt lds" % (16 + k % 4))
                a("s_add_u32 m0, m0, s49")
                a("s_add_u32 s44, s44, s47")
                a("s_and_b32 s44, s44, s48")
        a.label(name)
        if self.peer and name == "L_seg":
            Whi, margin, thr, hw = self.peer
            def pubv(W):
                def f():
                    a("s_mov_b64 exec, 1")
                    a("v_add_u32 v14, 8, v14")
                    a("v_subrev_u32 v13, %d, v14" % (((W - 1) // 8 - (self.W - 1) // 8) * 8))
                    a("v_max_i32 v12, v12, v13")
                    a("ds_write_b32 v15, v12 offset:%d" % C_PROG)
                    a("s_mov_b64 exec, -1")
                return f
            a("v_readlane_b32 s60, v11, s33")
            a("v_add_u32 v8, 1, v8")
            if margin: a("s_add_u32 s60, s60, %d" % margin)
            a("v_cmp_lt_u32 vcc, s60, v11")
            a("s_mov_b64 exec, 1")
            a("global_store_byte v9, v8, s[26:27]")
            a("s_mov_b32 exec_lo, -1")
            a("global_load_ubyte v11, v10, s[26:27] sc1")
            a("s_mov_b32 exec_hi, -1")
            a("s_bcnt1_i32_b32 s60, vcc_lo")
            a("s_cmp_ge_u32 s60, %d" % thr)
            a("s_cbranch_scc1 L_seghi")
            group(W, pubv(W), 2)
            a("s_sub_u32 s45, s45, 1")
            a("s_cbranch_scc0 %s" % name)
            a("s_setpc_b64 s[50:51]")
            a.label("L_seghi")
            group(Whi, pubv(Whi), 2)
        elif self.cls and name == "L_seg":
            Ws = [W] + list(self.cls[:-1])
            for q in range(1, len(Ws)):
                assert (Ws[q] - 1) // 8 == (W - 1) // 8
                a("s_cmp_eq_u32 s41, %d" % q)
                a("s_cbranch_scc1 L_segc%d" % q)
            for q, Wq in enumerate(Ws):
                a.label("L_segc%d" % q)
                group(Wq, self.publish)
                a("s_sub_u32 s45, s45, 1")
                a("s_cbranch_scc0 L_segc%d" % q)
                a("s_setpc_b64 s[50:51]")
            return
        elif self.adapt and name == "L_seg":
            Whi, t0, dt = self.adapt
            def pubv(W):
                def f():
                    a("s_mov_b64 exec, 1")
                    a("v_add_u32 v14, 8, v14")
                    a("v_subrev_u32 v13, %d, v14" % (((W - 1) // 8 - (self.W - 1) // 8) * 8))
                    a("v_max_i32 v12, v12, v13")
                    a("ds_write_b32 v15, v12 offset:%d" % C_PROG)
                    a("s_mov_b64 exec, -1")
                return f
            a("s_memrealtime s[60:61]")
            a("s_add_u32 s63, s63, %d" % dt)
            a("s_waitcnt lgkmcnt(0)")
            a("s_sub_u32 s60, s60, s63")
            a("s_cmp_gt_i32 s60, 0")
            a("s_cbranch_scc1 L_seghi")
            group(W, pubv(W))
            a("s_sub_u32 s45, s45, 1")
            a("s_cbranch_scc0 %s" % name)
            a("s_setpc_b64 s[50:51]")
            a.label("L_seghi")
            group(Whi, pubv(Whi))
        else:
            group(W, self.publish)
        a("s_sub_u32 s45, s45, 1")
        a("s_cbranch_scc0 %s" % name)
        a("s_setpc_b64 s[50:51]")

    def seg(self, n, z=False):
        self.a("s_mov_b32 s45, %d" % (n // 8 - 1))
        self.a("s_call_b64 s[50:51], %s" % ("L_segz" if z else "L_seg"))

    def publish(self):
        a = self.a
        a("s_mov_b64 exec, 1")
        a("v_add_u32 v14, 8, v14")
        a("ds_write_b32 v15, v14 offset:%d" % C_PROG)
        a("s_mov_b64 exec, -1")

    def rebase(self):
        if self.adapt or self.peer:
            hi = (self.adapt or self.peer)[0]
            self.a("v_subrev_u32 v14, %d, v14" % (((hi - 1) // 8 - (self.W - 1) // 8) * 8))
            return hi
        return self.Wz or self.W

    def drain(self):
        k = ((self.rebase() - 1) // 8) * 8
        while k >= 0:
            self.a("s_waitcnt vmcnt(%d)" % (k + (k // 4 if self.peer else 0)))
            self.publish()
            k -= 8

    def srd(self, r, p, n):
        self.a("s_mov_b32 s%d, s%d\ns_mov_b32 s%d, s%d\ns_mov_b32 s%d, %d\ns_mov_b32 s%d, 0x20000" % (r, p, r + 1, p + 1, r + 2, n, r + 3))

    def loader(self):
        a = self.a
        self.inld = True
        W = self.W
        a.label("L_loader")
        a("s_setprio %d" % self.prio)
        a("v_lshl_add_u32 v1, v0, 2, v15")
        a("v_mov_b32 v2, 0")
        a("s_mov_b64 exec, 0xffff")
        a("ds_write_b32 v1, v2")
        a("s_mov_b64 exec, -1")
        a("v_lshrrev_b32 v4, 3, v0")
        a("v_and_b32 v5, 7, v0")
        a("v_and_b32 v6, 6, v4")
        a("v_xor_b32 v5, v5, v6")
        a("v_lshlrev_b32 v5, 4, v5")
        a("v_mul_u32_u24 v16, 6144, v4")
        a("v_add_u32 v16, v16, v5")
        a("v_mov_b32 v17, v16\nv_mov_b32 v18, v16\nv_mov_b32 v19, v16")
        p0 = -(((W - 1) // 8) * 8) - 8
        a("s_and_b32 s42, s52, 3")
        a("s_mul_i32 s42, s42, %d" % (128 * 6144))
        a("s_lshr_b32 s43, s52, 2")
        a("s_lshl_b32 s43, s43, 7")
        a("s_add_u32 s44, s42, s43")
        a("s_movk_i32 s49, 0x400")
        a("s_mov_b32 s48, -1")
        a("s_mov_b32 s47, %d" % (8 * 6144))
        a("s_mov_b32 m0, %d" % L_MOD)
        a("s_mov_b32 s58, %d" % (512 * 3072 * 2))
        a("s_mov_b32 s59, 0x20000")
        a("s_cmp_lt_i32 s52, 0")
        a("s_cselect_b32 s42, %d, %d" % (p0 + 16, p0))
        a("v_mov_b32 v14, s42")
        if self.cls:
            mode = self.cls[-1]
            if mode == "odd":
                a("s_and_b32 s41, s32, 1")
            elif mode == "mod":
                a("s_cselect_b32 s41, 0, 1")
            elif mode == "wo":
                a("s_cmp_lt_u32 s33, 16")
                a("s_cselect_b32 s41, 1, 0")
            elif mode == "three":
                a("s_cselect_b32 s41, 0, 1")
                a("s_cmp_lt_u32 s33, 16")
                a("s_cselect_b32 s41, 2, s41")
            elif mode == "hi4":
                a("s_lshr_b32 s41, s32, 2")
            elif mode == "oddmod":
                a("s_cselect_b32 s41, 0, 1")
                a("s_and_b32 s41, s41, s32")
            a("s_cmp_lt_i32 s52, 0")
        if self.peer:
            a("v_mov_b32 v12, -64")
            a("v_mov_b32 v11, 0")
            a("s_cselect_b32 s43, %d, %d" % (2 + self.peer[3], self.peer[3]))
            a("s_cmp_lt_u32 s33, 16")
            a("s_cselect_b32 s43, 0, s43")
            a("v_mov_b32 v8, s43")
            a("s_lshl_b32 s43, s32, 5")
            a("v_add_u32 v10, s43, v0")
            a("v_add_u32 v9, s33, v10")
            a("s_cmp_lt_i32 s52, 0")
        if self.adapt:
            a("v_mov_b32 v12, -64")
            a("s_memrealtime s[62:63]")
            a("s_cselect_b32 s43, %d, 0" % (2 * self.adapt[2]))
            a("s_waitcnt lgkmcnt(0)")
            a("s_add_u32 s63, s62, s43")
            a("s_add_u32 s63, s63, %d" % self.adapt[1])
            a("s_cmp_lt_i32 s52, 0")
        if self.sdet == 5: self.sstamp(12)
        a("s_waitcnt lgkmcnt(0)")
        if self.sdet == 5: self.sstamp(13)
        a("s_barrier")
        if self.sdet == 5: self.sstamp(11)
        a("s_mov_b32 s56, s22\ns_mov_b32 s57, s23")
        a("s_cbranch_scc1 L_nomod")
        self.seg(16)
        a.label("L_nomod")
        if self.debug:
            for i in range(1, 16):
                if not (self.sdet == 5 and i in (11, 12, 13)): a("s_mov_b32 s%d, 0" % (64 + 2 * i))
        if self.sdet == 5: self.sstamp(10)
        a("v_lshl_add_u32 v16, v4, 13, v5")
        a("s_mov_b32 s56, s10\ns_mov_b32 s57, s11\ns_mov_b32 s58, %d" % (512 * 4096 * 2))
        a("v_mov_b32 v17, v16\nv_mov_b32 v18, v16\nv_mov_b32 v19, v16")
        a("s_lshr_b32 s42, s33, 3")
        a("s_lshl_b32 s42, s42, 20")
        a("s_and_b32 s43, s33, 7")
        a("s_lshl_b32 s43, s43, 7")
        a("s_add_u32 s42, s42, s43")
        a("s_lshl_b32 s43, s32, 10")
        a("s_add_u32 s44, s42, s43")
        a("s_mov_b32 s47, 0x10000")
        a("s_mov_b32 m0, %d" % L_WQ)
        self.seg(16)
        self.stamp(1)
        a("v_lshrrev_b32 v1, 4, v0")
        a("v_and_b32 v2, 15, v0")
        a("v_xor_b32 v3, v2, v1")
        a("v_lshlrev_b32 v3, 4, v3")
        a("v_lshl_add_u32 v16, v1, 8, v3")
        for k in (1, 2, 3):
            a("v_xor_b32 v%d, %d, v16" % (16 + k, k << 6))
        a("s_lshr_b32 s42, s33, 4")
        a("s_lshl_b32 s42, s42, 3")
        a("s_add_u32 s42, s42, s32")
        a("s_lshl_b32 s42, s42, 7")
        a("s_and_b32 s43, s33, 15")
        a("s_add_u32 s42, s42, s43")
        a("s_add_u32 s42, s42, 0x70")
        a("s_lshl_b32 s46, s42, 16")
        a("s_add_u32 s56, s6, s46\ns_addc_u32 s57, s7, 0\ns_mov_b32 s58, 0x10000")
        ma, mb = self.rot
        a("s_mul_i32 s42, s33, %d" % ma)
        a("s_mul_i32 s43, s32, %d" % mb)
        a("s_add_u32 s42, s42, s43")
        a("s_lshl_b32 s42, s42, 10")
        a("s_mov_b32 s48, 0xffff")
        a("s_and_b32 s44, s42, s48")
        a("s_mov_b32 s47, s49")
        if self.sdet == 5:
            for q in range(4):
                self.sstamp(6 + q)
                self.seg(16)
        elif self.zk is not None:
            if self.zk: self.seg(self.zk)
            a("v_subrev_u32 v14, %d, v14" % (((self.Wz - 1) // 8 - (W - 1) // 8) * 8))
            if self.zk < 64: self.seg(64 - self.zk, z=True)
        else:
            self.seg(64)
        self.stamp(2)
        a("v_lshlrev_b32 v3, 1, v1")
        a("v_xor_b32 v3, v2, v3")
        a("v_lshlrev_b32 v3, 4, v3")
        a("v_lshl_add_u32 v16, v1, 8, v3")
        a("v_xor_b32 v17, 0x80, v16")
        a("v_mov_b32 v18, v16\nv_mov_b32 v19, v17")
        a("s_add_u32 s56, s8, s46\ns_addc_u32 s57, s9, 0")
        self.seg(self.vsplit, z=self.zk is not None)
        self.roles_ld()
        a("v_lshl_add_u32 v24, v1, 10, v3")
        a("v_xor_b32 v25, 0x80, v24")
        Wz = self.Wz or W
        sw = ((Wz - 1) // 8 - (W - 1) // 8) * 8
        if sw and self.zk is None: a("v_subrev_u32 v14, %d, v14" % sw)
        a("s_cmp_lt_i32 s52, 0")
        a("s_cbranch_scc1 L_vtail")
        if 'c' not in self.kill: self.lwait(C_MOD, "4", vt="v7")
        a.label("L_vtail")
        self.seg(64 - self.vsplit, z=bool(self.Wz))
        self.stamp(3)
        a("s_branch L_loader2")
        self.segloop("L_seg", W)
        self.inld = False

    def roles_ld(self):
        a = self.a
        a("s_mov_b32 s40, s44")
        self.roles()
        a("s_mov_b32 s44, s40")

    def loader2(self):
        a = self.a
        self.inld = True
        if self.Wz: self.segloop("L_segz", self.Wz)
        a.label("L_loader2")
        a("s_cmp_eq_u32 s55, 0")
        a("s_cbranch_scc0 L_ld_notwo")
        self.srd(56, 12, 4096 * 512 * 2)
        a("s_lshl_b32 s42, s53, 17")
        a("s_lshl_b32 s43, s54, 8")
        a("s_add_u32 s44, s42, s43")
        a("s_mov_b32 m0, %d" % L_K)
        if not self.kill: self.lwait(C_K, "4")
        left = ((self.rebase() - 1) // 8 + 1) * 8
        def burst(n, srd=56):
            lab = a.newlab("Lseg")
            a("s_mov_b32 s45, %d" % (n // 2 - 1))
            a.label(lab)
            for v in (24, 25):
                a("buffer_load_dwordx4 v%d, s[%d:%d], s44 offen nt lds" % (v, srd, srd + 3))
                a("s_add_u32 m0, m0, s49")
                a("s_add_u32 s44, s44, 4096")
            a("s_sub_u32 s45, s45, 1")
            a("s_cbranch_scc0 %s" % lab)
        issued = self.pb
        burst(self.pb)
        while left > 0:
            left -= 8
            a("s_waitcnt vmcnt(%d)" % (left + issued + (left // 4 if self.peer else 0)))
            self.publish()
            if issued < 32:
                n = 8 if left > 0 else 32 - issued
                burst(n); issued += n
        a("s_waitcnt vmcnt(0)")
        a("v_mov_b32 v14, 184")
        self.publish()
        self.stamp(4)
        self.finish()
        a.label("L_ld_notwo")
        self.drain()
        self.stamp(4)
        a("s_cmp_eq_u32 s55, 1")
        a("s_cbranch_scc0 L_ld_end")
        a("v_mul_u32_u24 v26, 3584, v4")
        a("v_add_u32 v26, v26, v5")
        self.srd(56, 16, 512 * 1792 * 2)
        self.srd(60, 18, 512 * 1792 * 2)
        a("s_mul_i32 s42, s54, %d" % (128 * 3584))
        a("s_lshl_b32 s43, s53, 7")
        a("s_add_u32 s44, s42, s43")
        a("s_mov_b32 m0, %d" % L_K)
        if not self.kill: self.lwait((C_K, C_O, C_X)[self.fd], "1" if (self.fd == 2 and self.xearly) else "4")
        lab = a.newlab("Lseg")
        a("s_mov_b32 s45, 15")
        a.label(lab)
        a("buffer_load_dwordx4 v26, s[56:59], s44 offen nt lds")
        a("s_add_u32 m0, m0, s49")
        a("s_add_u32 s44, s44, %d" % (8 * 3584))
        a("s_sub_u32 s45, s45, 1")
        a("s_cbranch_scc0 %s" % lab)
        a("s_lshl_b32 s42, s53, 16")
        a("s_lshl_b32 s43, s54, 8")
        a("s_add_u32 s44, s42, s43")
        burst(16, 60)
        a("s_waitcnt vmcnt(0)")
        a("v_mov_b32 v14, 184")
        self.publish()
        self.stamp(5)
        a.label("L_ld_end")
        self.finish()
        self.inld = False

    def aux(self):
        a = self.a
        a.label("L_aux")
        if 'a' in self.kill: self.finish()
        if self.tlb:
            a("s_lshr_b32 s42, s33, 4")
            a("s_lshl_b32 s42, s42, 3")
            a("s_add_u32 s42, s42, s32")
            a("s_lshl_b32 s42, s42, 23")
            a("s_and_b32 s43, s33, 15")
            a("s_lshl_b32 s43, s43, 16")
            a("s_add_u32 s42, s42, s43")
            a("s_add_u32 s42, s42, %d" % (7 << 20))
            a("v_mov_b32 v1, s42")
            a("s_lshl_b32 s42, s53, 17")
            a("v_mov_b32 v2, s42")
            a("s_lshl_b32 s42, s53, 16")
            a("s_cmp_eq_u32 s55, 1")
            a("s_cselect_b32 s42, s42, 0")
            a("v_mov_b32 v3, s42")
            a("s_mul_i32 s42, s54, %d" % (128 * 3584))
            a("v_mov_b32 v4, s42")
            a("v_mov_b32 v5, 0")
            a("s_mov_b64 exec, 1")
            a("global_load_dword v44, v1, s[6:7] nt")
            a("global_load_dword v45, v1, s[8:9] nt")
            a("global_load_dword v46, v2, s[12:13] nt")
            a("global_load_dword v47, v3, s[18:19] nt")
            a("global_load_dword v48, v4, s[16:17] nt")
            a("global_load_dword v49, v5, s[24:25] nt")
            a("s_mov_b64 exec, -1")
        a("s_waitcnt vmcnt(0)")
        self.stamp(1)
        if self.warm:
            a("s_mov_b64 exec, 0")
            a("s_branch L_pad0")
            a.label("L_warmed")
            a("s_mov_b64 exec, -1")
        self.stamp(2)
        if self.xpoll:
            R, nl, fl, wait = self.xpoll
            a("v_lshlrev_b32 v1, 4, v0")
            a("s_mov_b32 s44, %d" % R)
            a("s_mov_b32 s45, 0x2000")
            a("s_mov_b32 s46, 0x3000")
            a.label("L_xp")
            for i in range(nl):
                a("buffer_load_dwordx4 v[%d:%d], v1, s[36:39], s%d offen offset:%d %s" % (20 + 4 * i, 23 + 4 * i, 45 + i // 4, 1024 * (i & 3), fl))
            a("s_waitcnt vmcnt(%d)" % wait)
            a("s_sub_u32 s44, s44, 1")
            a("s_cmp_lg_u32 s44, 0")
            a("s_cbranch_scc1 L_xp")
            a("s_waitcnt vmcnt(0)")
            self.stamp(3)
        if self.kill: self.finish()
        if self.tmode:
            a("v_and_b32 v3, 3, v0")
            a("v_lshlrev_b32 v3, 5, v3")
            a("v_bfe_u32 v4, v0, 2, 2")
            a("v_lshrrev_b32 v5, 4, v0")
            a("v_lshl_add_u32 v10, v4, 12, v3")
            a("v_lshl_add_u32 v10, v5, 14, v10")
            a("s_lshl_b32 s46, s32, 9")
            a("s_and_b32 s43, s33, 3")
            a("s_lshl_b32 s43, s43, 3")
            a("s_add_u32 s46, s46, s43")
            a("s_bfe_u32 s43, s33, 0x20002")
            a("s_lshl_b32 s43, s43, 1")
            a("s_add_u32 s46, s46, s43")
            a("s_lshr_b32 s43, s33, 4")
            a("s_add_u32 s46, s46, s43")
            a("s_lshl_b32 s46, s46, 7")
            a("s_add_u32 s46, s46, %d" % W_O)
            a("v_and_b32 v11, 7, v0")
            a("v_lshlrev_b32 v11, 5, v11")
            a("v_lshrrev_b32 v5, 3, v0")
            a("v_lshl_add_u32 v11, v5, 10, v11")
            a("s_lshl_b32 s47, s53, 13")
            a("s_lshl_b32 s43, s54, 8")
            a("s_add_u32 s47, s47, s43")
            a("s_add_u32 s47, s47, %d" % W_U)
            a("s_cmp_eq_u32 s55, 1")
            a("s_cselect_b32 s47, s47, 0x%x" % WS_SIZE)
            a("v_and_b32 v12, 7, v0")
            a("v_lshlrev_b32 v12, 5, v12")
            a("s_lshl_b32 s48, s53, 2")
            a("s_add_u32 s48, s48, s54")
            a("s_lshl_b32 s48, s48, 8")
            a("s_add_u32 s48, s48, %d" % W_ST)
            a("s_cmp_eq_u32 s55, 0")
            a("s_cselect_b32 s48, s48, 0x%x" % WS_SIZE)
            def touch(fl):
                a("buffer_load_dwordx4 v[24:27], v10, s[36:39], s46 offen %s" % fl)
                a("buffer_load_dwordx4 v[28:31], v11, s[36:39], s47 offen %s" % fl)
                a("buffer_load_dwordx4 v[32:35], v12, s[36:39], s48 offen %s" % fl)
            if self.tth: self.lwait(C_PROG, "%d" % self.tth)
            for fl in {'n': ("sc1",), 'np': ("nt", "sc1"), 'npp': ("nt", ""), 'nn': ("nt", "nt")}[self.tmode]:
                touch(fl)
                a("s_waitcnt vmcnt(0)")
            if self.rth:
                self.lwait(C_PROG, "%d" % self.rth)
                touch("sc1")
        if self.prex:
            a("s_waitcnt lgkmcnt(0)")
            a("s_add_u32 s31, s30, 1")
            a("s_and_b32 s31, s31, 0xff")
            a("s_xor_b32 s42, s31, 0x55")
            a("v_mov_b32 v4, s42\nv_mov_b32 v6, s42")
            a("s_cmp_eq_u32 s55, 0")
            a("s_cbranch_scc1 L_aux_wo")
            a("s_cmp_eq_u32 s55, 1")
            a("s_cbranch_scc0 L_aux_end")
            a("v_lshrrev_b32 v2, 3, v0")
            a("v_mul_u32_u24 v2, 3584, v2")
            a("v_and_b32 v3, 7, v0")
            a("v_lshl_add_u32 v2, v3, 4, v2")
            a("s_mul_i32 s43, s54, %d" % (4 * 7168))
            a("s_lshl_b32 s44, s53, 7")
            a("s_add_u32 s43, s43, s44")
            a("s_add_u32 s43, s43, %d" % W_F)
            self.lwait(C_O, "4")
            self.st(4, "v2", "s43", "sc1")
            self.finish()
            a.label("L_aux_wo")
            a("v_lshrrev_b32 v2, 4, v0")
            a("v_and_b32 v3, 15, v0")
            a("v_lshlrev_b32 v3, 4, v3")
            a("v_lshl_add_u32 v2, v2, 13, v3")
            a("s_lshl_b32 s44, s54, 15")
            a("s_lshl_b32 s45, s53, 8")
            a("s_add_u32 s44, s44, s45")
            a("s_add_u32 s44, s44, %d" % W_W)
            self.st(4, "v2", "s44", "sc1")
        self.stamp(3)
        a.label("L_aux_end")
        self.finish()

    def modgather(self, parts, dsts, rbs, ns=1, each=None):
        a = self.a
        a("s_lshl_b32 s42, %s, 1" % rbs)
        a("s_lshr_b32 s43, s3, 1")
        a("s_add_u32 s42, s42, s43")
        a("s_lshl_b32 s48, s42, 11")
        a("s_and_b32 s43, s3, 1")
        a("s_lshl_b32 s43, s43, 8")
        a("s_add_u32 s48, s48, s43")
        loads = []
        for i, p in enumerate(parts):
            if p < 4:
                a("s_lshr_b32 s43, s42, 2")
                a("s_add_u32 s43, s43, %d" % (2 * p))
            else:
                a("s_lshr_b32 s43, s42, 1")
                a("s_add_u32 s43, s43, %d" % (4 * (p - 4)))
            a("s_cmp_eq_u32 s43, s32")
            a("s_cselect_b32 s43, 0, 1")
            a("s_lshl_b32 s43, s43, 21")
            a("s_add_u32 s43, s43, s48")
            a("s_add_u32 s%d, s43, %d" % (44 + i, W_MOD + p * 16384))
            loads.append((96 + 4 * i, "v7", "s%d" % (44 + i), 0))
        if ns > 1:
            self.pgather([184 + 8 * k for k in range(ns)], [l[1:] for l in loads], lambda b: self.tred2([b, b + 4], dsts), self.dh, alt=[l[2] for l in loads])
        else:
            self.gather(loads, alt=[l[2] for l in loads], fl=self.hfl, each=each)
            self.tred2([96 + 4 * i for i in range(len(dsts))], dsts)
        for d in dsts:
            self.rbf(d)

    def compute(self):
        a = self.a
        a.label("L_compute")
        a("v_lshrrev_b32 v1, 4, v0")
        a("v_bfe_u32 v2, v0, 3, 1")
        a("v_and_b32 v3, 7, v0")
        a("v_lshlrev_b32 v6, 5, v0")
        a("v_and_b32 v6, 0x400, v6")
        a("v_and_b32 v4, 31, v0")
        a("v_lshl_add_u32 v6, v4, 3, v6")
        a("s_and_b32 s42, s52, 3")
        a("v_lshl_add_u32 v6, s42, 8, v6")
        a("v_lshl_add_u32 v4, v1, 3, v3")
        a("v_lshlrev_b32 v4, 5, v4")
        a("v_lshl_add_u32 v4, v2, 10, v4")
        a("v_lshl_add_u32 v5, v3, 2, v1")
        a("s_lshl_b32 s42, s3, 5")
        a("v_add_u32 v5, s42, v5")
        a("v_lshl_add_u32 v5, v2, 9, v5")
        a("v_lshlrev_b32 v148, 1, v5")
        a("s_lshr_b32 s50, s33, 3")
        a("v_lshl_add_u32 v5, s50, 8, v148")
        a("v_lshl_add_u32 v148, s54, 8, v148")
        self.wssrd()
        if 'c' in self.kill: self.finish()
        a("global_load_dwordx2 v[24:25], v6, s[20:21]" + self.xnt)
        a("global_load_dwordx4 v[64:67], v4, s[4:5]" + self.xnt)
        a("global_load_dwordx4 v[68:71], v4, s[4:5] offset:16" + self.xnt)
        a("global_load_ushort v18, v5, s[4:5]" + self.xnt)
        a("global_load_ushort v19, v148, s[4:5]" + self.xnt)
        a("v_lshlrev_b32 v150, 4, v1")
        a("v_and_b32 v4, 1, v0")
        a("v_lshl_add_u32 v151, v4, 6, v150")
        a("v_mul_u32_u24 v4, 320, v4")
        a("v_add3_u32 v10, v4, v150, v15")
        a("v_bfe_u32 v4, v0, 2, 2")
        a("v_lshl_add_u32 v5, v1, 2, v4")
        a("v_bfe_u32 v6, v0, 1, 1")
        a("v_and_b32 v8, 1, v0")
        a("v_lshlrev_b32 v8, 3, v8")
        a("s_lshl_b32 s42, s3, 1")
        a("v_add_u32 v9, s42, v6")
        a("v_and_b32 v12, 6, v5")
        a("v_xor_b32 v9, v9, v12")
        a("v_lshl_add_u32 v9, v9, 4, v8")
        a("v_lshl_add_u32 v12, v5, 7, v9")
        a("s_lshl_b32 s42, s3, 2")
        a("v_add_u32 v9, s42, v6")
        a("v_and_b32 v13, 7, v5")
        a("v_lshlrev_b32 v13, 1, v13")
        a("v_xor_b32 v9, v9, v13")
        a("v_lshl_add_u32 v9, v9, 4, v8")
        a("v_lshl_add_u32 v13, v5, 8, v9")
        a("v_xor_b32 v14, 32, v13")
        a("s_mov_b32 s40, 0")
        a("s_cmp_lt_i32 s52, 0")
        a("s_cbranch_scc1 L_c_nomod")
        a("v_lshrrev_b32 v4, 5, v0")
        a("v_mul_u32_u24 v4, 320, v4")
        a("v_bfe_u32 v5, v0, 3, 2")
        a("v_lshl_add_u32 v4, v5, 6, v4")
        a("v_and_b32 v5, 3, v0")
        a("v_lshl_add_u32 v4, v5, 4, v4")
        a("v_bfe_u32 v5, v0, 2, 1")
        a("v_lshl_add_u32 v4, v5, 3, v4")
        a("s_mul_i32 s42, s3, 640")
        a("s_add_u32 s43, s42, %d" % (L_S + S_C))
        a("v_add_u32 v4, s43, v4")
        a("v_add_u32 v5, s42, v10")
        a("s_waitcnt vmcnt(4)")
        a("v_lshlrev_b32 v26, 16, v24")
        a("v_and_b32 v27, 0xffff0000, v24")
        a("v_lshlrev_b32 v28, 16, v25")
        a("v_and_b32 v29, 0xffff0000, v25")
        for k in range(4):
            a("v_mul_f32 v%d, %s, v%d" % (32 + k, f2u(-L2E), 26 + k))
        for k in range(4):
            a("v_exp_f32 v%d, v%d" % (32 + k, 32 + k))
        for k in range(4):
            a("v_add_f32 v%d, 1.0, v%d" % (32 + k, 32 + k))
        for k in range(4):
            a("v_rcp_f32 v%d, v%d" % (32 + k, 32 + k))
        for k in range(4):
            a("v_mul_f32 v%d, v%d, v%d" % (26 + k, 26 + k, 32 + k))
        a("v_cvt_pk_bf16_f32 v24, v26, v27")
        a("v_cvt_pk_bf16_f32 v25, v28, v29")
        a("ds_write_b64 v4, v[24:25]")
        for t in range(4):
            a("ds_read_b128 v[%d:%d], v5 offset:%d" % (48 + 4 * t, 51 + 4 * t, S_C + 64 * t))
        a("v_add_u32 v6, %d, v12" % L_MOD)
        a("s_lshl_b32 s44, s52, 9")
        a("s_lshl_b32 s43, s3, 7")
        a("s_add_u32 s44, s44, s43")
        a("s_add_u32 s44, s44, %d" % W_MOD)
        self.lwait(C_PROG, "16", cache="s40")
        self.stamp(1)
        self.tr64(32, "v6", 0)
        a("s_add_u32 s31, s30, 1")
        a("s_and_b32 s31, s31, 0xff")
        a("v_mov_b32 v17, s31")
        for t in range(4):
            a("s_waitcnt lgkmcnt(%d)" % (0 if self.debug else 6 - 2 * t))
            self.mfma(128, 32 + 4 * t, 48 + 4 * t, t == 0)
        self.lsignal(C_MOD)
        self.tag4(128)
        self.execm(0x0003)
        self.store_dual(128, "v151", "s44")
        self.execall()
        self.stamp(2)
        a("s_waitcnt vmcnt(2)")
        a("s_branch L_c_ln")
        a.label("L_c_nomod")
        a("s_waitcnt vmcnt(0) lgkmcnt(0)")
        a("s_add_u32 s31, s30, 1")
        a("s_and_b32 s31, s31, 0xff")
        a("v_mov_b32 v17, s31")
        a.label("L_c_ln")
        for k in range(8):
            a("v_lshlrev_b32 v%d, 16, v%d" % (72 + 2 * k, 64 + k))
            a("v_and_b32 v%d, 0xffff0000, v%d" % (73 + 2 * k, 64 + k))
        a("v_add_f32 v4, v72, v73")
        for k in range(2, 16):
            a("v_add_f32 v4, v4, v%d" % (72 + k))
        for c in ("quad_perm:[1,0,3,2]", "quad_perm:[2,3,0,1]", "row_half_mirror"):
            self.dpp("v_add_f32", "v4", c)
        self.allred_hi("v4", "v5", "v_add_f32")
        a("v_mul_f32 v4, %s, v4" % f2u(1.0 / 512))
        for k in range(16):
            a("v_sub_f32 v%d, v%d, v4" % (72 + k, 72 + k))
        a("v_mul_f32 v6, v72, v72")
        for k in range(1, 16):
            a("v_fmac_f32 v6, v%d, v%d" % (72 + k, 72 + k))
        for c in ("quad_perm:[1,0,3,2]", "quad_perm:[2,3,0,1]", "row_half_mirror"):
            self.dpp("v_add_f32", "v6", c)
        self.allred_hi("v6", "v5", "v_add_f32")
        a("v_mul_f32 v6, %s, v6" % f2u(1.0 / 512))
        self.rbf("v4"); self.rbf("v6")
        a("v_add_f32 v6, %s, v6" % f2u(1e-5))
        self.rbf("v6")
        a("v_sqrt_f32 v6, v6")
        self.rbf("v6")
        a("v_rcp_f32 v6, v6")
        a("v_lshlrev_b32 v18, 16, v18")
        a("v_lshlrev_b32 v19, 16, v19")
        a("v_sub_f32 v18, v18, v4")
        self.rbf("v18")
        a("v_mul_f32 v18, v18, v6")
        self.rbf("v18")
        a("v_and_b32 v4, 3, v0")
        a("v_lshlrev_b32 v4, 4, v4")
        a("v_bfe_u32 v5, v0, 2, 1")
        a("v_lshl_add_u32 v7, v2, 6, v4")
        a("v_lshl_add_u32 v7, v5, 7, v7")
        a("v_lshl_add_u32 v7, v1, 9, v7")
        a("v_lshl_add_u32 v4, v5, 3, v4")
        a("v_lshl_add_u32 v4, v1, 1, v4")
        a("s_lshl_b32 s42, s3, 6")
        a("s_add_u32 s42, s42, %d" % L_S)
        a("v_add_u32 v4, s42, v4")
        a("v_mul_u32_u24 v6, 320, v2")
        a("v_add_u32 v11, v6, v4")
        a("v_mul_u32_u24 v6, 272, v2")
        a("v_add_u32 v149, v6, v4")
        a("v_lshlrev_b32 v152, 4, v0")
        a("v_and_b32 v4, 1, v0")
        a("v_lshl_add_u32 v159, v4, 13, v150")
        a("s_lshl_b32 s42, s32, 14")
        a("s_and_b32 s43, s33, 7")
        a("s_lshl_b32 s43, s43, 10")
        a("s_add_u32 s42, s42, s43")
        a("s_lshl_b32 s43, s50, 8")
        a("s_add_u32 s42, s42, s43")
        a("s_lshl_b32 s43, s3, 6")
        a("s_add_u32 s42, s42, s43")
        a("s_add_u32 s51, s42, %d" % W_Q)
        a("s_getreg_b32 s42, hwreg(HW_REG_XCC_ID, 0, 4)")
        if self.forcediff:
            a("s_and_b32 s42, s33, 1")
        a("s_lshl_b32 s42, s42, 4")
        a("s_and_b32 s43, s31, 15")
        a("s_or_b32 s101, s42, s43")
        a("v_mov_b32 v153, s101")
        self.lwait(C_PROG, "32", cache="s40")
        self.tr64(32, "v12", L_WQ)
        if 'h' in self.kill: self.finish()
        if self.th_h > 32:
            self.lwait(C_PROG, "%d" % self.th_h, cache="s40")
        if self.sdet == 2: self.sstamp(10)
        self.modgather([0, 1], ["v4", "v5"], "s50", self.nsh)
        if self.sdet == 2 and self.debug: a("s_add_u32 s92, s35, 1")
        self.stamp(3)
        a("v_add_f32 v5, 1.0, v5")
        self.rbf("v5")
        a("v_mul_f32 v5, v18, v5")
        self.rbf("v5")
        a("v_add_f32 v5, v5, v4")
        a("v_cvt_pk_bf16_f32 v5, v5, v5")
        a("ds_write_b16 v11, v5 offset:%d" % S_H)
        self.lsignal(C_A)
        self.lwait(C_A, "4")
        for t in range(4):
            a("ds_read_b128 v[%d:%d], v10 offset:%d" % (48 + 4 * t, 51 + 4 * t, S_H + 64 * t))
        for t in range(4):
            a("s_waitcnt lgkmcnt(%d)" % (3 - t))
            self.mfma(140, 32 + 4 * t, 48 + 4 * t, t == 0)
        self.tag4(140, "v153")
        self.execm(0x0003)
        self.st(140, "v159", "s51", "")
        self.execall()
        a("s_or_b32 s51, s51, 0x%x" % W_DUAL)
        self.stamp(4)
        if 'q' in self.kill: self.finish()
        a("v_and_b32 v4, 3, v0")
        a("v_lshl_add_u32 v4, v4, 14, v150")
        a("v_bfe_u32 v5, v0, 2, 1")
        a("v_lshl_add_u32 v154, v5, 6, v4")
        a("s_lshl_b32 s42, s32, 4")
        a("s_add_u32 s42, s42, s3")
        a("s_lshl_b32 s42, s42, 5")
        a("s_and_b32 s43, s33, 3")
        a("s_lshl_b32 s43, s43, 3")
        a("s_add_u32 s42, s42, s43")
        a("s_bfe_u32 s43, s33, 0x20002")
        a("s_lshl_b32 s43, s43, 1")
        a("s_add_u32 s42, s42, s43")
        a("s_lshr_b32 s43, s33, 4")
        a("s_add_u32 s42, s42, s43")
        a("s_lshl_b32 s42, s42, 7")
        a("s_add_u32 s96, s42, %d" % W_O)
        a("v_and_b32 v4, 1, v0")
        a("v_bfe_u32 v5, v0, 1, 1")
        a("v_lshl_add_u32 v5, v5, 6, v150")
        a("s_cmp_eq_u32 s55, 0")
        a("s_cbranch_scc0 L_c_nowo")
        a("v_lshl_add_u32 v155, v4, 7, v5")
        a("s_lshl_b32 s42, s54, 2")
        a("s_add_u32 s42, s42, s3")
        a("s_lshl_b32 s42, s42, 5")
        a("s_add_u32 s42, s42, s53")
        a("s_lshl_b32 s42, s42, 8")
        a("s_add_u32 s97, s42, %d" % W_W)
        a("s_lshl_b32 s42, s53, 2")
        a("s_add_u32 s42, s42, s3")
        a("s_lshl_b32 s42, s42, 12")
        a("s_add_u32 s99, s42, %d" % W_O)
        a("v_lshlrev_b32 v4, 5, v1")
        a("v_lshl_add_u32 v156, v2, 7, v4")
        a("s_lshr_b32 s42, s42, 4")
        a("s_add_u32 s100, s42, %d" % W_ST)
        a.label("L_c_nowo")
        a("s_cmp_eq_u32 s55, 1")
        a("s_cbranch_scc0 L_c_noffn")
        a("v_mul_u32_u24 v4, 3584, v4")
        a("v_add_u32 v156, v4, v5")
        a("s_lshl_b32 s42, s54, 2")
        a("s_add_u32 s42, s42, s3")
        a("s_lshl_b32 s43, s42, 13")
        a("s_add_u32 s99, s43, %d" % W_W)
        a("s_mul_i32 s42, s42, 7168")
        a("s_lshl_b32 s43, s53, 7")
        a("s_add_u32 s42, s42, s43")
        a("s_add_u32 s98, s42, %d" % W_F)
        a("v_and_b32 v4, 15, v0")
        a("v_mul_u32_u24 v5, 272, v4")
        a("v_add3_u32 v157, v5, v150, v15")
        a("v_lshlrev_b32 v5, 1, v2")
        a("v_sub_u32 v4, v4, v5")
        a("v_and_b32 v5, 3, v4")
        a("v_lshl_add_u32 v5, v5, 6, v150")
        a("v_lshrrev_b32 v4, 2, v4")
        a("v_lshl_add_u32 v155, v4, 10, v5")
        a("s_lshl_b32 s42, s53, 2")
        a("s_add_u32 s42, s42, s3")
        a("s_lshl_b32 s42, s42, 11")
        a("s_add_u32 s100, s42, %d" % W_U)
        a("s_lshl_b32 s43, s54, 8")
        a("s_add_u32 s97, s100, s43")
        a("v_bfe_u32 v4, v0, 2, 1")
        a("v_mul_u32_u24 v4, 320, v4")
        a("v_and_b32 v5, 3, v0")
        a("v_lshl_add_u32 v4, v5, 4, v4")
        a("v_lshl_add_u32 v4, v1, 1, v4")
        a("s_lshr_b32 s42, s3, 1")
        a("s_lshl_b32 s42, s42, 6")
        a("s_and_b32 s43, s3, 1")
        a("s_lshl_b32 s43, s43, 3")
        a("s_add_u32 s42, s42, s43")
        a("s_add_u32 s42, s42, %d" % (L_S + S_U))
        a("v_add_u32 v158, s42, v4")
        a.label("L_c_noffn")
        if 'p' in self.kill: self.finish()
        a("v_and_b32 v4, 15, v0")
        a("v_xor_b32 v5, v4, v1")
        a("v_lshlrev_b32 v5, 4, v5")
        a("v_lshl_add_u32 v5, v4, 8, v5")
        a("s_lshl_b32 s42, s3, 14")
        a("s_add_u32 s42, s42, %d" % L_K)
        a("v_add_u32 v24, s42, v5")
        for t in (1, 2, 3):
            a("v_xor_b32 v%d, %d, v24" % (24 + t, 64 * t))
        a("s_lshl_b32 s42, s32, 1")
        a("s_lshr_b32 s43, s33, 4")
        a("s_add_u32 s42, s42, s43")
        a("s_lshl_b32 s42, s42, 13")
        a("s_lshl_b32 s43, s3, 11")
        a("s_add_u32 s42, s42, s43")
        a("s_add_u32 s44, s42, %d" % W_Q)
        self.smask(56, 0x00f0); self.smask(58, 0x0f00); self.smask(60, 0xf000); self.smask(62, 0x000c)
        a("v_and_b32 v4, 15, v0")
        a("v_lshl_add_u32 v4, v4, 2, v1")
        a("v_lshlrev_b32 v4, 1, v4")
        a("s_mul_i32 s42, s3, 320")
        a("s_add_u32 s42, s42, %d" % (L_S + S_Q))
        a("v_add_u32 v28, s42, v4")
        a("v_and_b32 v4, 3, v0")
        a("v_mul_u32_u24 v5, 320, v4")
        a("v_add3_u32 v29, v5, v150, v15")
        a("v_mul_u32_u24 v5, 576, v4")
        a("v_add3_u32 v30, v5, v150, v15")
        a("v_bfe_u32 v8, v0, 2, 1")
        a("v_lshl_add_u32 v5, v8, 3, v30")
        a("v_lshl_add_u32 v5, v2, 6, v5")
        a("s_lshl_b32 s42, s3, 7")
        a("v_add_u32 v31, s42, v5")
        a("v_lshl_add_u32 v144, v4, 4, v15")
        a("s_lshl_b32 s42, s3, 2")
        a("v_add_u32 v145, s42, v144")
        a("v_lshlrev_b32 v147, 10, v4")
        a("v_add_u32 v153, v152, v15")
        a("v_add_u32 v146, s42, v153")
        if self.th_q:
            self.lwait(C_PROG, "%d" % self.th_q, cache="s40")
        if self.sdet == 2: self.sstamp(12)
        def pubq():
            self.execm(0x0003)
            self.st(140, "v159", "s51", "sc1")
            self.execall()
        def qdone(b):
            for k in range(0, 8, 2):
                a("v_and_b32 v%d, s34, v%d" % (b + k, b + k))
            self.tred2([b, b + 4], ["v4", "v5"])
        def kread():
            a("s_lshl_b32 s43, s3, 4")
            a("s_add_u32 s43, s43, 48")
            self.lwait(C_PROG, "s43", cache="s40")
            self.stamp(5)
            for tau in range(4):
                for t in range(4):
                    r = 64 + 16 * tau + 4 * t
                    a("ds_read_b128 v[%d:%d], v%d offset:%d" % (r, r + 3, 24 + t, 4096 * tau))
        self.pgather([160 + 8 * k for k in range(self.nsq)], [("v152", "s44", 0), ("v152", "s44", 1024)], qdone, self.dq,
                     alt=["s44"], tag="s101", tmask=0x0f, onalt=pubq, pre=(kread if self.kfirst else None))
        if self.sdet == 2 and self.debug: a("s_add_u32 s90, s35, 1")
        self.stamp(6)
        if 'g' in self.kill: self.finish()
        a("v_cvt_pk_bf16_f32 v4, v4, v5")
        a("ds_write_b16 v28, v4")
        a("ds_write_b16_d16_hi v28, v4 offset:128")
        a("v_and_b32 v9, 0xf0, v9")
        a("v_cmp_ne_u32 vcc, 0, v9")
        a("s_cbranch_vccz L_c_same")
        a("ds_write_b32 v15, v16 offset:%d" % C_DIFF)
        a.label("L_c_same")
        self.lsignal(C_B)
        if not self.kfirst: kread()
        if self.sdet == 1: self.sstamp(10)
        self.lwait(C_B, "4", hook=pubq)
        if self.sdet == 1: self.sstamp(11)
        for t in range(4):
            a("ds_read_b128 v[%d:%d], v29 offset:%d" % (48 + 4 * t, 51 + 4 * t, S_Q + 64 * t))
        a("ds_read_b32 v6, v15 offset:%d" % C_DIFF)
        a("ds_read_b32 v9, v15 offset:%d" % C_PROG)
        a("v_add_u32 v24, %d, v13" % L_V)
        a("v_add_u32 v25, %d, v14" % L_V)
        for t in range(4):
            a("s_waitcnt lgkmcnt(%d)" % (5 - t))
            for tau in range(4):
                self.mfma((128, 132, 136, 32)[tau], 64 + 16 * tau + 4 * t, 48 + 4 * t, t == 0)
        a("s_waitcnt lgkmcnt(0)")
        self.lsignal(C_K)
        a("v_readfirstlane_b32 s41, v6")
        a("v_readfirstlane_b32 s40, v9")
        a("s_cmp_eq_u32 s41, 0")
        a("s_cbranch_scc1 L_c_same2")
        pubq()
        a.label("L_c_same2")
        a("s_cmp_ge_i32 s40, 160")
        a("s_cselect_b32 s49, 1, 0")
        a("s_cbranch_scc0 L_c_vlate")
        self.tr128(64, 0, range(8), va=24)
        a.label("L_c_vlate")
        for tau in (1, 2, 3):
            for r in range(4):
                a("v_cndmask_b32 v%d, v%d, v%d, s[%d:%d]" % (128 + r, 128 + r, (128, 132, 136, 32)[tau] + r, 54 + 2 * tau, 55 + 2 * tau))
        def unpack(dlo, src):
            a("v_lshlrev_b32 v%d, 16, v%d" % (dlo, src))
            a("v_and_b32 v%d, 0xffff0000, v%d" % (dlo + 1, src))
        a("v_cvt_pk_bf16_f32 v4, v128, v129")
        a("v_cvt_pk_bf16_f32 v5, v130, v131")
        unpack(128, 4); unpack(130, 5)
        for r in range(4):
            a("v_mul_f32 v%d, %s, v%d" % (128 + r, f2u(128 ** -0.5), 128 + r))
        a("v_cvt_pk_bf16_f32 v4, v128, v129")
        a("v_cvt_pk_bf16_f32 v5, v130, v131")
        unpack(128, 4); unpack(130, 5)
        a("v_max3_f32 v4, v128, v129, v130")
        a("v_max_f32 v4, v4, v131")
        a("s_mov_b32 s42, %s" % f2u(L2E))
        self.dpp("v_max_f32", "v4", "row_ror:4")
        self.dpp("v_max_f32", "v4", "row_ror:8")
        self.allred_hi("v4", "v5", "v_max_f32")
        if self.sdet == 1: self.sstamp(12)
        a("v_mul_f32 v5, %s, v4" % f2u(-L2E))
        for r in range(4):
            a("v_fma_f32 v%d, v%d, s42, v5" % (128 + r, 128 + r))
        for r in range(4):
            a("v_exp_f32 v%d, v%d" % (128 + r, 128 + r))
        a("s_mov_b64 exec, 15")
        a("ds_write_b32 v145, v4 offset:%d" % S_WM)
        a("s_mov_b64 exec, -1")
        a("v_cvt_pk_bf16_f32 v4, v128, v129")
        a("v_cvt_pk_bf16_f32 v5, v130, v131")
        a("ds_write_b64 v31, v[4:5] offset:%d" % S_P)
        unpack(128, 4); unpack(130, 5)
        a("v_add_f32 v128, v128, v129")
        a("v_add_f32 v130, v130, v131")
        a("v_add_f32 v6, v128, v130")
        a("ds_write_b32 v146, v6 offset:%d" % S_C)
        self.lsignal(C_D)
        if self.sdet == 1: self.sstamp(14)
        self.lwait(C_D, "4")
        self.stamp(7)
        a("ds_read_b128 v[136:139], v144 offset:%d" % S_WM)
        for c in range(8):
            a("ds_read_b128 v[%d:%d], v30 offset:%d" % (184 + 4 * c, 187 + 4 * c, S_P + 64 * c))
        a("ds_read_b128 v[140:143], v153 offset:%d" % S_C)
        a("s_lshl_b32 s43, s32, 12")
        a("s_lshl_b32 s44, s33, 3")
        a("s_add_u32 s43, s43, s44")
        a("s_lshl_b32 s44, s3, 8")
        a("s_add_u32 s43, s43, s44")
        a("s_add_u32 s44, s43, %d" % W_ST)
        a("s_add_u32 s46, s30, 1")
        a("s_and_b32 s46, s46, 0xffff")
        a("s_mov_b32 s43, %s" % f2u(L2E))
        def pv(c, base):
            for ct in range(2):
                self.mfma(32 + 8 * (c >> 1) + 4 * ct, base + 4 * ct, 184 + 4 * c, c % 2 == 0)
        def factors():
            a("v_max3_f32 v132, v136, v137, v138")
            a("v_max_f32 v132, v132, v139")
            a("v_mul_f32 v4, %s, v132" % f2u(-L2E))
            for i in range(4):
                a("v_fma_f32 v%d, v%d, s43, v4" % (20 + i, 136 + i))
            for i in range(4):
                a("v_exp_f32 v%d, v%d" % (20 + i, 20 + i))
        def comb(w):
            for r in range(4):
                a("v_cndmask_b32 v%d, v%d, v%d, s[56:57]" % (32 + 8 * w + r, 32 + 8 * w + r, 36 + 8 * w + r))
            for r in range(4):
                if w == 0: a("v_mul_f32 v%d, v%d, v20" % (128 + r, 32 + r))
                else: a("v_fmac_f32 v%d, v%d, v%d" % (128 + r, 32 + 8 * w + r, 20 + w))
        def stats():
            a("v_mul_f32 v133, v140, v20")
            for i in (1, 2, 3):
                a("v_fmac_f32 v133, v%d, v%d" % (140 + i, 20 + i))
            self.dpp("v_add_f32", "v133", "row_ror:4")
            self.dpp("v_add_f32", "v133", "row_ror:8")
            self.allred_hi("v133", "v5", "v_add_f32")
            a("v_or_b32 v132, s46, v132")
            a("v_and_or_b32 v133, v133, s34, v17")
            a("s_mov_b64 exec, 15")
            self.store_local(132, "v147", "s44", x=2)
            self.execall()
        a("s_cmp_eq_u32 s49, 1")
        a("s_cbranch_scc0 L_c_pvslow")
        a("s_waitcnt lgkmcnt(7)")
        pv(0, 64); pv(1, 72)
        factors()
        a("s_waitcnt lgkmcnt(5)")
        pv(2, 80); pv(3, 88)
        a("s_waitcnt lgkmcnt(3)")
        pv(4, 96)
        comb(0)
        pv(5, 104)
        a("s_waitcnt lgkmcnt(0)")
        pv(6, 112)
        comb(1)
        pv(7, 120)
        stats()
        comb(2)
        a("s_branch L_c_pvdone")
        a.label("L_c_pvslow")
        a("s_waitcnt lgkmcnt(0)")
        factors()
        stats()
        for batch in ([0, 1, 2, 3], [4, 5], [6], [7]):
            self.lwait(C_PROG, "%d" % (104 + 8 * batch[-1]), cache="s40")
            self.tr128(64, 0, batch, va=24)
            if batch[0] == 4: comb(0); comb(1)
            if batch[0] == 7: comb(2)
            n = len(batch)
            for i, c in enumerate(batch):
                a("s_waitcnt lgkmcnt(%d)" % min(15, 4 * (n - 1 - i)))
                pv(c, 64 + 8 * i)
        a.label("L_c_pvdone")
        self.stamp(8)
        comb(3)
        self.tag4(128)
        self.execm(0x00ff)
        self.store_local(128, "v154", "s96")
        self.lsignal(C_O)
        self.stamp(9)
        if self.sdet == 4 and self.debug:
            a("s_waitcnt vmcnt(0)")
            self.sstamp(1)
        a("s_cmp_eq_u32 s55, 1")
        a("s_cbranch_scc1 L_ffn")
        a("s_cmp_eq_u32 s55, 0")
        a("s_cbranch_scc1 L_wo")
        self.finish()

    def out2(self, d0, d1):
        for r in range(4):
            self.a("v_cndmask_b32 v%d, v%d, v%d, s[62:63]" % (d0 + r, d0 + r, d1 + r))
        self.tag4(d0)

    def wo_stage(self):
        a = self.a
        a.label("L_wo")
        a("s_mov_b32 s44, %s" % f2u(L2E))
        a("s_and_b32 s47, s46, 0xff00")
        if self.owait: self.lwait(C_O, "4")
        a("s_lshl_b32 s45, s32, 7")
        a("s_add_u32 s45, s45, %d" % W_H)
        a("s_lshl_b32 s42, s33, 2")
        a("s_add_u32 s42, s42, s3")
        a("s_cmp_eq_u32 s42, %d" % (4 * self.hj))
        a("s_cselect_b32 s45, s45, 0x%x" % WS_SIZE)
        a("v_and_b32 v7, 31, v0")
        a("v_lshlrev_b32 v7, 2, v7")
        if not self.oearly: self.lwait(C_PROG, "192", cache="s40")
        def tile():
            if self.oearly: self.lwait(C_PROG, "192", cache="s40")
            self.tr128(64, L_K, range(4))
            self.stamp(10)
        def each(i):
            if i == 1:
                for q in (24, 26, 28, 30):
                    a("v_xor_b32 v%d, s47, v%d" % (q, q))
                    a("v_xor_b32 v%d, s31, v%d" % (q + 1, q + 1))
                a("v_or3_b32 v6, v24, v26, v28")
                a("v_or3_b32 v9, v25, v27, v9")
                a("v_or_b32 v6, v6, v30")
                a("v_or3_b32 v9, v29, v31, v9")
                a("v_bfe_u32 v6, v6, 8, 8")
                a("v_or_b32 v9, v9, v6")
                a("v_max3_f32 v4, v24, v26, v28")
                a("v_max_f32 v4, v4, v30")
                self.allred_hi("v4", "v5", "v_max_f32")
                a("v_mul_f32 v4, %s, v4" % f2u(-L2E))
                for q in range(4):
                    a("v_fma_f32 v%d, v%d, s44, v4" % (20 + q, 24 + 2 * q))
                for q in range(4):
                    a("v_exp_f32 v%d, v%d" % (20 + q, 20 + q))
                a("v_mul_f32 v5, v20, v25")
                for q in (1, 2, 3):
                    a("v_fmac_f32 v5, v%d, v%d" % (20 + q, 25 + 2 * q))
                self.allred_hi("v5", "v6", "v_add_f32")
                a("v_rcp_f32 v5, v5")
            elif i == 2:
                for r in range(4):
                    a("v_mul_f32 v%d, v%d, v20" % (32 + r, 32 + r))
            elif i > 2:
                for r in range(4):
                    a("v_fmac_f32 v%d, v%d, v%d" % (32 + r, 24 + 4 * i + r, 18 + i))
        self.gather([(24, "v156", "s100", 0), (28, "v156", "s100", 16)] + [(32 + 4 * i, "v152", "s99", 1024 * i) for i in range(4)],
                    fl=self.lfl, each=each, pre=tile)
        if self.hint:
            a("buffer_store_dword v17, v7, s[36:39], s45 offen sc1")
        self.rounds(1)
        self.stamp(11)
        self.tred(32, "v4")
        a("v_mul_f32 v4, v4, v5")
        a("v_cvt_pk_bf16_f32 v4, v4, v4")
        a("ds_write_b16 v11, v4 offset:%d" % S_O)
        a("s_waitcnt lgkmcnt(0)")
        a("s_barrier")
        for t in range(4):
            a("ds_read_b128 v[%d:%d], v10 offset:%d" % (48 + 4 * t, 51 + 4 * t, S_O + 64 * t))
        for t in range(4):
            a("s_waitcnt lgkmcnt(%d)" % (3 - t))
            self.mfma(128, 64 + 8 * t, 48 + 4 * t, t == 0)
            self.mfma(132, 68 + 8 * t, 48 + 4 * t, t == 0)
        self.execm(0x000f)
        self.out2(128, 132)
        self.st(128, "v155", "s97", "sc1")
        self.execall()
        self.stamp(12)
        self.finish()

    def ffn_stage(self):
        a = self.a
        a.label("L_ffn")
        early = self.fd == 2 and self.xearly
        self.modgather([2, 3, 4, 5], ["v20", "v4", "v22", "v21"], "s54", each=(lambda i: self.lsignal(C_X) if i == 0 else None) if early else None)
        if self.fd == 2 and not early: self.lsignal(C_X)
        a("v_add_f32 v22, 1.0, v22")
        self.rbf("v22")
        a("ds_write_b16_d16_hi v149, v22 offset:%d" % (S_X + 2 * 272))
        a("ds_write_b16_d16_hi v149, v4 offset:%d" % (S_X + 8 * 272))
        a("v_mov_b32 v5, 0x3f80")
        a("ds_write_b16 v149, v5 offset:%d" % (S_X + 6 * 272))
        a("s_add_u32 s44, s99, 4096")
        self.smask(60, 0x0030)
        self.lwait(C_PROG, "192", cache="s40")
        self.tr64(32, "v12", L_K)
        self.tr128(64, L_K + 16384, range(2))
        self.stamp(10)
        if self.hint:
            a("v_and_b32 v7, 7, v0")
            a("v_lshlrev_b32 v7, 7, v7")
            a("s_mov_b32 s45, %d" % W_H)
            a("s_mov_b32 s35, 0")
            a.label("L_hint")
            a("buffer_load_dword v6, v7, s[36:39], s45 offen sc1")
            a("s_add_u32 s35, s35, 1")
            a("s_cmp_lt_u32 s35, %d" % TO_V)
            a("s_cbranch_scc0 L_hinted")
            a("s_waitcnt vmcnt(0)")
            a("v_cmp_ne_u32 vcc, s31, v6")
            a("s_cbranch_vccnz L_hint")
            a.label("L_hinted")
            if self.sdet == 3: self.sstamp(5)
        def wsum(i):
            if i:
                for r in (0, 2):
                    a("v_pk_add_f32 v[%d:%d], v[%d:%d], v[%d:%d]" % (96 + r, 97 + r, 96 + r, 97 + r, 96 + 4 * i + r, 97 + 4 * i + r))
        self.gather([(96 + 4 * i, "v152", "s99" if i < 4 else "s44", 1024 * (i & 3)) for i in range(8)], each=wsum)
        self.rounds(1)
        self.stamp(11)
        self.tred(96, "v4")
        a("v_fma_f32 v23, v20, v4, v19")
        a("v_cvt_pk_bf16_f32 v5, v23, v23")
        a("v_lshlrev_b32 v23, 16, v5")
        a("ds_write_b16 v149, v5 offset:%d" % (S_X + 4 * 272))
        a("v_mul_f32 v4, v23, v22")
        a("v_cvt_pk_bf16_f32 v4, v4, v4")
        a("ds_write_b16 v149, v4 offset:%d" % S_X)
        a("s_waitcnt lgkmcnt(0)")
        a("s_barrier")
        for t in range(4):
            a("ds_read_b128 v[%d:%d], v157 offset:%d" % (48 + 4 * t, 51 + 4 * t, S_X + 64 * t))
        for t in range(4):
            a("s_waitcnt lgkmcnt(%d)" % (3 - t))
            self.mfma(128, 32 + 4 * t, 48 + 4 * t, t == 0)
            self.mfma(132, 48 + 4 * t, 48 + 4 * t, t == 0)
        self.execm(0x033f)
        for r in range(4):
            a("v_cndmask_b32 v%d, v%d, v%d, s[60:61]" % (128 + r, 128 + r, 132 + r))
        self.tag4(128)
        self.store_local(128, "v155", "s97")
        self.execall()
        self.stamp(12)
        self.gather([(96, "v152", "s100", 0), (100, "v152", "s100", 1024)], fl=self.lfl)
        self.rounds(2)
        self.stamp(13)
        self.tred2([100, 96], ["v5", "v4"])
        a("v_readlane_b32 s42, v5, 1")
        a("v_readlane_b32 s43, v5, 21")
        a("v_readlane_b32 s44, v5, 33")
        a("v_readlane_b32 s45, v5, 37")
        a("v_mov_b32_dpp v6, v4 row_ror:8 row_mask:0xf bank_mask:0xf")
        a("v_mov_b32_dpp v7, v5 row_ror:8 row_mask:0xf bank_mask:0xf")
        a("v_mov_b32 v8, s42")
        a("v_mov_b32 v9, s44")
        self.execm(0x00f0)
        a("v_mov_b32 v8, s43")
        a("v_mov_b32 v9, s45")
        self.execm(0x00ff)
        a("v_mul_f32 v9, %s, v9" % f2u(1.0 / 512))
        a("v_mul_f32 v8, %s, v8" % f2u(1.0 / 512))
        a("v_fma_f32 v8, -v9, v9, v8")
        a("v_max_f32 v8, 0, v8")
        a("v_add_f32 v8, %s, v8" % f2u(1e-5))
        a("v_rsq_f32 v8, v8")
        a("v_fma_f32 v4, -v9, v6, v4")
        a("v_fma_f32 v4, v4, v8, v7")
        a("v_mul_f32 v5, %s, v4" % f2u(-L2E))
        a("v_exp_f32 v5, v5")
        a("v_add_f32 v5, 1.0, v5")
        a("v_rcp_f32 v5, v5")
        a("v_mul_f32 v4, v4, v5")
        a("v_cvt_pk_bf16_f32 v4, v4, v4")
        a("ds_write_b16 v158, v4")
        self.execall()
        a("s_waitcnt lgkmcnt(0)")
        a("s_barrier")
        for t in range(2):
            a("ds_read_b128 v[%d:%d], v10 offset:%d" % (48 + 4 * t, 51 + 4 * t, S_U + 64 * t))
        for t in range(2):
            a("s_waitcnt lgkmcnt(%d)" % (1 - t))
            self.mfma(128, 64 + 8 * t, 48 + 4 * t, t == 0)
            self.mfma(132, 68 + 8 * t, 48 + 4 * t, t == 0)
        self.execm(0x000f)
        self.out2(128, 132)
        self.st(128, "v156", "s98", "sc1")
        self.execall()
        self.stamp(14)
        a("s_lshr_b32 s42, s53, 1")
        a("s_cmp_eq_u32 s42, s3")
        a("s_cbranch_scc0 L_ffn_end")
        a("s_and_b32 s46, s53, 1")
        a("s_mul_i32 s42, s46, 3584")
        a("s_lshl_b32 s43, s53, 7")
        a("s_sub_u32 s42, s42, s43")
        a("s_add_u32 s98, s98, s42")
        a("v_and_b32 v7, 0x1ff, v152")
        if self.fdly > 0: a("s_sleep %d" % self.fdly)
        if self.fdly < 0: a("s_waitcnt vmcnt(0)")
        def fsum(i):
            if i == 3: a("s_mov_b32 exec_hi, 0")
            wsum(i)
            if i == 3: self.execall()
        self.gather([(96, "v152", "s98", 0), (100, "v152", "s98", 1024), (104, "v152", "s98", 2048), (108, "v7", "s98", 3072)], each=fsum)
        self.rounds(3)
        self.tred(96, "v4")
        self.dpp("v_add_f32", "v4", "row_ror:8")
        a("v_fma_f32 v4, v21, v4, v23")
        a("v_cvt_pk_bf16_f32 v4, v4, v4")
        ap = a.autopad; a.autopad = 0
        a("s_lshl_b32 s42, s46, 3")
        a("s_lshl_b32 s42, 0x00ff00ff, s42")
        a("s_mov_b32 exec_lo, s42\ns_mov_b32 exec_hi, s42")
        a("global_store_short v148, v4, s[24:25]")
        a("s_cmp_eq_u32 s2, 128")
        a("s_cbranch_scc0 L_ffn_end")
        a("s_add_u32 s42, s30, 1")
        a("s_mov_b64 exec, 1")
        a("v_mov_b32 v5, s42")
        a("v_mov_b32 v6, 0")
        a("buffer_store_dword v5, v6, s[36:39], 0 offen sc1")
        a.label("L_ffn_end")
        self.stamp(15)
        self.finish()
        a.autopad = ap

    def dump(self):
        a = self.a
        a.label("L_dump")
        a("s_mov_b64 exec, -1")
        a("s_waitcnt lgkmcnt(0)")
        for i in range(16):
            a("v_writelane_b32 v1, s%d, %d" % (64 + 2 * i, i))
        if self.calib:
            a("s_cmp_gt_u32 s3, 3")
            a("s_cbranch_scc1 L_nocal")
            a.label("L_cal")
            a("s_memrealtime s[42:43]")
            a("s_waitcnt lgkmcnt(0)")
            a("s_sub_u32 s42, s42, s64")
            a("s_cmp_lt_u32 s42, %d" % self.calib)
            a("s_cbranch_scc1 L_cal")
            a.label("L_nocal")
            if not self.hdebug:
                a("s_endpgm")
        if self.hdebug:
            a("s_cmp_lg_u32 s3, 0")
            a("s_cbranch_scc1 L_end")
            a("s_not_b32 s42, s64")
            a("v_writelane_b32 v1, s42, 1")
            a("v_lshlrev_b32 v2, 2, v0")
            a("s_mov_b64 exec, 0xffff")
            a("global_atomic_umax v2, v1, s[26:27]")
            a("s_endpgm")
        a("s_lshl_b32 s42, s2, 3")
        a("s_add_u32 s42, s42, s3")
        a("s_lshl_b32 s42, s42, 6")
        a("s_add_u32 s42, s42, %d" % W_STAMP)
        a("v_lshlrev_b32 v2, 2, v0")
        a("v_add_u32 v2, s42, v2")
        a("s_mov_b64 exec, 0xffff")
        a("global_store_dword v2, v1, s[28:29]")
        a("s_endpgm")

if __name__ == "__main__":
    import argparse
    ap = argparse.ArgumentParser()
    ap.add_argument("-o", default="cdna_kernels/" + NAME + ".s")
    ap.add_argument("--cfg", default="")
    args = ap.parse_args()
    g = Gen(**eval('dict(%s)' % args.cfg))
    open(args.o, "w").write(g.build())
    print("written", args.o, "nops inserted", g.a.nops, "pads", g.a.npad)
```

```python
import sys, struct
from asmlib import Asm

NAME = "adaLN_cond__sliding_block_cached__dense_activation_silu__decode"
KNAME = NAME + "_kernel"

L_WQ = 0
L_K = 16384
L_V = L_K + 65536
L_MOD = L_V + 49152
L_S = L_V + 65536
C_PROG, C_MOD, C_A, C_K, C_B, C_C, C_D, C_DIFF, C_ALPHA, C_O, C_X = 0, 4, 8, 12, 16, 20, 24, 28, 32, 36, 40
S_ALPHA = 128
S_WM = 256
S_WL = 320
S_C = 512
S_H = 3072
S_Q = 3712
S_P = 4992
S_O = 7296
S_U = 7936
S_X = 8576
LDS_BYTES = 163840
W_E = 0
W_MOD = 0x2000
W_Q = 0x20000
W_ST = 0xC8000
W_H = 0x44000
W_W = 0x48000
W_U = 0x68000
W_F = 0xA0000
W_O = 0x100000
W_DUAL = 0x200000
W_STAMP = 0x300000
WS_SIZE = 0x400000

PF_CHUNK = 512
L2E = 1.4426950408889634
TO_V = 30000
TO_L = 600000
N_ALT = 24

def f2u(x):
    return "0x%08x" % struct.unpack("<I", struct.pack("<f", x))[0]

class Gen:
    def __init__(self, W=17, debug=False, warm=1024, forcediff=False, sleepv=0, sleepl=0, kill='', prio=3,
                 hdebug=False, calib=0, prew=True, th_h=48, th_q=72, pb=32, fd=2, stamps=None, sdet=False, qb=True, Wa=None, ksplit=64, Wf=None, xpoll=None, preq=True, qfl='sc1', hfl='sc1', nsh=1, nsq=2, dh=16, dq=0, prex=True, clk=False, lfl='sc1', pfl='', tmode='np', tth=0, rth=136, Ww=None, mg=True, kfirst=True, Wz=None, vsplit=48, tlb=False, Wn=None, etouch='nt', rot=(2, 8), hint=True, hj=0, fdly=-1, adapt=None, zk=None, peer=None, cls=(20, 23, 'three'), owait=False, xearly=True, oearly=False, xnt=False, pfnt=False, epromo=False, wb=0, unr=True, rnp=False, wol=False, st2=True, hpre=False, hprex=False, h1=False, wmid=False, ms=True):
        self.a = Asm()
        self.cold = []
        self.W = W
        self.debug = debug or hdebug
        self.warm = warm
        self.forcediff = forcediff
        self.sleepv = sleepv; self.sleepl = sleepl; self.kill = kill; self.prio = prio
        self.hdebug = hdebug; self.calib = calib; self.prew = prew
        self.th_h = th_h; self.th_q = th_q; self.pb = pb; self.fd = fd; self.stamps = stamps; self.sdet = sdet; self.qb = qb
        self.Wa = Wa or W; self.ksplit = ksplit; self.Wf = Wf or self.Wa; self.xpoll = xpoll; self.preq = preq; self.qfl = qfl; self.hfl = hfl
        self.nsh = nsh; self.nsq = nsq; self.dh = dh; self.dq = dq; self.prex = prex; self.clk = clk; self.lfl = lfl; self.pfl = pfl; self.tmode = tmode; self.tth = tth; self.rth = rth; self.Ww = Ww; self.mg = mg; self.kfirst = kfirst; self.Wz = Wz; self.vsplit = vsplit; self.tlb = tlb; self.Wn = Wn; self.etouch = etouch; self.rot = rot; self.hint = hint; self.hj = hj; self.fdly = fdly; self.adapt = adapt; self.zk = zk; self.peer = peer; self.cls = cls; self.owait = owait; self.xearly = xearly; self.oearly = oearly; self.xnt = ' nt' if xnt else ''; self.pfnt = ' nt' if pfnt else ''; self.epromo = epromo; self.wb = wb; self.unr = unr; self.rnp = rnp; self.wol = wol; self.st2 = st2; self.hpre = hpre; self.hprex = hprex; self.h1 = h1; self.wmid = wmid; self.ms = ms

    def sstamp(self, i):
        if self.debug and self.sdet:
            self.a("s_memrealtime s[%d:%d]" % (64 + 2 * i, 65 + 2 * i))

    def rounds(self, slot, pre=False):
        if self.debug and self.sdet == 3:
            self.a("s_add_u32 s%d, s35, %d" % (64 + 2 * slot, 1 if pre else 0))

    def stamp(self, i):
        if self.sdet in (3, 4) and i in (1, 2, 3) and not getattr(self, 'inld', False): return
        if self.clk and self.debug:
            if i in (1, 9, 14): return
            if i in (0, 8, 15): self.a("s_memtime s[%d:%d]" % (64 + 2 * {0: 1, 8: 9, 15: 14}[i], 65 + 2 * {0: 1, 8: 9, 15: 14}[i]))
        if self.sdet in (1, 2) and i in (10, 11, 12, 13, 14): return
        if self.debug and (self.stamps is None or i == 0 or i in self.stamps):
            self.a("s_memrealtime s[%d:%d]" % (64 + 2 * i, 65 + 2 * i))

    def execm(self, m16):
        v = m16 | (m16 << 16)
        self.a("s_mov_b32 exec_lo, 0x%08x\ns_mov_b32 exec_hi, 0x%08x" % (v, v))

    def execall(self):
        self.a("s_mov_b64 exec, -1")

    def smask(self, s, m16):
        v = m16 | (m16 << 16)
        self.a("s_mov_b32 s%d, 0x%08x\ns_mov_b32 s%d, 0x%08x" % (s, v, s + 1, v))

    def lwait(self, cnt, needv, cache=None, vt="v9", vls="v15", st="s42", hook=None):
        a = self.a
        ok = a.newlab("Lok"); sp = a.newlab("Lsp")
        s = cache or st
        if cache:
            a("s_cmp_ge_i32 %s, %s" % (cache, needv))
            a("s_cbranch_scc1 %s" % ok)
        a("s_mov_b32 s35, 0")
        a.label(sp)
        a("ds_read_b32 %s, %s offset:%d" % (vt, vls, cnt))
        a("s_add_u32 s35, s35, 1")
        if hook:
            a("s_cmp_eq_u32 s35, 256")
            a("s_cbranch_scc1 %s_h" % sp)
            a.label("%s_n" % sp)
            self.cold.append(("%s_h" % sp, hook, "%s_n" % sp))
        a("s_cmp_lt_u32 s35, %d" % TO_L)
        a("s_cbranch_scc0 L_end")
        a("s_waitcnt lgkmcnt(0)")
        a("v_readfirstlane_b32 %s, %s" % (s, vt))
        a("s_cmp_ge_i32 %s, %s" % (s, needv))
        a("s_cbranch_scc0 %s" % sp)
        a.label(ok)

    def lsignal(self, cnt):
        a = self.a
        a("s_mov_b64 exec, 1")
        a("ds_add_u32 v15, v16 offset:%d" % cnt)
        a("s_mov_b64 exec, -1")

    def gather(self, loads, acc="v9", fl="sc1", alt=(), tag="s31", tmask=0xff, each=None, pre=None):
        a = self.a
        tr = a.newlab("Ltry"); chk = a.newlab("Lchk")
        n = len(loads)
        def issue():
            for (r, va, so, imm) in loads:
                a("buffer_load_dwordx4 v[%d:%d], %s, s[36:39], %s offen offset:%d %s" % (r, r + 3, va, so, imm, fl))
        if pre:
            issue()
            pre()
            a("s_mov_b32 s35, 0")
            a("s_branch %s" % chk)
        else:
            a("s_mov_b32 s35, 0")
        a.label(tr)
        issue()
        a("s_add_u32 s35, s35, 1")
        if alt:
            a("s_cmp_lt_u32 s35, %d" % N_ALT)
            a("s_cselect_b32 s43, 0, 0x%x" % W_DUAL)
            for so in alt:
                a("s_or_b32 %s, %s, s43" % (so, so))
        a("s_cmp_lt_u32 s35, %d" % TO_V)
        a("s_cbranch_scc0 L_end")
        a.label(chk)
        for i, (r, va, so, imm) in enumerate(loads):
            a("s_waitcnt vmcnt(%d)" % (n - 1 - i))
            for k in (0, 2):
                a("v_xor_b32 v%d, %s, v%d" % (r + k, tag, r + k))
            if i == 0:
                a("v_or_b32 %s, v%d, v%d" % (acc, r, r + 2))
            else:
                a("v_or3_b32 %s, v%d, v%d, %s" % (acc, r, r + 2, acc))
            if i == n - 1:
                a("v_and_b32 v8, 0x%x, %s" % (tmask, acc))
                a("v_cmp_ne_u32 vcc, 0, v8")
            if each: each(i)
        a("s_cbranch_vccnz %s" % tr)

    def mgather(self, loads, m0=4):
        a = self.a
        ap = a.autopad; a.autopad = 0
        if self.warm: a.pad()
        tr = a.newlab("Ltry"); ok = a.newlab("Lok")
        n = len(loads)
        for i in range(n):
            a("s_mov_b64 s[%d:%d], -1" % (m0 + 2 * i, m0 + 2 * i + 1))
        a("s_mov_b32 s35, 0")
        a.label(tr)
        for i, (r, va, so, imm) in enumerate(loads):
            a("s_mov_b64 exec, s[%d:%d]" % (m0 + 2 * i, m0 + 2 * i + 1))
            a("buffer_load_dwordx4 v[%d:%d], %s, s[36:39], %s offen offset:%d sc1" % (r, r + 3, va, so, imm))
        for i, (r, va, so, imm) in enumerate(loads):
            a("s_mov_b64 exec, s[%d:%d]" % (m0 + 2 * i, m0 + 2 * i + 1))
            a("s_waitcnt vmcnt(%d)" % (n - 1 - i))
            a("v_xor_b32 v%d, s31, v%d" % (r, r))
            a("v_xor_b32 v%d, s31, v%d" % (r + 2, r + 2))
            a("v_or_b32 v8, v%d, v%d" % (r, r + 2))
            a("v_cmp_ne_u32_sdwa s[%d:%d], v8, v159 src0_sel:BYTE_0 src1_sel:DWORD" % (m0 + 2 * i, m0 + 2 * i + 1))
        a("s_or_b64 vcc, s[%d:%d], s[%d:%d]" % (m0, m0 + 1, m0 + 2, m0 + 3))
        for i in range(2, n):
            a("s_or_b64 vcc, vcc, s[%d:%d]" % (m0 + 2 * i, m0 + 2 * i + 1))
        a("s_cbranch_scc0 %s" % ok)
        a("s_add_u32 s35, s35, 1")
        a("s_cmp_lt_u32 s35, %d" % TO_V)
        a("s_cbranch_scc1 %s" % tr)
        a("s_endpgm")
        a.label(ok)
        a("s_mov_b64 exec, -1")
        if self.warm: a.pad()
        a.autopad = ap

    def pgather(self, sets, loads, done, delay, alt=(), tag="s31", tmask=0xff, onalt=None, pre=None, fl="sc1"):
        a = self.a
        n = len(loads); ns = len(sets)
        tr = a.newlab("Ltry"); fin = a.newlab("Lfin")
        oks = [a.newlab("Lok") for _ in sets]
        def issue(b):
            for i, (va, so, imm) in enumerate(loads):
                a("buffer_load_dwordx4 v[%d:%d], %s, s[36:39], %s offen offset:%d %s" % (b + 4 * i, b + 4 * i + 3, va, so, imm, fl))
        a("s_mov_b32 s35, 0")
        for k, b in enumerate(sets[:-1]):
            issue(b)
            if delay: a("s_sleep %d" % delay)
        if pre:
            pre()
            a("s_mov_b32 s35, 0")
        a.label(tr)
        for k, b in enumerate(sets):
            issue(sets[(k - 1) % ns])
            for i in range(n):
                r = b + 4 * i
                a("s_waitcnt vmcnt(%d)" % (n * ns - 1 - i))
                for q in (0, 2):
                    a("v_xor_b32 v%d, %s, v%d" % (r + q, tag, r + q))
                if i == 0:
                    a("v_or_b32 v9, v%d, v%d" % (r, r + 2))
                else:
                    a("v_or3_b32 v9, v%d, v%d, v9" % (r, r + 2))
            a("v_and_b32 v8, 0x%x, v9" % tmask)
            a("v_cmp_ne_u32 vcc, 0, v8")
            a("s_cbranch_vccz %s" % oks[k])
        a("s_add_u32 s35, s35, 1")
        if alt:
            a("s_cmp_lg_u32 s35, %d" % N_ALT)
            a("s_cbranch_scc1 %s_n" % tr)
            for so in alt:
                a("s_or_b32 %s, %s, 0x%x" % (so, so, W_DUAL))
            if onalt: onalt()
            a.label("%s_n" % tr)
        a("s_cmp_lt_u32 s35, %d" % TO_V)
        a("s_cbranch_scc1 %s" % tr)
        a("s_endpgm")
        for k in reversed(range(ns)):
            a.label(oks[k])
            done(sets[k])
            if k: a("s_branch %s" % fin)
        a.label(fin)

    def tred(self, r, dst):
        a = self.a
        a("v_permlane32_swap_b32 v%d, v%d" % (r, r + 2))
        a("v_permlane32_swap_b32 v%d, v%d" % (r + 1, r + 3))
        a("v_add_f32 v%d, v%d, v%d" % (r, r, r + 2))
        a("v_add_f32 v%d, v%d, v%d" % (r + 1, r + 1, r + 3))
        a("v_permlane16_swap_b32 v%d, v%d" % (r, r + 1))
        a("v_add_f32 %s, v%d, v%d" % (dst, r, r + 1))

    def tred2(self, rs, dsts):
        a = self.a
        for r in rs:
            a("v_permlane32_swap_b32 v%d, v%d" % (r, r + 2))
            a("v_permlane32_swap_b32 v%d, v%d" % (r + 1, r + 3))
        for r in rs:
            a("v_add_f32 v%d, v%d, v%d" % (r, r, r + 2))
            a("v_add_f32 v%d, v%d, v%d" % (r + 1, r + 1, r + 3))
        for r in rs:
            a("v_permlane16_swap_b32 v%d, v%d" % (r, r + 1))
        for r, d in zip(rs, dsts):
            a("v_add_f32 %s, v%d, v%d" % (d, r, r + 1))

    def allred_hi(self, x, t, op):
        a = self.a
        a("v_mov_b32 %s, %s" % (t, x))
        a("v_permlane16_swap_b32 %s, %s" % (x, t))
        a("%s %s, %s, %s" % (op, x, x, t))
        a("v_mov_b32 %s, %s" % (t, x))
        a("v_permlane32_swap_b32 %s, %s" % (x, t))
        a("%s %s, %s, %s" % (op, x, x, t))

    def dpp(self, op, x, ctl):
        self.a("%s_dpp %s, %s, %s %s row_mask:0xf bank_mask:0xf" % (op, x, x, x, ctl))

    def rbf(self, x, t="v8"):
        self.a("v_cvt_pk_bf16_f32 %s, %s, %s" % (t, x, x))
        self.a("v_lshlrev_b32 %s, 16, %s" % (x, t))

    def tag4(self, r, vt="v17"):
        for k in (0, 2):
            self.a("v_and_or_b32 v%d, v%d, s34, %s" % (r + k, r + k, vt))

    def st(self, r, va, so, fl, x=4):
        self.a("buffer_store_dwordx%d v[%d:%d], %s, s[36:39], %s offen %s" % (x, r, r + x - 1, va, so, fl))

    def touch(self, r, va, so):
        self.a("buffer_load_dwordx4 v[%d:%d], %s, s[36:39], %s offen %s" % (r, r + 3, va, so, self.pfl))

    def store_dual(self, r, va, so):
        self.st(r, va, so, "")
        self.a("s_or_b32 %s, %s, 0x%x" % (so, so, W_DUAL))
        self.st(r, va, so, "sc1")

    def store_local(self, r, va, so, x=4):
        a = self.a
        l1 = a.newlab("Lst"); l2 = a.newlab("Lst")
        a("s_cmp_eq_u32 s41, 0")
        a("s_cbranch_scc0 %s" % l1)
        self.st(r, va, so, "", x)
        a.label(l2)
        self.cold.append((l1, lambda: self.st(r, va, so, "sc1", x), l2))

    def tr64(self, dst, va, base):
        for t in range(4):
            for h in range(2):
                r = dst + 4 * t + 2 * h
                self.a("ds_read_b64_tr_b16 v[%d:%d], %s offset:%d" % (r, r + 1, va, base + 4096 * t + 2048 * h))

    def tr128(self, dst, base, ts, va=13):
        for i, t in enumerate(ts):
            for ct in range(2):
                for h in range(2):
                    r = dst + 8 * i + 4 * ct + 2 * h
                    self.a("ds_read_b64_tr_b16 v[%d:%d], v%d offset:%d" % (r, r + 1, va + ct, base + 8192 * t + 4096 * h))

    def mfma(self, d, A, B, first):
        c = "0" if first else "v[%d:%d]" % (d, d + 3)
        self.a("v_mfma_f32_16x16x32_bf16 v[%d:%d], v[%d:%d], v[%d:%d], %s" % (d, d + 3, A, A + 3, B, B + 3, c))

    def finish(self):
        if self.debug:
            self.a("s_branch L_dump")
        else:
            self.a("s_endpgm")

    def build(self):
        a = self.a
        a.raw("; Fused decode block: adaLN modulation, LayerNorm, GQA sliding-window attention, output projection,")
        a.raw("; LayerNorm, SiLU FFN.  One persistent launch, one workgroup per CU, six waves:")
        a.raw("; @launch grid=(256,1,1) block=(384,1,1) lds=%d" % LDS_BYTES)
        a.raw('.amdgcn_target "amdgcn-amd-amdhsa--gfx950"')
        a.raw(".text\n.globl %s\n.p2align 8\n.type %s,@function" % (KNAME, KNAME))
        a.label(KNAME)
        self.prologue()
        self.loader()
        self.others()
        self.compute()
        self.wo_stage()
        self.flush_cold(("L_wo_st2",))
        self.ffn_stage()
        self.loader2()
        a.autopad = 0
        if self.warm:
            a.label("L_pad%d" % a.npad)
            a("s_branch L_warmed")
        self.aux()
        self.flush_cold()
        if self.debug:
            self.dump()
        a.label("L_end")
        a("s_endpgm")
        a.label("L_codeend")
        a.raw('.section .rodata,"a"\n.p2align 6\n.amdhsa_kernel %s' % KNAME)
        a.raw("  .amdhsa_next_free_vgpr %d\n  .amdhsa_next_free_sgpr 102\n  .amdhsa_accum_offset %d" % ((248, 248) if self.wmid else (216, 216)))
        a.raw("  .amdhsa_group_segment_fixed_size 0\n  .amdhsa_kernarg_size 104\n  .amdhsa_user_sgpr_count 2")
        a.raw("  .amdhsa_user_sgpr_kernarg_segment_ptr 1\n  .amdhsa_system_sgpr_workgroup_id_x 1\n  .amdhsa_float_denorm_mode_32 3\n.end_amdhsa_kernel")
        return a.text()

    def flush_cold(self, only=None):
        rest = []
        for l1, f, l2 in self.cold:
            if only is not None and l1 not in only:
                rest.append((l1, f, l2)); continue
            self.a.label(l1)
            f()
            self.a("s_branch %s" % l2)
        self.cold = rest

    def roles(self):
        a = self.a
        lab = a.newlab("Lrole")
        a("s_and_b32 s54, s33, 3")
        a("s_lshr_b32 s44, s33, 2")
        a("s_lshl_b32 s42, s32, 2")
        a("s_add_u32 s53, s42, s44")
        a("s_mov_b32 s55, 0")
        a("s_cmp_lt_u32 s33, 16")
        a("s_cbranch_scc1 %s" % lab)
        a("s_mov_b32 s55, 1")
        a("s_sub_u32 s53, s53, 4")
        a("s_cmp_lt_u32 s32, 4")
        a("s_cbranch_scc1 %s" % lab)
        a("s_mul_i32 s42, s32, 3")
        a("s_add_u32 s53, s42, s44")
        a("s_cmp_lt_u32 s33, 28")
        a("s_cselect_b32 s55, 1, 2")
        a.label(lab)

    def prologue(self):
        a = self.a
        self.stamp(0)
        a("s_load_dwordx16 s[4:19], s[0:1], 0")
        a("s_load_dwordx8 s[20:27], s[0:1], 64")
        a("s_load_dwordx2 s[28:29], s[0:1], 96")
        a("v_lshrrev_b32 v1, 6, v0")
        a("s_cmp_ge_u32 s2, 256")
        a("s_cbranch_scc1 L_end")
        a("v_and_b32 v0, 63, v0")
        a("v_readfirstlane_b32 s3, v1")
        a("s_and_b32 s32, s2, 7")
        a("s_lshr_b32 s33, s2, 3")
        a("s_lshl_b32 s43, s32, 3")
        a("s_add_u32 s42, s43, s33")
        a("s_add_u32 s43, s43, s42")
        a("s_add_u32 s42, s42, 0x70")
        a("s_cmp_lt_u32 s33, 24")
        a("s_cselect_b32 s52, s42, -1")
        a("s_cmp_lt_u32 s33, 16")
        a("s_cselect_b32 s52, s43, s52")
        a("v_mov_b32 v15, %d" % L_S)
        a("s_cmp_eq_u32 s3, 4")
        a("s_cbranch_scc1 L_loader")
        a("s_barrier")
        a("s_cmp_eq_u32 s3, 5")
        a("s_cbranch_scc0 L_nopf")
        a("s_getpc_b64 s[42:43]")
        a.label("L_pc")
        a("s_lshl_b32 s44, s33, 9")
        a("v_lshl_add_u32 v1, v0, 4, s44")
        a("v_min_u32 v1, L_codeend-L_pc-16, v1")
        a("s_mov_b32 exec_hi, 0")
        a("global_load_dwordx4 v[40:43], v1, s[42:43]" + self.pfnt)
        a("s_mov_b64 exec, -1")
        a.label("L_nopf")
        a("s_branch L_others")

    def wssrd(self):
        a = self.a
        a("s_waitcnt lgkmcnt(0)")
        a("s_load_dword s30, s[28:29], 0")
        a("s_mov_b32 s36, s28\ns_mov_b32 s37, s29")

    def others(self):
        a = self.a
        a.label("L_others")
        if self.debug:
            for i in range(1, 16):
                if not (self.clk and i == 1): a("s_mov_b32 s%d, 0" % (64 + 2 * i))
        a("s_mov_b32 s38, %d\ns_mov_b32 s39, 0x20000" % WS_SIZE)
        a("s_mov_b32 s34, 0xffffff00")
        a("v_mov_b32 v16, 1")
        self.roles()
        a("s_cmp_eq_u32 s3, 5")
        a("s_cbranch_scc0 L_compute")
        if self.etouch is not None:
            a("v_and_b32 v1, 7, v0")
            a("v_lshlrev_b32 v1, 5, v1")
            a("v_bfe_u32 v2, v0, 3, 1")
            a("v_lshl_add_u32 v2, v2, 13, v1")
            a("s_lshl_b32 s42, s32, 14")
            a("s_and_b32 s43, s33, 7")
            a("s_lshl_b32 s43, s43, 10")
            a("s_add_u32 s42, s42, s43")
            a("s_lshr_b32 s43, s33, 3")
            a("s_lshl_b32 s43, s43, 8")
            a("s_add_u32 s42, s42, s43")
            a("s_add_u32 s42, s42, %d" % W_Q)
            a("v_lshlrev_b32 v1, 5, v0")
            a("s_lshl_b32 s43, s52, 9")
            a("s_add_u32 s43, s43, %d" % W_MOD)
            a("s_cmp_lt_i32 s52, 0")
            a("s_cselect_b32 s43, 0x%x, s43" % WS_SIZE)
            a("s_mov_b64 exec, 0xffff")
            self.wssrd()
            a("buffer_load_dwordx4 v[44:47], v1, s[36:39], s43 offen %s" % self.etouch)
            a("buffer_load_dwordx4 v[48:51], v2, s[36:39], s42 offen %s" % self.etouch)
            a("s_mov_b64 exec, -1")
        else:
            self.wssrd()
        a("s_branch L_aux")

    def segloop(self, name, W):
        a = self.a
        def group(W, pub, ex=0):
            for k in range(8):
                a("s_waitcnt vmcnt(%d)" % (W - 1 + ex * (-(-(W - k) // 8))))
                if k == (W - 1) % 8:
                    pub()
                a("buffer_load_dwordx4 v%d, s[56:59], s44 offen nt lds" % (16 + k % 4))
                a("s_add_u32 m0, m0, s49")
                a("s_add_u32 s44, s44, s47")
                a("s_and_b32 s44, s44, s48")
        a.label(name)
        if self.peer and name == "L_seg":
            Whi, margin, thr, hw = self.peer
            def pubv(W):
                def f():
                    a("s_mov_b64 exec, 1")
                    a("v_add_u32 v14, 8, v14")
                    a("v_subrev_u32 v13, %d, v14" % (((W - 1) // 8 - (self.W - 1) // 8) * 8))
                    a("v_max_i32 v12, v12, v13")
                    a("ds_write_b32 v15, v12 offset:%d" % C_PROG)
                    a("s_mov_b64 exec, -1")
                return f
            a("v_readlane_b32 s60, v11, s33")
            a("v_add_u32 v8, 1, v8")
            if margin: a("s_add_u32 s60, s60, %d" % margin)
            a("v_cmp_lt_u32 vcc, s60, v11")
            a("s_mov_b64 exec, 1")
            a("global_store_byte v9, v8, s[26:27]")
            a("s_mov_b32 exec_lo, -1")
            a("global_load_ubyte v11, v10, s[26:27] sc1")
            a("s_mov_b32 exec_hi, -1")
            a("s_bcnt1_i32_b32 s60, vcc_lo")
            a("s_cmp_ge_u32 s60, %d" % thr)
            a("s_cbranch_scc1 L_seghi")
            group(W, pubv(W), 2)
            a("s_sub_u32 s45, s45, 1")
            a("s_cbranch_scc0 %s" % name)
            a("s_setpc_b64 s[50:51]")
            a.label("L_seghi")
            group(Whi, pubv(Whi), 2)
        elif self.cls and name == "L_seg":
            Ws = [W] + list(self.cls[:-1])
            for q in range(1, len(Ws)):
                a("s_cmp_eq_u32 s41, %d" % q)
                a("s_cbranch_scc1 L_segc%d" % q)
            for q, Wq in enumerate(Ws):
                a.label("L_segc%d" % q)
                group(Wq, self.publish)
                a("s_sub_u32 s45, s45, 1")
                a("s_cbranch_scc0 L_segc%d" % q)
                a("s_setpc_b64 s[50:51]")
            return
        elif self.adapt and name == "L_seg":
            Whi, t0, dt = self.adapt
            def pubv(W):
                def f():
                    a("s_mov_b64 exec, 1")
                    a("v_add_u32 v14, 8, v14")
                    a("v_subrev_u32 v13, %d, v14" % (((W - 1) // 8 - (self.W - 1) // 8) * 8))
                    a("v_max_i32 v12, v12, v13")
                    a("ds_write_b32 v15, v12 offset:%d" % C_PROG)
                    a("s_mov_b64 exec, -1")
                return f
            a("s_memrealtime s[60:61]")
            a("s_add_u32 s63, s63, %d" % dt)
            a("s_waitcnt lgkmcnt(0)")
            a("s_sub_u32 s60, s60, s63")
            a("s_cmp_gt_i32 s60, 0")
            a("s_cbranch_scc1 L_seghi")
            group(W, pubv(W))
            a("s_sub_u32 s45, s45, 1")
            a("s_cbranch_scc0 %s" % name)
            a("s_setpc_b64 s[50:51]")
            a.label("L_seghi")
            group(Whi, pubv(Whi))
        else:
            group(W, self.publish)
        a("s_sub_u32 s45, s45, 1")
        a("s_cbranch_scc0 %s" % name)
        a("s_setpc_b64 s[50:51]")

    def seg(self, n, z=False):
        self.a("s_mov_b32 s45, %d" % (n // 8 - 1))
        self.a("s_call_b64 s[50:51], %s" % ("L_segz" if z else "L_seg"))

    def publish(self):
        a = self.a
        a("s_mov_b64 exec, 1")
        a("v_add_u32 v14, 8, v14")
        a("ds_write_b32 v15, v14 offset:%d" % C_PROG)
        a("s_mov_b64 exec, -1")

    def rebase(self):
        if self.adapt or self.peer:
            hi = (self.adapt or self.peer)[0]
            self.a("v_subrev_u32 v14, %d, v14" % (((hi - 1) // 8 - (self.W - 1) // 8) * 8))
            return hi
        if self.cls and not self.Wz:
            Ws = [self.W] + list(self.cls[:-1])
            if len(set((x - 1) // 8 for x in Ws)) > 1:
                self.a("v_subrev_u32 v14, s61, v14")
            return max(Ws)
        return self.Wz or self.W

    def drain(self):
        k = ((self.rebase() - 1) // 8) * 8
        while k >= 0:
            self.a("s_waitcnt vmcnt(%d)" % (k + (k // 4 if self.peer else 0)))
            self.publish()
            k -= 8

    def srd(self, r, p, n):
        self.a("s_mov_b32 s%d, s%d\ns_mov_b32 s%d, s%d\ns_mov_b32 s%d, %d\ns_mov_b32 s%d, 0x20000" % (r, p, r + 1, p + 1, r + 2, n, r + 3))

    def loader(self):
        a = self.a
        self.inld = True
        W = self.W
        a.label("L_loader")
        a("s_setprio %d" % self.prio)
        a("v_lshl_add_u32 v1, v0, 2, v15")
        a("v_mov_b32 v2, 0")
        a("s_mov_b64 exec, 0xffff")
        a("ds_write_b32 v1, v2")
        a("s_mov_b64 exec, -1")
        a("v_lshrrev_b32 v4, 3, v0")
        a("v_and_b32 v5, 7, v0")
        a("v_and_b32 v6, 6, v4")
        a("v_xor_b32 v5, v5, v6")
        a("v_lshlrev_b32 v5, 4, v5")
        a("v_mul_u32_u24 v16, 6144, v4")
        a("v_add_u32 v16, v16, v5")
        a("v_mov_b32 v17, v16\nv_mov_b32 v18, v16\nv_mov_b32 v19, v16")
        p0 = -(((W - 1) // 8) * 8) - 8
        a("s_and_b32 s42, s52, 3")
        a("s_mul_i32 s42, s42, %d" % (128 * 6144))
        a("s_lshr_b32 s43, s52, 2")
        a("s_lshl_b32 s43, s43, 7")
        a("s_add_u32 s44, s42, s43")
        a("s_movk_i32 s49, 0x400")
        a("s_mov_b32 s48, -1")
        a("s_mov_b32 s47, %d" % (8 * 6144))
        a("s_mov_b32 m0, %d" % L_MOD)
        a("s_mov_b32 s58, %d" % (512 * 3072 * 2))
        a("s_mov_b32 s59, 0x20000")
        a("s_cmp_lt_i32 s52, 0")
        a("s_cselect_b32 s42, %d, %d" % (p0 + 16, p0))
        a("v_mov_b32 v14, s42")
        if self.cls:
            mode = self.cls[-1]
            if mode == "odd":
                a("s_and_b32 s41, s32, 1")
            elif mode == "mod":
                a("s_cselect_b32 s41, 0, 1")
            elif mode == "wo":
                a("s_cmp_lt_u32 s33, 16")
                a("s_cselect_b32 s41, 1, 0")
            elif mode == "three":
                a("s_cselect_b32 s41, 0, 1")
                a("s_cmp_lt_u32 s33, 16")
                a("s_cselect_b32 s41, 2, s41")
            elif mode == "hi4":
                a("s_lshr_b32 s41, s32, 2")
            elif mode == "oddmod":
                a("s_cselect_b32 s41, 0, 1")
                a("s_and_b32 s41, s41, s32")
            Ws = [W] + list(self.cls[:-1])
            octs = [(x - 1) // 8 for x in Ws]
            if len(set(octs)) > 1:
                a("s_mov_b32 s61, %d" % ((max(octs) - octs[0]) * 8))
                for q in range(1, len(Ws)):
                    a("s_cmp_eq_u32 s41, %d" % q)
                    a("s_cselect_b32 s61, %d, s61" % ((max(octs) - octs[q]) * 8))
                a("v_add_u32 v14, s61, v14")
                a("v_subrev_u32 v14, %d, v14" % ((max(octs) - octs[0]) * 8))
            a("s_cmp_lt_i32 s52, 0")
        if self.peer:
            a("v_mov_b32 v12, -64")
            a("v_mov_b32 v11, 0")
            a("s_cselect_b32 s43, %d, %d" % (2 + self.peer[3], self.peer[3]))
            a("s_cmp_lt_u32 s33, 16")
            a("s_cselect_b32 s43, 0, s43")
            a("v_mov_b32 v8, s43")
            a("s_lshl_b32 s43, s32, 5")
            a("v_add_u32 v10, s43, v0")
            a("v_add_u32 v9, s33, v10")
            a("s_cmp_lt_i32 s52, 0")
        if self.adapt:
            a("v_mov_b32 v12, -64")
            a("s_memrealtime s[62:63]")
            a("s_cselect_b32 s43, %d, 0" % (2 * self.adapt[2]))
            a("s_waitcnt lgkmcnt(0)")
            a("s_add_u32 s63, s62, s43")
            a("s_add_u32 s63, s63, %d" % self.adapt[1])
            a("s_cmp_lt_i32 s52, 0")
        if self.sdet == 5: self.sstamp(12)
        a("s_waitcnt lgkmcnt(0)")
        if self.sdet == 5: self.sstamp(13)
        a("s_barrier")
        if self.sdet == 5: self.sstamp(11)
        a("s_mov_b32 s56, s22\ns_mov_b32 s57, s23")
        a("s_cbranch_scc1 L_nomod")
        self.seg(16)
        a.label("L_nomod")
        if self.debug:
            for i in range(1, 16):
                if not (self.sdet == 5 and i in (11, 12, 13)): a("s_mov_b32 s%d, 0" % (64 + 2 * i))
        if self.sdet == 5: self.sstamp(10)
        a("v_lshl_add_u32 v16, v4, 13, v5")
        a("s_mov_b32 s56, s10\ns_mov_b32 s57, s11\ns_mov_b32 s58, %d" % (512 * 4096 * 2))
        a("v_mov_b32 v17, v16\nv_mov_b32 v18, v16\nv_mov_b32 v19, v16")
        a("s_lshr_b32 s42, s33, 3")
        a("s_lshl_b32 s42, s42, 20")
        a("s_and_b32 s43, s33, 7")
        a("s_lshl_b32 s43, s43, 7")
        a("s_add_u32 s42, s42, s43")
        a("s_lshl_b32 s43, s32, 10")
        a("s_add_u32 s44, s42, s43")
        a("s_mov_b32 s47, 0x10000")
        a("s_mov_b32 m0, %d" % L_WQ)
        self.seg(16)
        self.stamp(1)
        a("v_lshrrev_b32 v1, 4, v0")
        a("v_and_b32 v2, 15, v0")
        a("v_xor_b32 v3, v2, v1")
        a("v_lshlrev_b32 v3, 4, v3")
        a("v_lshl_add_u32 v16, v1, 8, v3")
        for k in (1, 2, 3):
            a("v_xor_b32 v%d, %d, v16" % (16 + k, k << 6))
        a("s_lshr_b32 s42, s33, 4")
        a("s_lshl_b32 s42, s42, 3")
        a("s_add_u32 s42, s42, s32")
        a("s_lshl_b32 s42, s42, 7")
        a("s_and_b32 s43, s33, 15")
        a("s_add_u32 s42, s42, s43")
        a("s_add_u32 s42, s42, 0x70")
        a("s_lshl_b32 s46, s42, 16")
        a("s_add_u32 s56, s6, s46\ns_addc_u32 s57, s7, 0\ns_mov_b32 s58, 0x10000")
        ma, mb = self.rot
        a("s_mul_i32 s42, s33, %d" % ma)
        a("s_mul_i32 s43, s32, %d" % mb)
        a("s_add_u32 s42, s42, s43")
        a("s_lshl_b32 s42, s42, 10")
        a("s_mov_b32 s48, 0xffff")
        a("s_and_b32 s44, s42, s48")
        a("s_mov_b32 s47, s49")
        if self.sdet == 5:
            for q in range(4):
                self.sstamp(6 + q)
                self.seg(16)
        elif self.zk is not None:
            if self.zk: self.seg(self.zk)
            a("v_subrev_u32 v14, %d, v14" % (((self.Wz - 1) // 8 - (W - 1) // 8) * 8))
            if self.zk < 64: self.seg(64 - self.zk, z=True)
        else:
            self.seg(64)
        self.stamp(2)
        a("v_lshlrev_b32 v3, 1, v1")
        a("v_xor_b32 v3, v2, v3")
        a("v_lshlrev_b32 v3, 4, v3")
        a("v_lshl_add_u32 v16, v1, 8, v3")
        a("v_xor_b32 v17, 0x80, v16")
        a("v_mov_b32 v18, v16\nv_mov_b32 v19, v17")
        a("s_add_u32 s56, s8, s46\ns_addc_u32 s57, s9, 0")
        self.seg(self.vsplit, z=self.zk is not None)
        self.roles_ld()
        a("v_lshl_add_u32 v24, v1, 10, v3")
        a("v_xor_b32 v25, 0x80, v24")
        Wz = self.Wz or W
        sw = ((Wz - 1) // 8 - (W - 1) // 8) * 8
        if sw and self.zk is None: a("v_subrev_u32 v14, %d, v14" % sw)
        a("s_cmp_lt_i32 s52, 0")
        a("s_cbranch_scc1 L_vtail")
        if 'c' not in self.kill: self.lwait(C_MOD, "4", vt="v7")
        a.label("L_vtail")
        if self.wmid:
            a("s_cmp_eq_u32 s55, 0")
            a("s_cbranch_scc0 L_vtail2")
            a("s_mov_b32 s40, s44")
            a("s_mov_b32 s56, s12\ns_mov_b32 s57, s13\ns_mov_b32 s58, %d" % (4096 * 512 * 2))
            a("s_lshl_b32 s42, s53, 17")
            a("s_lshl_b32 s43, s54, 8")
            a("s_add_u32 s44, s42, s43")
            a("s_movk_i32 s47, 0x1000")
            a("s_mov_b32 s48, -1")
            a("s_mov_b32 m0, %d" % L_K)
            a("v_mov_b32 v20, v16\nv_mov_b32 v21, v17")
            a("v_mov_b32 v16, v24\nv_mov_b32 v17, v25\nv_mov_b32 v18, v24\nv_mov_b32 v19, v25")
            if not self.kill: self.lwait(C_K, "4", vt="v7")
            self.seg(32)
            a("s_add_u32 s56, s8, s46\ns_addc_u32 s57, s9, 0\ns_mov_b32 s58, 0x10000")
            a("s_mov_b32 s44, s40")
            a("s_mov_b32 s47, s49")
            a("s_mov_b32 s48, 0xffff")
            a("s_mov_b32 m0, %d" % (L_V + 1024 * self.vsplit))
            a("v_mov_b32 v16, v20\nv_mov_b32 v17, v21\nv_mov_b32 v18, v20\nv_mov_b32 v19, v21")
            a.label("L_vtail2")
        self.seg(64 - self.vsplit, z=bool(self.Wz))
        self.stamp(3)
        a("s_branch L_loader2")
        self.segloop("L_seg", W)
        self.inld = False

    def roles_ld(self):
        a = self.a
        a("s_mov_b32 s40, s44")
        self.roles()
        a("s_mov_b32 s44, s40")

    def loader2(self):
        a = self.a
        self.inld = True
        if self.Wz: self.segloop("L_segz", self.Wz)
        a.label("L_loader2")
        if not self.wmid: self.loader_wo()
        self.loader_rest()

    def burst(self, n, srd=56, vs=(24, 25), step="s47"):
        a = self.a
        u = 8 if self.unr else 2
        lab = a.newlab("Lseg")
        if n > u:
            a("s_mov_b32 s45, %d" % (n // u - 1))
            a.label(lab)
        for q in range(u):
            a("buffer_load_dwordx4 v%d, s[%d:%d], s44 offen nt lds" % (vs[q % 2], srd, srd + 3))
            a("s_add_u32 m0, m0, s49")
            a("s_add_u32 s44, s44, %s" % step)
        if n > u:
            a("s_sub_u32 s45, s45, 1")
            a("s_cbranch_scc0 %s" % lab)

    def loader_wo(self):
        a = self.a
        burst = self.burst
        a("s_cmp_eq_u32 s55, 0")
        a("s_cbranch_scc0 L_ld_notwo")
        self.srd(56, 12, 4096 * 512 * 2)
        a("s_lshl_b32 s42, s53, 17")
        a("s_lshl_b32 s43, s54, 8")
        a("s_add_u32 s44, s42, s43")
        a("s_mov_b32 m0, %d" % L_K)
        if not self.kill: self.lwait(C_K, "4")
        left = ((self.rebase() - 1) // 8 + 1) * 8
        a("s_movk_i32 s47, 0x1000")
        if self.wol:
            while left > 0:
                left -= 8
                a("s_waitcnt vmcnt(%d)" % left)
                self.publish()
            self.lwait(C_O, "4")
        issued = self.pb
        burst(self.pb)
        while left > 0:
            left -= 8
            a("s_waitcnt vmcnt(%d)" % (left + issued + (left // 4 if self.peer else 0)))
            self.publish()
            if issued < 32:
                n = 8 if left > 0 else 32 - issued
                burst(n); issued += n
        a("s_waitcnt vmcnt(0)")
        a("v_mov_b32 v14, 184")
        self.publish()
        self.stamp(4)
        self.finish()
        a.label("L_ld_notwo")

    def loader_rest(self):
        a = self.a
        burst = self.burst
        self.drain()
        self.stamp(4)
        a("s_cmp_eq_u32 s55, 1")
        a("s_cbranch_scc0 L_ld_end")
        a("v_mul_u32_u24 v26, 3584, v4")
        a("v_add_u32 v26, v26, v5")
        self.srd(56, 16, 512 * 1792 * 2)
        self.srd(60, 18, 512 * 1792 * 2)
        a("s_movk_i32 s47, 0x1000")
        a("s_movk_i32 s46, %d" % (8 * 3584))
        a("s_mul_i32 s42, s54, %d" % (128 * 3584))
        a("s_lshl_b32 s43, s53, 7")
        a("s_add_u32 s44, s42, s43")
        a("s_mov_b32 m0, %d" % L_K)
        if not self.kill: self.lwait((C_K, C_O, C_X)[self.fd], "1" if (self.fd == 2 and self.xearly) else "4")
        burst(16, 56, (26, 26), "s46")
        a("s_lshl_b32 s42, s53, 16")
        a("s_lshl_b32 s43, s54, 8")
        a("s_add_u32 s44, s42, s43")
        burst(16, 60)
        a("v_mov_b32 v14, 168")
        self.publish()
        a("s_waitcnt vmcnt(0)")
        a("v_mov_b32 v14, 184")
        self.publish()
        self.stamp(5)
        a.label("L_ld_end")
        self.finish()
        self.inld = False

    def aux(self):
        a = self.a
        a.label("L_aux")
        if 'a' in self.kill: self.finish()
        if self.tlb:
            a("s_lshr_b32 s42, s33, 4")
            a("s_lshl_b32 s42, s42, 3")
            a("s_add_u32 s42, s42, s32")
            a("s_lshl_b32 s42, s42, 23")
            a("s_and_b32 s43, s33, 15")
            a("s_lshl_b32 s43, s43, 16")
            a("s_add_u32 s42, s42, s43")
            a("s_add_u32 s42, s42, %d" % (7 << 20))
            a("v_mov_b32 v1, s42")
            a("s_lshl_b32 s42, s53, 17")
            a("v_mov_b32 v2, s42")
            a("s_lshl_b32 s42, s53, 16")
            a("s_cmp_eq_u32 s55, 1")
            a("s_cselect_b32 s42, s42, 0")
            a("v_mov_b32 v3, s42")
            a("s_mul_i32 s42, s54, %d" % (128 * 3584))
            a("v_mov_b32 v4, s42")
            a("v_mov_b32 v5, 0")
            a("s_mov_b64 exec, 1")
            a("global_load_dword v44, v1, s[6:7] nt")
            a("global_load_dword v45, v1, s[8:9] nt")
            a("global_load_dword v46, v2, s[12:13] nt")
            a("global_load_dword v47, v3, s[18:19] nt")
            a("global_load_dword v48, v4, s[16:17] nt")
            a("global_load_dword v49, v5, s[24:25] nt")
            a("s_mov_b64 exec, -1")
        a("s_waitcnt vmcnt(0)")
        self.stamp(1)
        if self.warm:
            a("s_mov_b64 exec, 0")
            a("s_branch L_pad0")
            a.label("L_warmed")
            a("s_mov_b64 exec, -1")
        self.stamp(2)
        if self.xpoll:
            R, nl, fl, wait = self.xpoll
            a("v_lshlrev_b32 v1, 4, v0")
            a("s_mov_b32 s44, %d" % R)
            a("s_mov_b32 s45, 0x2000")
            a("s_mov_b32 s46, 0x3000")
            a.label("L_xp")
            for i in range(nl):
                a("buffer_load_dwordx4 v[%d:%d], v1, s[36:39], s%d offen offset:%d %s" % (20 + 4 * i, 23 + 4 * i, 45 + i // 4, 1024 * (i & 3), fl))
            a("s_waitcnt vmcnt(%d)" % wait)
            a("s_sub_u32 s44, s44, 1")
            a("s_cmp_lg_u32 s44, 0")
            a("s_cbranch_scc1 L_xp")
            a("s_waitcnt vmcnt(0)")
            self.stamp(3)
        if self.kill: self.finish()
        if self.tmode:
            a("v_and_b32 v3, 3, v0")
            a("v_lshlrev_b32 v3, 5, v3")
            a("v_bfe_u32 v4, v0, 2, 2")
            a("v_lshrrev_b32 v5, 4, v0")
            a("v_lshl_add_u32 v10, v4, 12, v3")
            a("v_lshl_add_u32 v10, v5, 14, v10")
            a("s_lshl_b32 s46, s32, 9")
            a("s_and_b32 s43, s33, 3")
            a("s_lshl_b32 s43, s43, 3")
            a("s_add_u32 s46, s46, s43")
            a("s_bfe_u32 s43, s33, 0x20002")
            a("s_lshl_b32 s43, s43, 1")
            a("s_add_u32 s46, s46, s43")
            a("s_lshr_b32 s43, s33, 4")
            a("s_add_u32 s46, s46, s43")
            a("s_lshl_b32 s46, s46, 7")
            a("s_add_u32 s46, s46, %d" % W_O)
            a("v_and_b32 v11, 7, v0")
            a("v_lshlrev_b32 v11, 5, v11")
            a("v_lshrrev_b32 v5, 3, v0")
            a("v_lshl_add_u32 v11, v5, 10, v11")
            a("s_lshl_b32 s47, s53, 13")
            a("s_lshl_b32 s43, s54, 8")
            a("s_add_u32 s47, s47, s43")
            a("s_add_u32 s47, s47, %d" % W_U)
            a("s_cmp_eq_u32 s55, 1")
            a("s_cselect_b32 s47, s47, 0x%x" % WS_SIZE)
            a("v_and_b32 v12, 7, v0")
            a("v_lshlrev_b32 v12, 5, v12")
            a("s_lshl_b32 s48, s53, 2")
            a("s_add_u32 s48, s48, s54")
            a("s_lshl_b32 s48, s48, 8")
            a("s_add_u32 s48, s48, %d" % W_ST)
            a("s_cmp_eq_u32 s55, 0")
            a("s_cselect_b32 s48, s48, 0x%x" % WS_SIZE)
            def touch(fl):
                a("buffer_load_dwordx4 v[24:27], v10, s[36:39], s46 offen %s" % fl)
                a("buffer_load_dwordx4 v[28:31], v11, s[36:39], s47 offen %s" % fl)
                a("buffer_load_dwordx4 v[32:35], v12, s[36:39], s48 offen %s" % fl)
            if self.tth: self.lwait(C_PROG, "%d" % self.tth)
            for fl in {'n': ("sc1",), 'np': ("nt", "sc1"), 'npp': ("nt", ""), 'nn': ("nt", "nt")}[self.tmode]:
                touch(fl)
                a("s_waitcnt vmcnt(0)")
            if self.rth:
                self.lwait(C_PROG, "%d" % self.rth)
                if self.rnp:
                    touch("nt")
                    a("s_waitcnt vmcnt(0)")
                touch("sc1")
        if self.prex:
            a("s_waitcnt lgkmcnt(0)")
            a("s_add_u32 s31, s30, 1")
            a("s_and_b32 s31, s31, 0xff")
            a("s_xor_b32 s42, s31, 0x55")
            a("v_mov_b32 v4, s42\nv_mov_b32 v6, s42")
            a("s_cmp_eq_u32 s55, 0")
            a("s_cbranch_scc1 L_aux_wo")
            a("s_cmp_eq_u32 s55, 1")
            a("s_cbranch_scc0 L_aux_end")
            a("v_lshrrev_b32 v2, 3, v0")
            a("v_mul_u32_u24 v2, 3584, v2")
            a("v_and_b32 v3, 7, v0")
            a("v_lshl_add_u32 v2, v3, 4, v2")
            a("s_mul_i32 s43, s54, %d" % (4 * 7168))
            a("s_lshl_b32 s44, s53, 7")
            a("s_add_u32 s43, s43, s44")
            a("s_add_u32 s43, s43, %d" % W_F)
            self.lwait(C_O, "4")
            self.st(4, "v2", "s43", "sc1")
            self.finish()
            a.label("L_aux_wo")
            a("v_lshrrev_b32 v2, 4, v0")
            a("v_and_b32 v3, 15, v0")
            a("v_lshlrev_b32 v3, 4, v3")
            a("v_lshl_add_u32 v2, v2, 13, v3")
            a("s_lshl_b32 s44, s54, 15")
            a("s_lshl_b32 s45, s53, 8")
            a("s_add_u32 s44, s44, s45")
            a("s_add_u32 s44, s44, %d" % W_W)
            self.st(4, "v2", "s44", "sc1")
            if self.hint and self.hprex:
                a("s_lshl_b32 s45, s32, 7")
                a("s_add_u32 s45, s45, %d" % W_H)
                a("s_cmp_eq_u32 s33, %d" % self.hj)
                a("s_cselect_b32 s45, s45, 0x%x" % WS_SIZE)
                a("v_and_b32 v7, 31, v0")
                a("v_lshlrev_b32 v7, 2, v7")
                a("buffer_store_dword v4, v7, s[36:39], s45 offen sc1")
        self.stamp(3)
        a.label("L_aux_end")
        self.finish()

    def modgather(self, parts, dsts, rbs, ns=1, each=None):
        a = self.a
        a("s_lshl_b32 s42, %s, 1" % rbs)
        a("s_lshr_b32 s43, s3, 1")
        a("s_add_u32 s42, s42, s43")
        a("s_lshl_b32 s48, s42, 11")
        a("s_and_b32 s43, s3, 1")
        a("s_lshl_b32 s43, s43, 8")
        a("s_add_u32 s48, s48, s43")
        loads = []
        for i, p in enumerate(parts):
            if p < 4:
                a("s_lshr_b32 s43, s42, 2")
                a("s_add_u32 s43, s43, %d" % (2 * p))
            else:
                a("s_lshr_b32 s43, s42, 1")
                a("s_add_u32 s43, s43, %d" % (4 * (p - 4)))
            a("s_cmp_eq_u32 s43, s32")
            a("s_cselect_b32 s43, 0, 1")
            a("s_lshl_b32 s43, s43, 21")
            a("s_add_u32 s43, s43, s48")
            a("s_add_u32 s%d, s43, %d" % (44 + i, W_MOD + p * 16384))
            loads.append((96 + 4 * i, "v7", "s%d" % (44 + i), 0))
        if ns > 1:
            self.pgather([184 + 8 * k for k in range(ns)], [l[1:] for l in loads], lambda b: self.tred2([b, b + 4], dsts), self.dh, alt=[l[2] for l in loads])
        else:
            self.gather(loads, alt=[l[2] for l in loads], fl=self.hfl, each=each)
            self.tred2([96 + 4 * i for i in range(len(dsts))], dsts)
        for d in dsts:
            self.rbf(d)

    def compute(self):
        a = self.a
        a.label("L_compute")
        a("v_lshrrev_b32 v1, 4, v0")
        a("v_bfe_u32 v2, v0, 3, 1")
        a("v_and_b32 v3, 7, v0")
        a("v_lshlrev_b32 v6, 5, v0")
        a("v_and_b32 v6, 0x400, v6")
        a("v_and_b32 v4, 31, v0")
        a("v_lshl_add_u32 v6, v4, 3, v6")
        a("s_and_b32 s42, s52, 3")
        a("v_lshl_add_u32 v6, s42, 8, v6")
        a("v_lshl_add_u32 v4, v1, 3, v3")
        a("v_lshlrev_b32 v4, 5, v4")
        a("v_lshl_add_u32 v4, v2, 10, v4")
        a("v_lshl_add_u32 v5, v3, 2, v1")
        a("s_lshl_b32 s42, s3, 5")
        a("v_add_u32 v5, s42, v5")
        a("v_lshl_add_u32 v5, v2, 9, v5")
        a("v_lshlrev_b32 v148, 1, v5")
        a("s_lshr_b32 s50, s33, 3")
        a("v_lshl_add_u32 v5, s50, 8, v148")
        a("v_lshl_add_u32 v148, s54, 8, v148")
        self.wssrd()
        a.autopad = self.warm
        a.since = self.warm - 400 if self.warm else 0
        if 'c' in self.kill: self.finish()
        a("global_load_dwordx2 v[24:25], v6, s[20:21]" + self.xnt)
        a("global_load_dwordx4 v[64:67], v4, s[4:5]" + self.xnt)
        a("global_load_dwordx4 v[68:71], v4, s[4:5] offset:16" + self.xnt)
        a("global_load_ushort v18, v5, s[4:5]" + self.xnt)
        a("global_load_ushort v19, v148, s[4:5]" + self.xnt)
        a("v_lshlrev_b32 v150, 4, v1")
        a("v_and_b32 v4, 1, v0")
        a("v_lshl_add_u32 v151, v4, 6, v150")
        a("v_mul_u32_u24 v4, 320, v4")
        a("v_add3_u32 v10, v4, v150, v15")
        a("v_bfe_u32 v4, v0, 2, 2")
        a("v_lshl_add_u32 v5, v1, 2, v4")
        a("v_bfe_u32 v6, v0, 1, 1")
        a("v_and_b32 v8, 1, v0")
        a("v_lshlrev_b32 v8, 3, v8")
        a("s_lshl_b32 s42, s3, 1")
        a("v_add_u32 v9, s42, v6")
        a("v_and_b32 v12, 6, v5")
        a("v_xor_b32 v9, v9, v12")
        a("v_lshl_add_u32 v9, v9, 4, v8")
        a("v_lshl_add_u32 v12, v5, 7, v9")
        a("s_lshl_b32 s42, s3, 2")
        a("v_add_u32 v9, s42, v6")
        a("v_and_b32 v13, 7, v5")
        a("v_lshlrev_b32 v13, 1, v13")
        a("v_xor_b32 v9, v9, v13")
        a("v_lshl_add_u32 v9, v9, 4, v8")
        a("v_lshl_add_u32 v13, v5, 8, v9")
        a("v_xor_b32 v14, 32, v13")
        a("s_mov_b32 s40, 0")
        a("s_cmp_lt_i32 s52, 0")
        a("s_cbranch_scc1 L_c_nomod")
        a("v_lshrrev_b32 v4, 5, v0")
        a("v_mul_u32_u24 v4, 320, v4")
        a("v_bfe_u32 v5, v0, 3, 2")
        a("v_lshl_add_u32 v4, v5, 6, v4")
        a("v_and_b32 v5, 3, v0")
        a("v_lshl_add_u32 v4, v5, 4, v4")
        a("v_bfe_u32 v5, v0, 2, 1")
        a("v_lshl_add_u32 v4, v5, 3, v4")
        a("s_mul_i32 s42, s3, 640")
        a("s_add_u32 s43, s42, %d" % (L_S + S_C))
        a("v_add_u32 v4, s43, v4")
        a("v_add_u32 v5, s42, v10")
        a("s_waitcnt vmcnt(4)")
        a("v_lshlrev_b32 v26, 16, v24")
        a("v_and_b32 v27, 0xffff0000, v24")
        a("v_lshlrev_b32 v28, 16, v25")
        a("v_and_b32 v29, 0xffff0000, v25")
        for k in range(4):
            a("v_mul_f32 v%d, %s, v%d" % (32 + k, f2u(-L2E), 26 + k))
        for k in range(4):
            a("v_exp_f32 v%d, v%d" % (32 + k, 32 + k))
        for k in range(4):
            a("v_add_f32 v%d, 1.0, v%d" % (32 + k, 32 + k))
        for k in range(4):
            a("v_rcp_f32 v%d, v%d" % (32 + k, 32 + k))
        for k in range(4):
            a("v_mul_f32 v%d, v%d, v%d" % (26 + k, 26 + k, 32 + k))
        a("v_cvt_pk_bf16_f32 v24, v26, v27")
        a("v_cvt_pk_bf16_f32 v25, v28, v29")
        a("ds_write_b64 v4, v[24:25]")
        for t in range(4):
            a("ds_read_b128 v[%d:%d], v5 offset:%d" % (48 + 4 * t, 51 + 4 * t, S_C + 64 * t))
        a("v_add_u32 v6, %d, v12" % L_MOD)
        a("s_lshl_b32 s44, s52, 9")
        a("s_lshl_b32 s43, s3, 7")
        a("s_add_u32 s44, s44, s43")
        a("s_add_u32 s44, s44, %d" % W_MOD)
        self.lwait(C_PROG, "16", cache="s40")
        self.stamp(1)
        self.tr64(32, "v6", 0)
        a("s_add_u32 s31, s30, 1")
        a("s_and_b32 s31, s31, 0xff")
        a("v_mov_b32 v17, s31")
        for t in range(4):
            a("s_waitcnt lgkmcnt(%d)" % (0 if self.debug else 6 - 2 * t))
            self.mfma(128, 32 + 4 * t, 48 + 4 * t, t == 0)
        self.lsignal(C_MOD)
        self.tag4(128)
        self.execm(0x0003)
        self.store_dual(128, "v151", "s44")
        self.execall()
        self.stamp(2)
        a("s_waitcnt vmcnt(2)")
        a("s_branch L_c_ln")
        a.label("L_c_nomod")
        a("s_waitcnt vmcnt(0) lgkmcnt(0)")
        a("s_add_u32 s31, s30, 1")
        a("s_and_b32 s31, s31, 0xff")
        a("v_mov_b32 v17, s31")
        a.label("L_c_ln")
        for k in range(8):
            a("v_lshlrev_b32 v%d, 16, v%d" % (72 + 2 * k, 64 + k))
            a("v_and_b32 v%d, 0xffff0000, v%d" % (73 + 2 * k, 64 + k))
        a("v_add_f32 v4, v72, v73")
        for k in range(2, 16):
            a("v_add_f32 v4, v4, v%d" % (72 + k))
        for c in ("quad_perm:[1,0,3,2]", "quad_perm:[2,3,0,1]", "row_half_mirror"):
            self.dpp("v_add_f32", "v4", c)
        self.allred_hi("v4", "v5", "v_add_f32")
        a("v_mul_f32 v4, %s, v4" % f2u(1.0 / 512))
        for k in range(16):
            a("v_sub_f32 v%d, v%d, v4" % (72 + k, 72 + k))
        a("v_mul_f32 v6, v72, v72")
        for k in range(1, 16):
            a("v_fmac_f32 v6, v%d, v%d" % (72 + k, 72 + k))
        for c in ("quad_perm:[1,0,3,2]", "quad_perm:[2,3,0,1]", "row_half_mirror"):
            self.dpp("v_add_f32", "v6", c)
        self.allred_hi("v6", "v5", "v_add_f32")
        a("v_mul_f32 v6, %s, v6" % f2u(1.0 / 512))
        self.rbf("v4"); self.rbf("v6")
        a("v_add_f32 v6, %s, v6" % f2u(1e-5))
        self.rbf("v6")
        a("v_sqrt_f32 v6, v6")
        self.rbf("v6")
        a("v_rcp_f32 v6, v6")
        a("v_lshlrev_b32 v18, 16, v18")
        a("v_lshlrev_b32 v19, 16, v19")
        a("v_sub_f32 v18, v18, v4")
        self.rbf("v18")
        a("v_mul_f32 v18, v18, v6")
        self.rbf("v18")
        a("v_and_b32 v4, 3, v0")
        a("v_lshlrev_b32 v4, 4, v4")
        a("v_bfe_u32 v5, v0, 2, 1")
        a("v_lshl_add_u32 v7, v2, 6, v4")
        a("v_lshl_add_u32 v7, v5, 7, v7")
        a("v_lshl_add_u32 v7, v1, 9, v7")
        a("v_lshl_add_u32 v4, v5, 3, v4")
        a("v_lshl_add_u32 v4, v1, 1, v4")
        a("s_lshl_b32 s42, s3, 6")
        a("s_add_u32 s42, s42, %d" % L_S)
        a("v_add_u32 v4, s42, v4")
        a("v_mul_u32_u24 v6, 320, v2")
        a("v_add_u32 v11, v6, v4")
        a("v_mul_u32_u24 v6, 272, v2")
        a("v_add_u32 v149, v6, v4")
        a("v_lshlrev_b32 v152, 4, v0")
        a("v_and_b32 v4, 1, v0")
        a("v_lshl_add_u32 v159, v4, 13, v150")
        a("s_lshl_b32 s42, s32, 14")
        a("s_and_b32 s43, s33, 7")
        a("s_lshl_b32 s43, s43, 10")
        a("s_add_u32 s42, s42, s43")
        a("s_lshl_b32 s43, s50, 8")
        a("s_add_u32 s42, s42, s43")
        a("s_lshl_b32 s43, s3, 6")
        a("s_add_u32 s42, s42, s43")
        a("s_add_u32 s51, s42, %d" % W_Q)
        a("s_getreg_b32 s42, hwreg(HW_REG_XCC_ID, 0, 4)")
        if self.forcediff:
            a("s_and_b32 s42, s33, 1")
        a("s_lshl_b32 s42, s42, 4")
        a("s_and_b32 s43, s31, 15")
        a("s_or_b32 s101, s42, s43")
        a("v_mov_b32 v153, s101")
        self.lwait(C_PROG, "32", cache="s40")
        self.tr64(32, "v12", L_WQ)
        if 'h' in self.kill: self.finish()
        if self.th_h > 32:
            self.lwait(C_PROG, "%d" % self.th_h, cache="s40")
        if self.sdet == 2: self.sstamp(10)
        self.modgather([0, 1], ["v4", "v5"], "s50", self.nsh)
        if self.sdet == 2 and self.debug: a("s_add_u32 s92, s35, 1")
        self.stamp(3)
        a("v_add_f32 v5, 1.0, v5")
        self.rbf("v5")
        a("v_mul_f32 v5, v18, v5")
        self.rbf("v5")
        a("v_add_f32 v5, v5, v4")
        a("v_cvt_pk_bf16_f32 v5, v5, v5")
        a("ds_write_b16 v11, v5 offset:%d" % S_H)
        self.lsignal(C_A)
        self.lwait(C_A, "4")
        for t in range(4):
            a("ds_read_b128 v[%d:%d], v10 offset:%d" % (48 + 4 * t, 51 + 4 * t, S_H + 64 * t))
        for t in range(4):
            a("s_waitcnt lgkmcnt(%d)" % (3 - t))
            self.mfma(140, 32 + 4 * t, 48 + 4 * t, t == 0)
        self.tag4(140, "v153")
        self.execm(0x0003)
        self.st(140, "v159", "s51", "")
        self.execall()
        a("s_or_b32 s51, s51, 0x%x" % W_DUAL)
        self.stamp(4)
        if 'q' in self.kill: self.finish()
        a("v_and_b32 v4, 3, v0")
        a("v_lshl_add_u32 v4, v4, 14, v150")
        a("v_bfe_u32 v5, v0, 2, 1")
        a("v_lshl_add_u32 v154, v5, 6, v4")
        a("s_lshl_b32 s42, s32, 4")
        a("s_add_u32 s42, s42, s3")
        a("s_lshl_b32 s42, s42, 5")
        a("s_and_b32 s43, s33, 3")
        a("s_lshl_b32 s43, s43, 3")
        a("s_add_u32 s42, s42, s43")
        a("s_bfe_u32 s43, s33, 0x20002")
        a("s_lshl_b32 s43, s43, 1")
        a("s_add_u32 s42, s42, s43")
        a("s_lshr_b32 s43, s33, 4")
        a("s_add_u32 s42, s42, s43")
        a("s_lshl_b32 s42, s42, 7")
        a("s_add_u32 s96, s42, %d" % W_O)
        a("v_and_b32 v4, 1, v0")
        a("v_bfe_u32 v5, v0, 1, 1")
        a("v_lshl_add_u32 v5, v5, 6, v150")
        a("s_cmp_eq_u32 s55, 0")
        a("s_cbranch_scc0 L_c_nowo")
        a("v_lshl_add_u32 v155, v4, 7, v5")
        a("s_lshl_b32 s42, s54, 2")
        a("s_add_u32 s42, s42, s3")
        a("s_lshl_b32 s42, s42, 5")
        a("s_add_u32 s42, s42, s53")
        a("s_lshl_b32 s42, s42, 8")
        a("s_add_u32 s97, s42, %d" % W_W)
        a("s_lshl_b32 s42, s53, 2")
        a("s_add_u32 s42, s42, s3")
        a("s_lshl_b32 s42, s42, 12")
        a("s_add_u32 s99, s42, %d" % W_O)
        a("v_lshlrev_b32 v4, 5, v1")
        a("v_lshl_add_u32 v156, v2, 7, v4")
        a("s_lshr_b32 s42, s42, 4")
        a("s_add_u32 s100, s42, %d" % W_ST)
        a.label("L_c_nowo")
        a("s_cmp_eq_u32 s55, 1")
        a("s_cbranch_scc0 L_c_noffn")
        a("v_mul_u32_u24 v4, 3584, v4")
        a("v_add_u32 v156, v4, v5")
        a("s_lshl_b32 s42, s54, 2")
        a("s_add_u32 s42, s42, s3")
        a("s_lshl_b32 s43, s42, 13")
        a("s_add_u32 s99, s43, %d" % W_W)
        a("s_mul_i32 s42, s42, 7168")
        a("s_lshl_b32 s43, s53, 7")
        a("s_add_u32 s42, s42, s43")
        a("s_add_u32 s98, s42, %d" % W_F)
        a("v_and_b32 v4, 15, v0")
        a("v_mul_u32_u24 v5, 272, v4")
        a("v_add3_u32 v157, v5, v150, v15")
        a("v_lshlrev_b32 v5, 1, v2")
        a("v_sub_u32 v4, v4, v5")
        a("v_and_b32 v5, 3, v4")
        a("v_lshl_add_u32 v5, v5, 6, v150")
        a("v_lshrrev_b32 v4, 2, v4")
        a("v_lshl_add_u32 v155, v4, 10, v5")
        a("s_lshl_b32 s42, s53, 2")
        a("s_add_u32 s42, s42, s3")
        a("s_lshl_b32 s42, s42, 11")
        a("s_add_u32 s100, s42, %d" % W_U)
        a("s_lshl_b32 s43, s54, 8")
        a("s_add_u32 s97, s100, s43")
        a("v_bfe_u32 v4, v0, 2, 1")
        a("v_mul_u32_u24 v4, 320, v4")
        a("v_and_b32 v5, 3, v0")
        a("v_lshl_add_u32 v4, v5, 4, v4")
        a("v_lshl_add_u32 v4, v1, 1, v4")
        a("s_lshr_b32 s42, s3, 1")
        a("s_lshl_b32 s42, s42, 6")
        a("s_and_b32 s43, s3, 1")
        a("s_lshl_b32 s43, s43, 3")
        a("s_add_u32 s42, s42, s43")
        a("s_add_u32 s42, s42, %d" % (L_S + S_U))
        a("v_add_u32 v158, s42, v4")
        a.label("L_c_noffn")
        if 'p' in self.kill: self.finish()
        a("v_and_b32 v4, 15, v0")
        a("v_xor_b32 v5, v4, v1")
        a("v_lshlrev_b32 v5, 4, v5")
        a("v_lshl_add_u32 v5, v4, 8, v5")
        a("s_lshl_b32 s42, s3, 14")
        a("s_add_u32 s42, s42, %d" % L_K)
        a("v_add_u32 v24, s42, v5")
        for t in (1, 2, 3):
            a("v_xor_b32 v%d, %d, v24" % (24 + t, 64 * t))
        a("s_lshl_b32 s42, s32, 1")
        a("s_lshr_b32 s43, s33, 4")
        a("s_add_u32 s42, s42, s43")
        a("s_lshl_b32 s42, s42, 13")
        a("s_lshl_b32 s43, s3, 11")
        a("s_add_u32 s42, s42, s43")
        a("s_add_u32 s44, s42, %d" % W_Q)
        self.smask(56, 0x00f0); self.smask(58, 0x0f00); self.smask(60, 0xf000); self.smask(62, 0x000c)
        a("v_and_b32 v4, 15, v0")
        a("v_lshl_add_u32 v4, v4, 2, v1")
        a("v_lshlrev_b32 v4, 1, v4")
        a("s_mul_i32 s42, s3, 320")
        a("s_add_u32 s42, s42, %d" % (L_S + S_Q))
        a("v_add_u32 v28, s42, v4")
        a("v_and_b32 v4, 3, v0")
        a("v_mul_u32_u24 v5, 320, v4")
        a("v_add3_u32 v29, v5, v150, v15")
        a("v_mul_u32_u24 v5, 576, v4")
        a("v_add3_u32 v30, v5, v150, v15")
        a("v_bfe_u32 v8, v0, 2, 1")
        a("v_lshl_add_u32 v5, v8, 3, v30")
        a("v_lshl_add_u32 v5, v2, 6, v5")
        a("s_lshl_b32 s42, s3, 7")
        a("v_add_u32 v31, s42, v5")
        a("v_lshl_add_u32 v144, v4, 4, v15")
        a("s_lshl_b32 s42, s3, 2")
        a("v_add_u32 v145, s42, v144")
        a("v_lshlrev_b32 v147, 10, v4")
        a("v_add_u32 v153, v152, v15")
        a("v_add_u32 v146, s42, v153")
        if self.th_q:
            self.lwait(C_PROG, "%d" % self.th_q, cache="s40")
        if self.sdet == 2: self.sstamp(12)
        def pubq():
            self.execm(0x0003)
            self.st(140, "v159", "s51", "sc1")
            self.execall()
        def qdone(b):
            for k in range(0, 8, 2):
                a("v_and_b32 v%d, s34, v%d" % (b + k, b + k))
            self.tred2([b, b + 4], ["v4", "v5"])
        def kread():
            a("s_lshl_b32 s43, s3, 4")
            a("s_add_u32 s43, s43, 48")
            self.lwait(C_PROG, "s43", cache="s40")
            self.stamp(5)
            for tau in range(4):
                for t in range(4):
                    r = 64 + 16 * tau + 4 * t
                    a("ds_read_b128 v[%d:%d], v%d offset:%d" % (r, r + 3, 24 + t, 4096 * tau))
            if self.wmid:
                a("s_waitcnt lgkmcnt(0)")
                self.lsignal(C_K)
        self.pgather([160 + 8 * k for k in range(self.nsq)], [("v152", "s44", 0), ("v152", "s44", 1024)], qdone, self.dq,
                     alt=["s44"], tag="s101", tmask=0x0f, onalt=pubq, pre=(kread if self.kfirst else None), fl=self.qfl)
        if self.sdet == 2 and self.debug: a("s_add_u32 s90, s35, 1")
        self.stamp(6)
        if 'g' in self.kill: self.finish()
        a("v_cvt_pk_bf16_f32 v4, v4, v5")
        a("ds_write_b16 v28, v4")
        a("ds_write_b16_d16_hi v28, v4 offset:128")
        a("v_and_b32 v9, 0xf0, v9")
        a("v_cmp_ne_u32 vcc, 0, v9")
        a("s_cbranch_vccz L_c_same")
        a("ds_write_b32 v15, v16 offset:%d" % C_DIFF)
        a.label("L_c_same")
        self.lsignal(C_B)
        if not self.kfirst: kread()
        if self.sdet == 1: self.sstamp(10)
        self.lwait(C_B, "4", hook=pubq)
        if self.sdet == 1: self.sstamp(11)
        for t in range(4):
            a("ds_read_b128 v[%d:%d], v29 offset:%d" % (48 + 4 * t, 51 + 4 * t, S_Q + 64 * t))
        a("ds_read_b32 v6, v15 offset:%d" % C_DIFF)
        a("ds_read_b32 v9, v15 offset:%d" % C_PROG)
        a("v_add_u32 v24, %d, v13" % L_V)
        a("v_add_u32 v25, %d, v14" % L_V)
        for t in range(4):
            a("s_waitcnt lgkmcnt(%d)" % (5 - t))
            for tau in range(4):
                self.mfma((128, 132, 136, 32)[tau], 64 + 16 * tau + 4 * t, 48 + 4 * t, t == 0)
        a("s_waitcnt lgkmcnt(0)")
        if not self.wmid: self.lsignal(C_K)
        a("v_readfirstlane_b32 s41, v6")
        a("v_readfirstlane_b32 s40, v9")
        a("s_cmp_eq_u32 s41, 0")
        a("s_cbranch_scc1 L_c_same2")
        pubq()
        a.label("L_c_same2")
        a("s_cmp_eq_u32 s55, 0")
        a("s_cselect_b32 s48, %d, 0" % (32 if self.wmid else 0))
        a("s_add_u32 s48, s48, 160")
        a("s_cmp_ge_i32 s40, s48")
        a("s_cselect_b32 s49, 1, 0")
        a("s_cbranch_scc0 L_c_vlate")
        self.tr128(64, 0, range(8), va=24)
        a.label("L_c_vlate")
        for tau in (1, 2, 3):
            for r in range(4):
                a("v_cndmask_b32 v%d, v%d, v%d, s[%d:%d]" % (128 + r, 128 + r, (128, 132, 136, 32)[tau] + r, 54 + 2 * tau, 55 + 2 * tau))
        def unpack(dlo, src):
            a("v_lshlrev_b32 v%d, 16, v%d" % (dlo, src))
            a("v_and_b32 v%d, 0xffff0000, v%d" % (dlo + 1, src))
        if self.ms:
            a("v_cvt_pk_bf16_f32 v4, v128, v129")
            a("v_cvt_pk_bf16_f32 v5, v130, v131")
            unpack(128, 4); unpack(130, 5)
        for r in range(4):
            a("v_mul_f32 v%d, %s, v%d" % (128 + r, f2u(128 ** -0.5), 128 + r))
        if self.ms:
            a("v_cvt_pk_bf16_f32 v4, v128, v129")
            a("v_cvt_pk_bf16_f32 v5, v130, v131")
            unpack(128, 4); unpack(130, 5)
        a("v_max3_f32 v4, v128, v129, v130")
        a("v_max_f32 v4, v4, v131")
        if not self.ms: a("v_and_b32 v4, 0xffff0000, v4")
        a("s_mov_b32 s42, %s" % f2u(L2E))
        self.dpp("v_max_f32", "v4", "row_ror:4")
        self.dpp("v_max_f32", "v4", "row_ror:8")
        self.allred_hi("v4", "v5", "v_max_f32")
        if self.sdet == 1: self.sstamp(12)
        a("v_mul_f32 v5, %s, v4" % f2u(-L2E))
        for r in range(4):
            a("v_fma_f32 v%d, v%d, s42, v5" % (128 + r, 128 + r))
        for r in range(4):
            a("v_exp_f32 v%d, v%d" % (128 + r, 128 + r))
        a("s_mov_b64 exec, 15")
        a("ds_write_b32 v145, v4 offset:%d" % S_WM)
        a("s_mov_b64 exec, -1")
        a("v_cvt_pk_bf16_f32 v4, v128, v129")
        a("v_cvt_pk_bf16_f32 v5, v130, v131")
        a("ds_write_b64 v31, v[4:5] offset:%d" % S_P)
        unpack(128, 4); unpack(130, 5)
        a("v_add_f32 v128, v128, v129")
        a("v_add_f32 v130, v130, v131")
        a("v_add_f32 v6, v128, v130")
        a("ds_write_b32 v146, v6 offset:%d" % S_C)
        self.lsignal(C_D)
        if self.sdet == 1: self.sstamp(14)
        self.lwait(C_D, "4")
        self.stamp(7)
        a("ds_read_b128 v[136:139], v144 offset:%d" % S_WM)
        for c in range(8):
            a("ds_read_b128 v[%d:%d], v30 offset:%d" % (184 + 4 * c, 187 + 4 * c, S_P + 64 * c))
        a("ds_read_b128 v[140:143], v153 offset:%d" % S_C)
        a("s_lshl_b32 s43, s32, 12")
        a("s_lshl_b32 s44, s33, 3")
        a("s_add_u32 s43, s43, s44")
        a("s_lshl_b32 s44, s3, 8")
        a("s_add_u32 s43, s43, s44")
        a("s_add_u32 s44, s43, %d" % W_ST)
        a("s_add_u32 s46, s30, 1")
        a("s_and_b32 s46, s46, 0xffff")
        a("s_mov_b32 s43, %s" % f2u(L2E))
        def pv(c, base):
            for ct in range(2):
                self.mfma(32 + 8 * (c >> 1) + 4 * ct, base + 4 * ct, 184 + 4 * c, c % 2 == 0)
        def factors():
            a("v_max3_f32 v132, v136, v137, v138")
            a("v_max_f32 v132, v132, v139")
            a("v_mul_f32 v4, %s, v132" % f2u(-L2E))
            for i in range(4):
                a("v_fma_f32 v%d, v%d, s43, v4" % (20 + i, 136 + i))
            for i in range(4):
                a("v_exp_f32 v%d, v%d" % (20 + i, 20 + i))
        def comb(w):
            for r in range(4):
                a("v_cndmask_b32 v%d, v%d, v%d, s[56:57]" % (32 + 8 * w + r, 32 + 8 * w + r, 36 + 8 * w + r))
            for r in range(4):
                if w == 0: a("v_mul_f32 v%d, v%d, v20" % (128 + r, 32 + r))
                else: a("v_fmac_f32 v%d, v%d, v%d" % (128 + r, 32 + 8 * w + r, 20 + w))
        def stats():
            a("v_mul_f32 v133, v140, v20")
            for i in (1, 2, 3):
                a("v_fmac_f32 v133, v%d, v%d" % (140 + i, 20 + i))
            self.dpp("v_add_f32", "v133", "row_ror:4")
            self.dpp("v_add_f32", "v133", "row_ror:8")
            self.allred_hi("v133", "v5", "v_add_f32")
            a("v_or_b32 v132, s46, v132")
            a("v_and_or_b32 v133, v133, s34, v17")
            a("s_mov_b64 exec, 15")
            self.store_local(132, "v147", "s44", x=2)
            self.execall()
        a("s_cmp_eq_u32 s49, 1")
        a("s_cbranch_scc0 L_c_pvslow")
        a("s_waitcnt lgkmcnt(7)")
        pv(0, 64); pv(1, 72)
        factors()
        a("s_waitcnt lgkmcnt(5)")
        pv(2, 80); pv(3, 88)
        a("s_waitcnt lgkmcnt(3)")
        pv(4, 96)
        comb(0)
        pv(5, 104)
        a("s_waitcnt lgkmcnt(0)")
        pv(6, 112)
        comb(1)
        pv(7, 120)
        if self.wmid: self.tr128(216, L_K, range(4))
        stats()
        comb(2)
        a("s_branch L_c_pvdone")
        a.label("L_c_pvslow")
        a("s_waitcnt lgkmcnt(0)")
        factors()
        stats()
        for batch in ([0, 1, 2, 3], [4, 5], [6], [7]):
            if 8 * batch[-1] + 8 <= self.vsplit or not self.wmid:
                self.lwait(C_PROG, "%d" % (104 + 8 * batch[-1]), cache="s40")
            elif batch[-1] == 7:
                self.lwait(C_PROG, "s48", cache="s40")
            else:
                a("s_sub_u32 s45, s48, %d" % (8 * (7 - batch[-1])))
                self.lwait(C_PROG, "s45", cache="s40")
            self.tr128(64, 0, batch, va=24)
            if self.wmid and batch[0] == 6:
                a("s_cmp_eq_u32 s55, 0")
                a("s_cbranch_scc0 L_c_nowt")
                a("s_waitcnt lgkmcnt(0)")
                pv(6, 64)
                self.tr128(216, L_K, range(4))
                a("s_branch L_c_wt")
                a.label("L_c_nowt")
            if batch[0] == 4: comb(0); comb(1)
            if batch[0] == 7: comb(2)
            n = len(batch)
            for i, c in enumerate(batch):
                a("s_waitcnt lgkmcnt(%d)" % min(15, 4 * (n - 1 - i)))
                pv(c, 64 + 8 * i)
            if self.wmid and batch[0] == 6:
                a.label("L_c_wt")
        a.label("L_c_pvdone")
        self.stamp(8)
        self.execm(0x00ff)
        comb(3)
        self.tag4(128)
        self.store_local(128, "v154", "s96")
        self.lsignal(C_O)
        self.stamp(9)
        if self.sdet == 4 and self.debug:
            a("s_waitcnt vmcnt(0)")
            self.sstamp(1)
        a("s_cmp_eq_u32 s55, 1")
        a("s_cbranch_scc1 L_ffn")
        a("s_cmp_eq_u32 s55, 0")
        a("s_cbranch_scc1 L_wo")
        self.finish()

    def out2(self, d0, d1):
        for r in range(4):
            self.a("v_cndmask_b32 v%d, v%d, v%d, s[62:63]" % (d0 + r, d0 + r, d1 + r))
        self.tag4(d0)

    def wo_stage(self):
        a = self.a
        a.label("L_wo")
        a("s_mov_b32 s44, %s" % f2u(L2E))
        a("s_movk_i32 s47, 0xff")
        if self.owait: self.lwait(C_O, "4")
        a("s_lshl_b32 s45, s32, 7")
        a("s_add_u32 s45, s45, %d" % W_H)
        a("s_lshl_b32 s42, s33, 2")
        a("s_add_u32 s42, s42, s3")
        a("s_cmp_eq_u32 s42, %d" % (4 * self.hj))
        a("s_cselect_b32 s45, s45, 0x%x" % WS_SIZE)
        a("v_and_b32 v7, 31, v0")
        a("v_lshlrev_b32 v7, 2, v7")
        def stload(r=24):
            a("buffer_load_dwordx4 v[%d:%d], v156, s[36:39], s100 offen sc1" % (r, r + 3))
            a("buffer_load_dwordx4 v[%d:%d], v156, s[36:39], s100 offen offset:16 sc1" % (r + 4, r + 7))
        def factors():
            for q in (24, 26, 28, 30):
                a("v_xor_b32 v%d, s46, v%d" % (q, q))
                a("v_xor_b32 v%d, s31, v%d" % (q + 1, q + 1))
            a("v_or3_b32 v6, v24, v26, v28")
            a("v_or3_b32 v9, v25, v27, v29")
            a("v_or_b32 v6, v6, v30")
            a("v_or_b32 v9, v9, v31")
            a("v_and_b32 v6, 0xffff, v6")
            a("v_and_or_b32 v6, v9, s47, v6")
            a("v_cmp_ne_u32 vcc, 0, v6")
            a("v_max3_f32 v4, v24, v26, v28")
            a("v_max_f32 v4, v4, v30")
            a("s_cbranch_vccnz L_wo_st2")
            self.allred_hi("v4", "v5", "v_max_f32")
            a("v_mul_f32 v4, %s, v4" % f2u(-L2E))
            for q in range(4):
                a("v_fma_f32 v%d, v%d, s44, v4" % (20 + q, 24 + 2 * q))
            for q in range(4):
                a("v_exp_f32 v%d, v%d" % (20 + q, 20 + q))
            a("v_mul_f32 v5, v20, v25")
            for q in (1, 2, 3):
                a("v_fmac_f32 v5, v%d, v%d" % (20 + q, 25 + 2 * q))
            self.allred_hi("v5", "v4", "v_add_f32")
            a("v_rcp_f32 v5, v5")
        stload()
        if self.wmid:
            self.st2 = False
        else:
            a("s_mov_b32 s48, 0")
            self.lwait(C_PROG, "192", cache="s40")
            if self.st2: stload(136)
        def tile():
            if not self.wmid: self.tr128(64, L_K, range(4))
            self.stamp(10)
            a("s_mov_b32 s35, 0")
            a("s_waitcnt vmcnt(%d)" % (6 if self.st2 else 4))
            a.label("L_wo_st")
            factors()
        def again():
            if self.st2:
                a("s_cmp_eq_u32 s48, 0")
                a("s_cbranch_scc0 L_wo_st3")
                a("s_mov_b32 s48, 1")
                a("s_waitcnt vmcnt(4)")
                for q in range(8):
                    a("v_mov_b32 v%d, v%d" % (24 + q, 136 + q))
                a("s_branch L_wo_st")
                a.label("L_wo_st3")
            stload()
            for i in range(4):
                a("buffer_load_dwordx4 v[%d:%d], v152, s[36:39], s99 offen offset:%d sc1" % (32 + 4 * i, 35 + 4 * i, 1024 * i))
            a("s_add_u32 s35, s35, 1")
            a("s_cmp_lt_u32 s35, %d" % TO_V)
            a("s_cbranch_scc0 L_end")
            a("s_waitcnt vmcnt(4)")
        self.cold.append(("L_wo_st2", again, "L_wo_st"))
        def each(i):
            for r in range(4):
                if i == 0: a("v_mul_f32 v%d, v%d, v20" % (32 + r, 32 + r))
                else: a("v_fmac_f32 v%d, v%d, v%d" % (32 + r, 32 + 4 * i + r, 20 + i))
        self.gather([(32 + 4 * i, "v152", "s99", 1024 * i) for i in range(4)], fl=self.lfl, each=each, pre=tile)
        if self.hint:
            a("buffer_store_dword v17, v7, s[36:39], s45 offen sc1")
        self.rounds(1, True)
        self.stamp(11)
        self.tred(32, "v4")
        a("v_mul_f32 v4, v4, v5")
        a("v_cvt_pk_bf16_f32 v4, v4, v4")
        a("ds_write_b16 v11, v4 offset:%d" % S_O)
        a("s_waitcnt lgkmcnt(0)")
        a("s_barrier")
        for t in range(4):
            a("ds_read_b128 v[%d:%d], v10 offset:%d" % (48 + 4 * t, 51 + 4 * t, S_O + 64 * t))
        for t in range(4):
            a("s_waitcnt lgkmcnt(%d)" % (3 - t))
            wb = 216 if self.wmid else 64
            self.mfma(128, wb + 8 * t, 48 + 4 * t, t == 0)
            self.mfma(132, wb + 4 + 8 * t, 48 + 4 * t, t == 0)
        self.execm(0x000f)
        self.out2(128, 132)
        self.st(128, "v155", "s97", "sc1")
        self.execall()
        self.stamp(12)
        if self.wb == 1:
            a("s_cmp_lt_u32 s45, 0x%x" % WS_SIZE)
            a("s_cbranch_scc0 L_nowb")
            a("buffer_wbl2 sc1")
            a.label("L_nowb")
        self.finish()

    def ffn_stage(self):
        a = self.a
        a.label("L_ffn")
        early = self.fd == 2 and self.xearly
        self.modgather([2, 3, 4, 5], ["v20", "v4", "v22", "v21"], "s54", each=(lambda i: self.lsignal(C_X) if i == 0 else None) if early else None)
        if self.fd == 2 and not early: self.lsignal(C_X)
        a("v_add_f32 v22, 1.0, v22")
        self.rbf("v22")
        a("ds_write_b16_d16_hi v149, v22 offset:%d" % (S_X + 2 * 272))
        a("ds_write_b16_d16_hi v149, v4 offset:%d" % (S_X + 8 * 272))
        a("v_mov_b32 v5, 0x3f80")
        a("ds_write_b16 v149, v5 offset:%d" % (S_X + 6 * 272))
        a("s_add_u32 s44, s99, 4096")
        self.smask(60, 0x0030)
        if self.hint:
            a("v_and_b32 v7, 7, v0")
            a("v_lshlrev_b32 v7, 7, v7")
            a("s_mov_b32 s45, %d" % W_H)
        if self.hint and self.hpre:
            self.lwait(C_PROG, "176", cache="s40")
            a("buffer_load_dword v6, v7, s[36:39], s45 offen sc1")
        self.lwait(C_PROG, "192", cache="s40")
        self.tr64(32, "v12", L_K)
        self.tr128(64, L_K + 16384, range(2))
        self.stamp(10)
        if self.hint:
            if self.h1:
                a("s_cmp_eq_u32 s3, 0")
                a("s_cbranch_scc1 L_hint0")
                self.lwait(C_ALPHA, "1")
                a("s_branch L_hinted2")
                a.label("L_hint0")
            a("s_mov_b32 s35, 0")
            if self.hpre: a("s_branch L_hint1")
            a.label("L_hint")
            a("buffer_load_dword v6, v7, s[36:39], s45 offen sc1")
            a("s_add_u32 s35, s35, 1")
            a("s_cmp_lt_u32 s35, %d" % TO_V)
            a("s_cbranch_scc0 L_hinted")
            a.label("L_hint1")
            a("s_waitcnt vmcnt(0)")
            a("v_cmp_ne_u32 vcc, s31, v6")
            a("s_cbranch_vccnz L_hint")
            a.label("L_hinted")
            if self.h1:
                self.lsignal(C_ALPHA)
                a.label("L_hinted2")
            if self.sdet == 3: self.sstamp(5)
        def wsum(i):
            if i:
                for r in (0, 2):
                    a("v_pk_add_f32 v[%d:%d], v[%d:%d], v[%d:%d]" % (96 + r, 97 + r, 96 + r, 97 + r, 96 + 4 * i + r, 97 + 4 * i + r))
        self.gather([(96 + 4 * i, "v152", "s99" if i < 4 else "s44", 1024 * (i & 3)) for i in range(8)], each=wsum)
        self.rounds(1)
        self.stamp(11)
        self.tred(96, "v4")
        a("v_fma_f32 v23, v20, v4, v19")
        a("v_cvt_pk_bf16_f32 v5, v23, v23")
        a("v_lshlrev_b32 v23, 16, v5")
        a("ds_write_b16 v149, v5 offset:%d" % (S_X + 4 * 272))
        a("v_mul_f32 v4, v23, v22")
        a("v_cvt_pk_bf16_f32 v4, v4, v4")
        a("ds_write_b16 v149, v4 offset:%d" % S_X)
        a("s_waitcnt lgkmcnt(0)")
        a("s_barrier")
        for t in range(4):
            a("ds_read_b128 v[%d:%d], v157 offset:%d" % (48 + 4 * t, 51 + 4 * t, S_X + 64 * t))
        for t in range(4):
            a("s_waitcnt lgkmcnt(%d)" % (3 - t))
            self.mfma(128, 32 + 4 * t, 48 + 4 * t, t == 0)
            self.mfma(132, 48 + 4 * t, 48 + 4 * t, t == 0)
        self.execm(0x033f)
        for r in range(4):
            a("v_cndmask_b32 v%d, v%d, v%d, s[60:61]" % (128 + r, 128 + r, 132 + r))
        self.tag4(128)
        self.store_local(128, "v155", "s97")
        self.execall()
        self.stamp(12)
        self.gather([(96, "v152", "s100", 0), (100, "v152", "s100", 1024)], fl=self.lfl)
        self.rounds(2)
        self.stamp(13)
        self.tred2([100, 96], ["v5", "v4"])
        a("v_readlane_b32 s42, v5, 1")
        a("v_readlane_b32 s43, v5, 21")
        a("v_readlane_b32 s44, v5, 33")
        a("v_readlane_b32 s45, v5, 37")
        a("v_mov_b32_dpp v6, v4 row_ror:8 row_mask:0xf bank_mask:0xf")
        a("v_mov_b32_dpp v7, v5 row_ror:8 row_mask:0xf bank_mask:0xf")
        a("v_mov_b32 v8, s42")
        a("v_mov_b32 v9, s44")
        self.execm(0x00f0)
        a("v_mov_b32 v8, s43")
        a("v_mov_b32 v9, s45")
        self.execm(0x00ff)
        a("v_mul_f32 v9, %s, v9" % f2u(1.0 / 512))
        a("v_mul_f32 v8, %s, v8" % f2u(1.0 / 512))
        a("v_fma_f32 v8, -v9, v9, v8")
        a("v_max_f32 v8, 0, v8")
        a("v_add_f32 v8, %s, v8" % f2u(1e-5))
        a("v_rsq_f32 v8, v8")
        a("v_fma_f32 v4, -v9, v6, v4")
        a("v_fma_f32 v4, v4, v8, v7")
        a("v_mul_f32 v5, %s, v4" % f2u(-L2E))
        a("v_exp_f32 v5, v5")
        a("v_add_f32 v5, 1.0, v5")
        a("v_rcp_f32 v5, v5")
        a("v_mul_f32 v4, v4, v5")
        a("v_cvt_pk_bf16_f32 v4, v4, v4")
        a("ds_write_b16 v158, v4")
        self.execall()
        a("s_waitcnt lgkmcnt(0)")
        a("s_barrier")
        for t in range(2):
            a("ds_read_b128 v[%d:%d], v10 offset:%d" % (48 + 4 * t, 51 + 4 * t, S_U + 64 * t))
        for t in range(2):
            a("s_waitcnt lgkmcnt(%d)" % (1 - t))
            self.mfma(128, 64 + 8 * t, 48 + 4 * t, t == 0)
            self.mfma(132, 68 + 8 * t, 48 + 4 * t, t == 0)
        self.execm(0x000f)
        self.out2(128, 132)
        self.st(128, "v156", "s98", "sc1")
        self.execall()
        self.stamp(14)
        if self.wb >= 2:
            a("s_lshl_b32 s42, s33, 2")
            a("s_add_u32 s42, s42, s3")
            a("s_cmp_eq_u32 s42, %d" % (17 * 4 + 3))
            a("s_cbranch_scc0 L_nowb2")
            if self.wb == 3: a("s_waitcnt vmcnt(0)")
            a("buffer_wbl2 sc1")
            a("s_waitcnt vmcnt(0)")
            a.label("L_nowb2")
        a("s_lshr_b32 s42, s53, 1")
        a("s_cmp_eq_u32 s42, s3")
        a("s_cbranch_scc0 L_ffn_end")
        a("s_and_b32 s46, s53, 1")
        a("s_mul_i32 s42, s46, 3584")
        a("s_lshl_b32 s43, s53, 7")
        a("s_sub_u32 s42, s42, s43")
        a("s_add_u32 s98, s98, s42")
        a("v_and_b32 v7, 0x1ff, v152")
        a("s_lshl_b32 s46, s46, 3")
        a("s_lshl_b32 s46, 0x00ff00ff, s46")
        a("s_mov_b32 s47, s46")
        if self.fdly > 0: a("s_sleep %d" % self.fdly)
        if self.fdly < 0: a("s_waitcnt vmcnt(0)")
        def fsum(i):
            if i == 3: a("s_mov_b32 exec_hi, 0")
            wsum(i)
            if i == 3: self.execall()
        self.gather([(96, "v152", "s98", 0), (100, "v152", "s98", 1024), (104, "v152", "s98", 2048), (108, "v7", "s98", 3072)], each=fsum)
        self.rounds(3)
        self.tred(96, "v4")
        self.dpp("v_add_f32", "v4", "row_ror:8")
        a("v_fma_f32 v4, v21, v4, v23")
        a("v_cvt_pk_bf16_f32 v4, v4, v4")
        ap = a.autopad; a.autopad = 0
        a("s_mov_b64 exec, s[46:47]")
        a("global_store_short v148, v4, s[24:25]")
        a("s_cmp_eq_u32 s2, 128")
        a("s_cbranch_scc0 L_ffn_end")
        a("s_add_u32 s42, s30, 1")
        a("s_mov_b64 exec, 1")
        a("v_mov_b32 v5, s42")
        a("v_mov_b32 v6, 0")
        a("buffer_store_dword v5, v6, s[36:39], 0 offen sc1")
        a.label("L_ffn_end")
        self.stamp(15)
        self.finish()
        a.autopad = ap

    def dump(self):
        a = self.a
        a.label("L_dump")
        a("s_mov_b64 exec, -1")
        a("s_waitcnt lgkmcnt(0)")
        for i in range(16):
            a("v_writelane_b32 v1, s%d, %d" % (64 + 2 * i, i))
        if self.calib:
            a("s_cmp_gt_u32 s3, 3")
            a("s_cbranch_scc1 L_nocal")
            a.label("L_cal")
            a("s_memrealtime s[42:43]")
            a("s_waitcnt lgkmcnt(0)")
            a("s_sub_u32 s42, s42, s64")
            a("s_cmp_lt_u32 s42, %d" % self.calib)
            a("s_cbranch_scc1 L_cal")
            a.label("L_nocal")
            if not self.hdebug:
                a("s_endpgm")
        if self.hdebug:
            a("s_cmp_lg_u32 s3, 0")
            a("s_cbranch_scc1 L_end")
            a("s_not_b32 s42, s64")
            a("v_writelane_b32 v1, s42, 1")
            a("v_lshlrev_b32 v2, 2, v0")
            a("s_mov_b64 exec, 0xffff")
            a("global_atomic_umax v2, v1, s[26:27]")
            a("s_endpgm")
        a("s_lshl_b32 s42, s2, 3")
        a("s_add_u32 s42, s42, s3")
        a("s_lshl_b32 s42, s42, 6")
        a("s_add_u32 s42, s42, %d" % W_STAMP)
        a("v_lshlrev_b32 v2, 2, v0")
        a("v_add_u32 v2, s42, v2")
        a("s_mov_b64 exec, 0xffff")
        a("global_store_dword v2, v1, s[28:29]")
        a("s_endpgm")

if __name__ == "__main__":
    import argparse
    ap = argparse.ArgumentParser()
    ap.add_argument("-o", default="cdna_kernels/" + NAME + ".s")
    ap.add_argument("--cfg", default="")
    args = ap.parse_args()
    g = Gen(**eval('dict(%s)' % args.cfg))
    open(args.o, "w").write(g.build())
    print("written", args.o, "nops inserted", g.a.nops, "pads", g.a.npad)
```

```python
import sys, struct
from asmlib import Asm

NAME = "adaLN_cond__sliding_block_cached__dense_activation_silu__decode"
KNAME = NAME + "_kernel"

L_WQ = 0
L_K = 16384
L_V = L_K + 65536
L_MOD = L_V + 49152
L_S = L_V + 65536
C_PROG, C_MOD, C_A, C_K, C_B, C_C, C_D, C_DIFF, C_ALPHA, C_O, C_X = 0, 4, 8, 12, 16, 20, 24, 28, 32, 36, 40
S_ALPHA = 128
S_WM = 256
S_WL = 320
S_C = 512
S_H = 3072
S_Q = 3712
S_P = 4992
S_O = 7296
S_U = 7936
S_X = 8576
LDS_BYTES = 163840
W_E = 0
W_MOD = 0x2000
W_Q = 0x20000
W_ST = 0xC8000
W_H = 0x44000
W_W = 0x48000
W_U = 0x68000
W_F = 0xA0000
W_O = 0x100000
W_DUAL = 0x200000
W_STAMP = 0x300000
WS_SIZE = 0x400000

PF_CHUNK = 512
L2E = 1.4426950408889634
TO_V = 30000
TO_L = 600000
N_ALT = 24

def f2u(x):
    return "0x%08x" % struct.unpack("<I", struct.pack("<f", x))[0]

class Gen:
    def __init__(self, W=18, cls=(19, 20), th_h=48, th_q=72, nsq=2, pb=32, fd=2, hint=True, hj=0, warm=1024,
                 rot=(2, 8), tO=128, tfl=("sc1",), etouch='sc1', pw=False, pf=True, vsplit=48, ms=True, snt=True, st2=True, pvm=False, later=False,
                 debug=False, stamps=None, sdet=0, hdebug=False, calib=0, forcediff=False):
        self.a = Asm()
        self.cold = []
        self.W = W; self.cls = cls; self.th_h = th_h; self.th_q = th_q; self.nsq = nsq; self.pb = pb; self.fd = fd
        self.hint = hint; self.hj = hj; self.warm = warm; self.rot = rot; self.tO = tO; self.tfl = tfl; self.etouch = etouch
        self.pw = pw; self.pf = pf; self.vsplit = vsplit; self.ms = ms; self.snt = snt; self.st2 = st2; self.pvm = pvm; self.later = later
        self.debug = debug or hdebug; self.stamps = stamps; self.sdet = sdet; self.hdebug = hdebug; self.calib = calib
        self.forcediff = forcediff
        self.inld = False

    def sstamp(self, i):
        if self.debug and self.sdet:
            self.a("s_memrealtime s[%d:%d]" % (64 + 2 * i, 65 + 2 * i))

    def rounds(self, slot, pre=False):
        if self.debug and self.sdet == 3:
            self.a("s_add_u32 s%d, s35, %d" % (64 + 2 * slot, 1 if pre else 0))

    def stamp(self, i):
        if self.sdet == 3 and i in (1, 2, 3) and not self.inld: return
        if self.sdet == 6 and i in (10, 11) and not self.inld: return
        if self.debug and (self.stamps is None or i == 0 or i in self.stamps):
            self.a("s_memrealtime s[%d:%d]" % (64 + 2 * i, 65 + 2 * i))

    def execm(self, m16):
        v = m16 | (m16 << 16)
        self.a("s_mov_b32 exec_lo, 0x%08x\ns_mov_b32 exec_hi, 0x%08x" % (v, v))

    def execall(self):
        self.a("s_mov_b64 exec, -1")

    def smask(self, s, m16):
        v = m16 | (m16 << 16)
        self.a("s_mov_b32 s%d, 0x%08x\ns_mov_b32 s%d, 0x%08x" % (s, v, s + 1, v))

    def lwait(self, cnt, needv, cache=None, vt="v9", vls="v15", st="s42", hook=None):
        a = self.a
        ok = a.newlab("Lok"); sp = a.newlab("Lsp")
        s = cache or st
        if cache:
            a("s_cmp_ge_i32 %s, %s" % (cache, needv))
            a("s_cbranch_scc1 %s" % ok)
        a("s_mov_b32 s35, 0")
        a.label(sp)
        a("ds_read_b32 %s, %s offset:%d" % (vt, vls, cnt))
        a("s_add_u32 s35, s35, 1")
        if hook:
            a("s_cmp_eq_u32 s35, 256")
            a("s_cbranch_scc1 %s_h" % sp)
            a.label("%s_n" % sp)
            self.cold.append(("%s_h" % sp, hook, "%s_n" % sp))
        a("s_cmp_lt_u32 s35, %d" % TO_L)
        a("s_cbranch_scc0 L_end")
        a("s_waitcnt lgkmcnt(0)")
        a("v_readfirstlane_b32 %s, %s" % (s, vt))
        a("s_cmp_ge_i32 %s, %s" % (s, needv))
        a("s_cbranch_scc0 %s" % sp)
        a.label(ok)

    def lsignal(self, cnt):
        a = self.a
        a("s_mov_b64 exec, 1")
        a("ds_add_u32 v15, v16 offset:%d" % cnt)
        a("s_mov_b64 exec, -1")

    def gather(self, loads, acc="v9", fl="sc1", alt=(), tag="s31", tmask=0xff, each=None, pre=None):
        a = self.a
        tr = a.newlab("Ltry"); chk = a.newlab("Lchk")
        n = len(loads)
        def issue():
            for (r, va, so, imm) in loads:
                a("buffer_load_dwordx4 v[%d:%d], %s, s[36:39], %s offen offset:%d %s" % (r, r + 3, va, so, imm, fl))
        if pre:
            issue()
            pre()
            a("s_mov_b32 s35, 0")
            a("s_branch %s" % chk)
        else:
            a("s_mov_b32 s35, 0")
        a.label(tr)
        issue()
        a("s_add_u32 s35, s35, 1")
        if alt:
            a("s_cmp_lt_u32 s35, %d" % N_ALT)
            a("s_cselect_b32 s43, 0, 0x%x" % W_DUAL)
            for so in alt:
                a("s_or_b32 %s, %s, s43" % (so, so))
        a("s_cmp_lt_u32 s35, %d" % TO_V)
        a("s_cbranch_scc0 L_end")
        a.label(chk)
        for i, (r, va, so, imm) in enumerate(loads):
            a("s_waitcnt vmcnt(%d)" % (n - 1 - i))
            for k in (0, 2):
                a("v_xor_b32 v%d, %s, v%d" % (r + k, tag, r + k))
            if i == 0:
                a("v_or_b32 %s, v%d, v%d" % (acc, r, r + 2))
            else:
                a("v_or3_b32 %s, v%d, v%d, %s" % (acc, r, r + 2, acc))
            if i == n - 1:
                a("v_and_b32 v8, 0x%x, %s" % (tmask, acc))
                a("v_cmp_ne_u32 vcc, 0, v8")
            if each: each(i)
        a("s_cbranch_vccnz %s" % tr)

    def pgather(self, sets, loads, done, alt=(), tag="s31", tmask=0xff, onalt=None, pre=None, fl="sc1"):
        a = self.a
        n = len(loads); ns = len(sets)
        tr = a.newlab("Ltry"); fin = a.newlab("Lfin")
        oks = [a.newlab("Lok") for _ in sets]
        def issue(b):
            for i, (va, so, imm) in enumerate(loads):
                a("buffer_load_dwordx4 v[%d:%d], %s, s[36:39], %s offen offset:%d %s" % (b + 4 * i, b + 4 * i + 3, va, so, imm, fl))
        a("s_mov_b32 s35, 0")
        for k, b in enumerate(sets[:-1]):
            issue(b)
        if pre:
            pre()
            a("s_mov_b32 s35, 0")
        a.label(tr)
        for k, b in enumerate(sets):
            issue(sets[(k - 1) % ns])
            for i in range(n):
                r = b + 4 * i
                a("s_waitcnt vmcnt(%d)" % (n * ns - 1 - i))
                for q in (0, 2):
                    a("v_xor_b32 v%d, %s, v%d" % (r + q, tag, r + q))
                if i == 0:
                    a("v_or_b32 v9, v%d, v%d" % (r, r + 2))
                else:
                    a("v_or3_b32 v9, v%d, v%d, v9" % (r, r + 2))
            a("v_and_b32 v8, 0x%x, v9" % tmask)
            a("v_cmp_ne_u32 vcc, 0, v8")
            a("s_cbranch_vccz %s" % oks[k])
        a("s_add_u32 s35, s35, 1")
        if alt:
            a("s_cmp_lg_u32 s35, %d" % N_ALT)
            a("s_cbranch_scc1 %s_n" % tr)
            for so in alt:
                a("s_or_b32 %s, %s, 0x%x" % (so, so, W_DUAL))
            if onalt: onalt()
            a.label("%s_n" % tr)
        a("s_cmp_lt_u32 s35, %d" % TO_V)
        a("s_cbranch_scc1 %s" % tr)
        a("s_endpgm")
        for k in reversed(range(ns)):
            a.label(oks[k])
            done(sets[k])
            if k: a("s_branch %s" % fin)
        a.label(fin)

    def tred(self, r, dst):
        a = self.a
        a("v_permlane32_swap_b32 v%d, v%d" % (r, r + 2))
        a("v_permlane32_swap_b32 v%d, v%d" % (r + 1, r + 3))
        a("v_add_f32 v%d, v%d, v%d" % (r, r, r + 2))
        a("v_add_f32 v%d, v%d, v%d" % (r + 1, r + 1, r + 3))
        a("v_permlane16_swap_b32 v%d, v%d" % (r, r + 1))
        a("v_add_f32 %s, v%d, v%d" % (dst, r, r + 1))

    def tred2(self, rs, dsts):
        a = self.a
        for r in rs:
            a("v_permlane32_swap_b32 v%d, v%d" % (r, r + 2))
            a("v_permlane32_swap_b32 v%d, v%d" % (r + 1, r + 3))
        for r in rs:
            a("v_add_f32 v%d, v%d, v%d" % (r, r, r + 2))
            a("v_add_f32 v%d, v%d, v%d" % (r + 1, r + 1, r + 3))
        for r in rs:
            a("v_permlane16_swap_b32 v%d, v%d" % (r, r + 1))
        for r, d in zip(rs, dsts):
            a("v_add_f32 %s, v%d, v%d" % (d, r, r + 1))

    def allred_hi(self, x, t, op):
        a = self.a
        a("v_mov_b32 %s, %s" % (t, x))
        a("v_permlane16_swap_b32 %s, %s" % (x, t))
        a("%s %s, %s, %s" % (op, x, x, t))
        a("v_mov_b32 %s, %s" % (t, x))
        a("v_permlane32_swap_b32 %s, %s" % (x, t))
        a("%s %s, %s, %s" % (op, x, x, t))

    def dpp(self, op, x, ctl):
        self.a("%s_dpp %s, %s, %s %s row_mask:0xf bank_mask:0xf" % (op, x, x, x, ctl))

    def rbf(self, x, t="v8"):
        self.a("v_cvt_pk_bf16_f32 %s, %s, %s" % (t, x, x))
        self.a("v_lshlrev_b32 %s, 16, %s" % (x, t))

    def tag4(self, r, vt="v17"):
        for k in (0, 2):
            self.a("v_and_or_b32 v%d, v%d, s34, %s" % (r + k, r + k, vt))

    def st(self, r, va, so, fl, x=4):
        self.a("buffer_store_dwordx%d v[%d:%d], %s, s[36:39], %s offen %s" % (x, r, r + x - 1, va, so, fl))

    def store_dual(self, r, va, so):
        self.st(r, va, so, "")
        self.a("s_or_b32 %s, %s, 0x%x" % (so, so, W_DUAL))
        self.st(r, va, so, "sc1")

    def store_local(self, r, va, so, x=4):
        a = self.a
        l1 = a.newlab("Lst"); l2 = a.newlab("Lst")
        a("s_cmp_eq_u32 s41, 0")
        a("s_cbranch_scc0 %s" % l1)
        self.st(r, va, so, "", x)
        a.label(l2)
        self.cold.append((l1, lambda: self.st(r, va, so, "sc1", x), l2))

    def tr64(self, dst, va, base):
        for t in range(4):
            for h in range(2):
                r = dst + 4 * t + 2 * h
                self.a("ds_read_b64_tr_b16 v[%d:%d], %s offset:%d" % (r, r + 1, va, base + 4096 * t + 2048 * h))

    def tr128(self, dst, base, ts, va=13):
        for i, t in enumerate(ts):
            for ct in range(2):
                for h in range(2):
                    r = dst + 8 * i + 4 * ct + 2 * h
                    self.a("ds_read_b64_tr_b16 v[%d:%d], v%d offset:%d" % (r, r + 1, va + ct, base + 8192 * t + 4096 * h))

    def mfma(self, d, A, B, first):
        c = "0" if first else "v[%d:%d]" % (d, d + 3)
        self.a("v_mfma_f32_16x16x32_bf16 v[%d:%d], v[%d:%d], v[%d:%d], %s" % (d, d + 3, A, A + 3, B, B + 3, c))

    def finish(self):
        if self.debug:
            self.a("s_branch L_dump")
        else:
            self.a("s_endpgm")

    def build(self):
        a = self.a
        a.raw("; @launch grid=(256,1,1) block=(384,1,1) lds=%d" % LDS_BYTES)
        a.raw('.amdgcn_target "amdgcn-amd-amdhsa--gfx950"')
        a.raw(".text\n.globl %s\n.p2align 8\n.type %s,@function" % (KNAME, KNAME))
        a.label(KNAME)
        self.prologue()
        self.loader()
        self.others()
        self.compute()
        self.wo_stage()
        self.flush_cold(("L_wo_st2",))
        self.ffn_stage()
        self.loader2()
        a.autopad = 0
        if self.warm:
            a.label("L_pad%d" % a.npad)
            a("s_branch L_warmed")
        self.aux()
        self.flush_cold()
        if self.debug:
            self.dump()
        a.label("L_end")
        a("s_endpgm")
        a.label("L_codeend")
        a.raw('.section .rodata,"a"\n.p2align 6\n.amdhsa_kernel %s' % KNAME)
        a.raw("  .amdhsa_next_free_vgpr %d\n  .amdhsa_next_free_sgpr 102\n  .amdhsa_accum_offset %d" % ((224, 224) if self.later else (216, 216)))
        a.raw("  .amdhsa_group_segment_fixed_size 0\n  .amdhsa_kernarg_size 104\n  .amdhsa_user_sgpr_count 2")
        a.raw("  .amdhsa_user_sgpr_kernarg_segment_ptr 1\n  .amdhsa_system_sgpr_workgroup_id_x 1\n  .amdhsa_float_denorm_mode_32 3\n.end_amdhsa_kernel")
        return a.text() if self.snt else a.text().replace(' offen nt lds', ' offen lds')

    def flush_cold(self, only=None):
        rest = []
        for l1, f, l2 in self.cold:
            if only is not None and l1 not in only:
                rest.append((l1, f, l2)); continue
            self.a.label(l1)
            f()
            self.a("s_branch %s" % l2)
        self.cold = rest

    def roles(self):
        a = self.a
        lab = a.newlab("Lrole")
        a("s_and_b32 s54, s33, 3")
        a("s_lshr_b32 s44, s33, 2")
        a("s_lshl_b32 s42, s32, 2")
        a("s_add_u32 s53, s42, s44")
        a("s_mov_b32 s55, 0")
        a("s_cmp_lt_u32 s33, 16")
        a("s_cbranch_scc1 %s" % lab)
        a("s_mov_b32 s55, 1")
        a("s_sub_u32 s53, s53, 4")
        a("s_cmp_lt_u32 s32, 4")
        a("s_cbranch_scc1 %s" % lab)
        a("s_mul_i32 s42, s32, 3")
        a("s_add_u32 s53, s42, s44")
        a("s_cmp_lt_u32 s33, 28")
        a("s_cselect_b32 s55, 1, 2")
        a.label(lab)

    def prologue(self):
        a = self.a
        self.stamp(0)
        a("s_load_dwordx16 s[4:19], s[0:1], 0")
        a("s_load_dwordx8 s[20:27], s[0:1], 64")
        a("s_load_dwordx2 s[28:29], s[0:1], 96")
        a("v_lshrrev_b32 v1, 6, v0")
        a("s_cmp_ge_u32 s2, 256")
        a("s_cbranch_scc1 L_end")
        a("v_and_b32 v0, 63, v0")
        a("v_readfirstlane_b32 s3, v1")
        a("s_and_b32 s32, s2, 7")
        a("s_lshr_b32 s33, s2, 3")
        a("s_lshl_b32 s43, s32, 3")
        a("s_add_u32 s42, s43, s33")
        a("s_add_u32 s43, s43, s42")
        a("s_add_u32 s42, s42, 0x70")
        a("s_cmp_lt_u32 s33, 24")
        a("s_cselect_b32 s52, s42, -1")
        a("s_cmp_lt_u32 s33, 16")
        a("s_cselect_b32 s52, s43, s52")
        a("v_mov_b32 v15, %d" % L_S)
        a("s_cmp_eq_u32 s3, 4")
        a("s_cbranch_scc1 L_loader")
        a("s_barrier")
        a("s_cmp_eq_u32 s3, 5")
        a("s_cbranch_scc0 L_nopf")
        a("s_getpc_b64 s[42:43]")
        a.label("L_pc")
        a("s_lshl_b32 s44, s33, 9")
        a("v_lshl_add_u32 v1, v0, 4, s44")
        a("v_min_u32 v1, L_codeend-L_pc-16, v1")
        a("s_mov_b32 exec_hi, 0")
        a("global_load_dwordx4 v[40:43], v1, s[42:43]")
        a("s_mov_b64 exec, -1")
        a.label("L_nopf")
        a("s_branch L_tramp")

    def wssrd(self):
        a = self.a
        a("s_waitcnt lgkmcnt(0)")
        a("s_load_dword s30, s[28:29], 0")
        a("s_mov_b32 s36, s28\ns_mov_b32 s37, s29")

    def others(self):
        a = self.a
        a.label("L_others")
        if self.debug:
            for i in range(1, 16):
                a("s_mov_b32 s%d, 0" % (64 + 2 * i))
        a("s_mov_b32 s38, %d\ns_mov_b32 s39, 0x20000" % WS_SIZE)
        a("s_mov_b32 s34, 0xffffff00")
        a("v_mov_b32 v16, 1")
        self.roles()
        a("s_cmp_eq_u32 s3, 5")
        a("s_cbranch_scc0 L_compute")
        if self.etouch is not None:
            a("v_and_b32 v1, 7, v0")
            a("v_lshlrev_b32 v1, 5, v1")
            a("v_bfe_u32 v2, v0, 3, 1")
            a("v_lshl_add_u32 v2, v2, 13, v1")
            a("s_lshl_b32 s42, s32, 14")
            a("s_and_b32 s43, s33, 7")
            a("s_lshl_b32 s43, s43, 10")
            a("s_add_u32 s42, s42, s43")
            a("s_lshr_b32 s43, s33, 3")
            a("s_lshl_b32 s43, s43, 8")
            a("s_add_u32 s42, s42, s43")
            a("s_add_u32 s42, s42, %d" % W_Q)
            a("v_lshlrev_b32 v1, 5, v0")
            a("s_lshl_b32 s43, s52, 9")
            a("s_add_u32 s43, s43, %d" % W_MOD)
            a("s_cmp_lt_i32 s52, 0")
            a("s_cselect_b32 s43, 0x%x, s43" % WS_SIZE)
            a("s_mov_b64 exec, 0xffff")
            self.wssrd()
            a("buffer_load_dwordx4 v[44:47], v1, s[36:39], s43 offen %s" % self.etouch)
            a("buffer_load_dwordx4 v[48:51], v2, s[36:39], s42 offen %s" % self.etouch)
            a("s_mov_b64 exec, -1")
        else:
            self.wssrd()
        a("s_branch L_aux")

    def windows(self):
        return [self.W] + list(self.cls or ())

    def segloop(self):
        a = self.a
        Ws = self.windows()
        a.label("L_seg")
        for q in range(1, len(Ws)):
            a("s_cmp_eq_u32 s41, %d" % q)
            a("s_cbranch_scc1 L_segc%d" % q)
        for q, W in enumerate(Ws):
            a.label("L_segc%d" % q)
            for k in range(8):
                a("s_waitcnt vmcnt(%d)" % (W - 1))
                if k == (W - 1) % 8:
                    self.publish()
                a("buffer_load_dwordx4 v%d, s[56:59], s44 offen nt lds" % (16 + k % 4))
                a("s_add_u32 m0, m0, s49")
                a("s_add_u32 s44, s44, s47")
                a("s_and_b32 s44, s44, s48")
            a("s_sub_u32 s45, s45, 1")
            a("s_cbranch_scc0 L_segc%d" % q)
            a("s_setpc_b64 s[50:51]")

    def seg(self, n):
        self.a("s_mov_b32 s45, %d" % (n // 8 - 1))
        self.a("s_call_b64 s[50:51], L_seg")

    def publish(self):
        a = self.a
        a("s_mov_b64 exec, 1")
        a("v_add_u32 v14, 8, v14")
        a("ds_write_b32 v15, v14 offset:%d" % C_PROG)
        a("s_mov_b64 exec, -1")

    def rebase(self):
        if len(set((x - 1) // 8 for x in self.windows())) > 1:
            self.a("v_subrev_u32 v14, s61, v14")
        return max(self.windows())

    def drain(self):
        k = ((self.rebase() - 1) // 8) * 8
        while k >= 0:
            self.a("s_waitcnt vmcnt(%d)" % k)
            self.publish()
            k -= 8

    def srd(self, r, p, n):
        self.a("s_mov_b32 s%d, s%d\ns_mov_b32 s%d, s%d\ns_mov_b32 s%d, %d\ns_mov_b32 s%d, 0x20000" % (r, p, r + 1, p + 1, r + 2, n, r + 3))

    def loader(self):
        a = self.a
        self.inld = True
        W = self.W
        a.label("L_loader")
        a("s_setprio 3")
        a("v_lshl_add_u32 v1, v0, 2, v15")
        a("v_mov_b32 v2, 0")
        a("s_mov_b64 exec, 0xffff")
        a("ds_write_b32 v1, v2")
        a("s_mov_b64 exec, -1")
        a("v_lshrrev_b32 v4, 3, v0")
        a("v_and_b32 v5, 7, v0")
        a("v_and_b32 v6, 6, v4")
        a("v_xor_b32 v5, v5, v6")
        a("v_lshlrev_b32 v5, 4, v5")
        a("v_mul_u32_u24 v16, 6144, v4")
        a("v_add_u32 v16, v16, v5")
        a("v_mov_b32 v17, v16\nv_mov_b32 v18, v16\nv_mov_b32 v19, v16")
        p0 = -(((W - 1) // 8) * 8) - 8
        a("s_and_b32 s42, s52, 3")
        a("s_mul_i32 s42, s42, %d" % (128 * 6144))
        a("s_lshr_b32 s43, s52, 2")
        a("s_lshl_b32 s43, s43, 7")
        a("s_add_u32 s44, s42, s43")
        a("s_movk_i32 s49, 0x400")
        a("s_mov_b32 s48, -1")
        a("s_mov_b32 s47, %d" % (8 * 6144))
        a("s_mov_b32 m0, %d" % L_MOD)
        a("s_mov_b32 s58, %d" % (512 * 3072 * 2))
        a("s_mov_b32 s59, 0x20000")
        a("s_cmp_lt_i32 s52, 0")
        a("s_cselect_b32 s42, %d, %d" % (p0 + 16, p0))
        a("v_mov_b32 v14, s42")
        if self.cls:
            a("s_cselect_b32 s41, 0, 1")
            a("s_cmp_lt_u32 s33, 16")
            a("s_cselect_b32 s41, 2, s41")
            octs = [(x - 1) // 8 for x in self.windows()]
            if len(set(octs)) > 1:
                a("s_mov_b32 s61, %d" % ((max(octs) - octs[0]) * 8))
                for q in range(1, len(octs)):
                    a("s_cmp_eq_u32 s41, %d" % q)
                    a("s_cselect_b32 s61, %d, s61" % ((max(octs) - octs[q]) * 8))
                a("v_add_u32 v14, s61, v14")
                a("v_subrev_u32 v14, %d, v14" % ((max(octs) - octs[0]) * 8))
            a("s_cmp_lt_i32 s52, 0")
        if self.sdet == 5: self.sstamp(12)
        a("s_waitcnt lgkmcnt(0)")
        if self.sdet == 5: self.sstamp(13)
        a("s_barrier")
        if self.sdet == 5: self.sstamp(11)
        a("s_mov_b32 s56, s22\ns_mov_b32 s57, s23")
        a("s_cbranch_scc1 L_nomod")
        self.seg(16)
        a("s_branch L_nomod")
        self.segloop()
        a.label("L_tramp")
        a("s_branch L_others")
        a.label("L_nomod")
        if self.debug:
            for i in range(1, 16):
                if not (self.sdet == 5 and i in (11, 12, 13)): a("s_mov_b32 s%d, 0" % (64 + 2 * i))
        if self.sdet == 5: self.sstamp(10)
        a("v_lshl_add_u32 v16, v4, 13, v5")
        a("s_mov_b32 s56, s10\ns_mov_b32 s57, s11\ns_mov_b32 s58, %d" % (512 * 4096 * 2))
        a("v_mov_b32 v17, v16\nv_mov_b32 v18, v16\nv_mov_b32 v19, v16")
        a("s_lshr_b32 s42, s33, 3")
        a("s_lshl_b32 s42, s42, 20")
        a("s_and_b32 s43, s33, 7")
        a("s_lshl_b32 s43, s43, 7")
        a("s_add_u32 s42, s42, s43")
        a("s_lshl_b32 s43, s32, 10")
        a("s_add_u32 s44, s42, s43")
        a("s_mov_b32 s47, 0x10000")
        a("s_mov_b32 m0, %d" % L_WQ)
        self.seg(16)
        self.stamp(1)
        a("v_lshrrev_b32 v1, 4, v0")
        a("v_and_b32 v2, 15, v0")
        a("v_xor_b32 v3, v2, v1")
        a("v_lshlrev_b32 v3, 4, v3")
        a("v_lshl_add_u32 v16, v1, 8, v3")
        for k in (1, 2, 3):
            a("v_xor_b32 v%d, %d, v16" % (16 + k, k << 6))
        a("s_lshr_b32 s42, s33, 4")
        a("s_lshl_b32 s42, s42, 3")
        a("s_add_u32 s42, s42, s32")
        a("s_lshl_b32 s42, s42, 7")
        a("s_and_b32 s43, s33, 15")
        a("s_add_u32 s42, s42, s43")
        a("s_add_u32 s42, s42, 0x70")
        a("s_lshl_b32 s46, s42, 16")
        a("s_add_u32 s56, s6, s46\ns_addc_u32 s57, s7, 0\ns_mov_b32 s58, 0x10000")
        ma, mb = self.rot
        a("s_mul_i32 s42, s33, %d" % ma)
        a("s_mul_i32 s43, s32, %d" % mb)
        a("s_add_u32 s42, s42, s43")
        a("s_lshl_b32 s42, s42, 10")
        a("s_mov_b32 s48, 0xffff")
        a("s_and_b32 s44, s42, s48")
        a("s_mov_b32 s47, s49")
        if self.sdet in (5, 6):
            for q in range(4):
                self.sstamp(6 + q)
                self.seg(16)
        else:
            self.seg(64)
        self.stamp(2)
        a("v_lshlrev_b32 v3, 1, v1")
        a("v_xor_b32 v3, v2, v3")
        a("v_lshlrev_b32 v3, 4, v3")
        a("v_lshl_add_u32 v16, v1, 8, v3")
        a("v_xor_b32 v17, 0x80, v16")
        a("v_mov_b32 v18, v16\nv_mov_b32 v19, v17")
        a("s_add_u32 s56, s8, s46\ns_addc_u32 s57, s9, 0")
        self.seg(self.vsplit)
        self.roles_ld()
        a("v_lshl_add_u32 v24, v1, 10, v3")
        a("v_xor_b32 v25, 0x80, v24")
        a("s_cmp_lt_i32 s52, 0")
        a("s_cbranch_scc1 L_vtail")
        self.lwait(C_MOD, "4")
        a.label("L_vtail")
        self.seg(64 - self.vsplit)
        self.stamp(3)
        a("s_branch L_loader2")
        self.inld = False

    def roles_ld(self):
        a = self.a
        a("s_mov_b32 s40, s44")
        self.roles()
        a("s_mov_b32 s44, s40")

    def loader2(self):
        a = self.a
        self.inld = True
        a.label("L_loader2")
        self.loader_wo()
        self.loader_rest()

    def burst(self, n, srd=56, vs=(24, 25), step="s47"):
        a = self.a
        u = 8
        lab = a.newlab("Lseg")
        if n > u:
            a("s_mov_b32 s45, %d" % (n // u - 1))
            a.label(lab)
        for q in range(u):
            a("buffer_load_dwordx4 v%d, s[%d:%d], s44 offen nt lds" % (vs[q % 2], srd, srd + 3))
            a("s_add_u32 m0, m0, s49")
            a("s_add_u32 s44, s44, %s" % step)
        if n > u:
            a("s_sub_u32 s45, s45, 1")
            a("s_cbranch_scc0 %s" % lab)

    def loader_wo(self):
        a = self.a
        burst = self.burst
        a("s_cmp_eq_u32 s55, 0")
        a("s_cbranch_scc0 L_ld_notwo")
        self.srd(56, 12, 4096 * 512 * 2)
        a("s_lshl_b32 s42, s53, 17")
        a("s_lshl_b32 s43, s54, 8")
        a("s_add_u32 s44, s42, s43")
        a("s_mov_b32 m0, %d" % L_K)
        self.lwait(C_K, "4")
        left = ((self.rebase() - 1) // 8 + 1) * 8
        a("s_movk_i32 s47, 0x1000")
        issued = self.pb
        burst(self.pb)
        while left > 0:
            left -= 8
            a("s_waitcnt vmcnt(%d)" % (left + issued))
            self.publish()
            if issued < 32:
                n = 8 if left > 0 else 32 - issued
                burst(n); issued += n
        a("s_waitcnt vmcnt(0)")
        a("v_mov_b32 v14, 184")
        self.publish()
        self.stamp(4)
        self.finish()
        a.label("L_ld_notwo")

    def loader_rest(self):
        a = self.a
        burst = self.burst
        self.drain()
        self.stamp(4)
        a("s_cmp_eq_u32 s55, 1")
        a("s_cbranch_scc0 L_ld_end")
        a("v_mul_u32_u24 v26, 3584, v4")
        a("v_add_u32 v26, v26, v5")
        self.srd(56, 16, 512 * 1792 * 2)
        self.srd(60, 18, 512 * 1792 * 2)
        a("s_movk_i32 s47, 0x1000")
        a("s_movk_i32 s46, %d" % (8 * 3584))
        a("s_mul_i32 s42, s54, %d" % (128 * 3584))
        a("s_lshl_b32 s43, s53, 7")
        a("s_add_u32 s44, s42, s43")
        a("s_mov_b32 m0, %d" % L_K)
        self.lwait((C_K, C_O, C_X)[self.fd], "1" if self.fd == 2 else "4")
        burst(16, 56, (26, 26), "s46")
        a("s_lshl_b32 s42, s53, 16")
        a("s_lshl_b32 s43, s54, 8")
        a("s_add_u32 s44, s42, s43")
        burst(16, 60)
        a("s_waitcnt vmcnt(0)")
        a("v_mov_b32 v14, 184")
        self.publish()
        self.stamp(5)
        a.label("L_ld_end")
        self.finish()
        self.inld = False

    def aux(self):
        a = self.a
        a.label("L_aux")
        a("s_waitcnt vmcnt(0)")
        self.stamp(1)
        if self.warm:
            a("s_mov_b64 exec, 0")
            a("s_branch L_pad0")
            a.label("L_warmed")
            a("s_mov_b64 exec, -1")
        self.stamp(2)
        a("v_and_b32 v12, 7, v0")
        a("v_lshlrev_b32 v12, 5, v12")
        a("s_lshl_b32 s48, s53, 2")
        a("s_add_u32 s48, s48, s54")
        a("s_lshl_b32 s48, s48, 8")
        a("s_add_u32 s48, s48, %d" % W_ST)
        a("s_cmp_eq_u32 s55, 0")
        a("s_cselect_b32 s48, s48, 0x%x" % WS_SIZE)
        a("buffer_load_dwordx4 v[32:35], v12, s[36:39], s48 offen sc1")
        a("v_and_b32 v3, 3, v0")
        a("v_lshlrev_b32 v3, 5, v3")
        a("v_bfe_u32 v4, v0, 2, 2")
        a("v_lshrrev_b32 v5, 4, v0")
        a("v_lshl_add_u32 v10, v4, 12, v3")
        a("v_lshl_add_u32 v10, v5, 14, v10")
        a("s_lshl_b32 s46, s32, 9")
        a("s_and_b32 s43, s33, 3")
        a("s_lshl_b32 s43, s43, 3")
        a("s_add_u32 s46, s46, s43")
        a("s_bfe_u32 s43, s33, 0x20002")
        a("s_lshl_b32 s43, s43, 1")
        a("s_add_u32 s46, s46, s43")
        a("s_lshr_b32 s43, s33, 4")
        a("s_add_u32 s46, s46, s43")
        a("s_lshl_b32 s46, s46, 7")
        a("s_add_u32 s46, s46, %d" % W_O)
        if self.tO: self.lwait(C_PROG, "%d" % self.tO)
        for q, fl in enumerate(self.tfl):
            if q: a("s_waitcnt vmcnt(0)")
            a("buffer_load_dwordx4 v[24:27], v10, s[36:39], s46 offen %s" % fl)
        a("s_waitcnt lgkmcnt(0)")
        a("s_add_u32 s31, s30, 1")
        a("s_and_b32 s31, s31, 0xff")
        a("s_xor_b32 s42, s31, 0x55")
        a("v_mov_b32 v4, s42\nv_mov_b32 v6, s42")
        if self.pw:
            a("s_cmp_eq_u32 s55, 0")
            a("s_cbranch_scc1 L_aux_wo")
        a("s_cmp_eq_u32 s55, 1")
        a("s_cbranch_scc0 L_aux_end")
        a("v_and_b32 v3, 7, v0")
        a("v_lshrrev_b32 v2, 3, v0")
        a("v_lshlrev_b32 v11, 5, v3")
        a("v_lshl_add_u32 v11, v2, 10, v11")
        a("s_lshl_b32 s47, s53, 13")
        a("s_lshl_b32 s43, s54, 8")
        a("s_add_u32 s47, s47, s43")
        a("s_add_u32 s47, s47, %d" % W_U)
        a("v_mul_u32_u24 v2, 3584, v2")
        a("v_lshl_add_u32 v2, v3, 4, v2")
        a("s_mul_i32 s43, s54, %d" % (4 * 7168))
        a("s_lshl_b32 s44, s53, 7")
        a("s_add_u32 s43, s43, s44")
        a("s_add_u32 s43, s43, %d" % W_F)
        self.lwait(C_O, "4")
        a("buffer_load_dwordx4 v[28:31], v11, s[36:39], s47 offen sc1")
        if self.pf:
            self.st(4, "v2", "s43", "sc1")
        if self.pw:
            self.finish()
            a.label("L_aux_wo")
            a("v_lshrrev_b32 v2, 4, v0")
            a("v_and_b32 v3, 15, v0")
            a("v_lshlrev_b32 v3, 4, v3")
            a("v_lshl_add_u32 v2, v2, 13, v3")
            a("s_lshl_b32 s44, s54, 15")
            a("s_lshl_b32 s45, s53, 8")
            a("s_add_u32 s44, s44, s45")
            a("s_add_u32 s44, s44, %d" % W_W)
            self.st(4, "v2", "s44", "sc1")
        self.stamp(3)
        a.label("L_aux_end")
        self.finish()

    def modgather(self, parts, dsts, rbs, each=None):
        a = self.a
        a("s_lshl_b32 s42, %s, 1" % rbs)
        a("s_lshr_b32 s43, s3, 1")
        a("s_add_u32 s42, s42, s43")
        a("s_lshl_b32 s48, s42, 11")
        a("s_and_b32 s43, s3, 1")
        a("s_lshl_b32 s43, s43, 8")
        a("s_add_u32 s48, s48, s43")
        loads = []
        for i, p in enumerate(parts):
            if p < 4:
                a("s_lshr_b32 s43, s42, 2")
                a("s_add_u32 s43, s43, %d" % (2 * p))
            else:
                a("s_lshr_b32 s43, s42, 1")
                a("s_add_u32 s43, s43, %d" % (4 * (p - 4)))
            a("s_cmp_eq_u32 s43, s32")
            a("s_cselect_b32 s43, %d, 1" % (1 if (self.later and p >= 2) else 0))
            a("s_lshl_b32 s43, s43, 21")
            a("s_add_u32 s43, s43, s48")
            a("s_add_u32 s%d, s43, %d" % (44 + i, W_MOD + p * 16384))
            loads.append((96 + 4 * i, "v7", "s%d" % (44 + i), 0))
        self.gather(loads, alt=[l[2] for l in loads], each=each)
        self.tred2([96 + 4 * i for i in range(len(dsts))], dsts)
        for d in dsts:
            self.rbf(d)

    def compute(self):
        a = self.a
        a.label("L_compute")
        a("v_lshrrev_b32 v1, 4, v0")
        a("v_bfe_u32 v2, v0, 3, 1")
        a("v_and_b32 v3, 7, v0")
        a("v_lshlrev_b32 v6, 5, v0")
        a("v_and_b32 v6, 0x400, v6")
        a("v_and_b32 v4, 31, v0")
        a("v_lshl_add_u32 v6, v4, 3, v6")
        a("s_and_b32 s42, s52, 3")
        a("v_lshl_add_u32 v6, s42, 8, v6")
        a("v_lshl_add_u32 v4, v1, 3, v3")
        a("v_lshlrev_b32 v4, 5, v4")
        a("v_lshl_add_u32 v4, v2, 10, v4")
        a("v_lshl_add_u32 v5, v3, 2, v1")
        a("s_lshl_b32 s42, s3, 5")
        a("v_add_u32 v5, s42, v5")
        a("v_lshl_add_u32 v5, v2, 9, v5")
        a("v_lshlrev_b32 v148, 1, v5")
        a("s_lshr_b32 s50, s33, 3")
        a("v_lshl_add_u32 v5, s50, 8, v148")
        a("v_lshl_add_u32 v148, s54, 8, v148")
        self.wssrd()
        a.autopad = self.warm
        a.since = self.warm - 400 if self.warm else 0
        a("global_load_dwordx2 v[24:25], v6, s[20:21]")
        a("global_load_dwordx4 v[64:67], v4, s[4:5]")
        a("global_load_dwordx4 v[68:71], v4, s[4:5] offset:16")
        a("global_load_ushort v18, v5, s[4:5]")
        a("global_load_ushort v19, v148, s[4:5]")
        a("v_lshlrev_b32 v150, 4, v1")
        a("v_and_b32 v4, 1, v0")
        a("v_lshl_add_u32 v151, v4, 6, v150")
        a("v_mul_u32_u24 v4, 320, v4")
        a("v_add3_u32 v10, v4, v150, v15")
        a("v_bfe_u32 v4, v0, 2, 2")
        a("v_lshl_add_u32 v5, v1, 2, v4")
        a("v_bfe_u32 v6, v0, 1, 1")
        a("v_and_b32 v8, 1, v0")
        a("v_lshlrev_b32 v8, 3, v8")
        a("s_lshl_b32 s42, s3, 1")
        a("v_add_u32 v9, s42, v6")
        a("v_and_b32 v12, 6, v5")
        a("v_xor_b32 v9, v9, v12")
        a("v_lshl_add_u32 v9, v9, 4, v8")
        a("v_lshl_add_u32 v12, v5, 7, v9")
        a("s_lshl_b32 s42, s3, 2")
        a("v_add_u32 v9, s42, v6")
        a("v_and_b32 v13, 7, v5")
        a("v_lshlrev_b32 v13, 1, v13")
        a("v_xor_b32 v9, v9, v13")
        a("v_lshl_add_u32 v9, v9, 4, v8")
        a("v_lshl_add_u32 v13, v5, 8, v9")
        a("v_xor_b32 v14, 32, v13")
        a("s_mov_b32 s40, 0")
        a("s_cmp_lt_i32 s52, 0")
        a("s_cbranch_scc1 L_c_nomod")
        a("v_lshrrev_b32 v4, 5, v0")
        a("v_mul_u32_u24 v4, 320, v4")
        a("v_bfe_u32 v5, v0, 3, 2")
        a("v_lshl_add_u32 v4, v5, 6, v4")
        a("v_and_b32 v5, 3, v0")
        a("v_lshl_add_u32 v4, v5, 4, v4")
        a("v_bfe_u32 v5, v0, 2, 1")
        a("v_lshl_add_u32 v4, v5, 3, v4")
        a("s_mul_i32 s42, s3, 640")
        a("s_add_u32 s43, s42, %d" % (L_S + S_C))
        a("v_add_u32 v4, s43, v4")
        a("v_add_u32 v5, s42, v10")
        a("s_waitcnt vmcnt(4)")
        a("v_lshlrev_b32 v26, 16, v24")
        a("v_and_b32 v27, 0xffff0000, v24")
        a("v_lshlrev_b32 v28, 16, v25")
        a("v_and_b32 v29, 0xffff0000, v25")
        for k in range(4):
            a("v_mul_f32 v%d, %s, v%d" % (32 + k, f2u(-L2E), 26 + k))
        for k in range(4):
            a("v_exp_f32 v%d, v%d" % (32 + k, 32 + k))
        for k in range(4):
            a("v_add_f32 v%d, 1.0, v%d" % (32 + k, 32 + k))
        for k in range(4):
            a("v_rcp_f32 v%d, v%d" % (32 + k, 32 + k))
        for k in range(4):
            a("v_mul_f32 v%d, v%d, v%d" % (26 + k, 26 + k, 32 + k))
        a("v_cvt_pk_bf16_f32 v24, v26, v27")
        a("v_cvt_pk_bf16_f32 v25, v28, v29")
        a("ds_write_b64 v4, v[24:25]")
        for t in range(4):
            a("ds_read_b128 v[%d:%d], v5 offset:%d" % (48 + 4 * t, 51 + 4 * t, S_C + 64 * t))
        a("v_add_u32 v6, %d, v12" % L_MOD)
        a("s_lshl_b32 s44, s52, 9")
        a("s_lshl_b32 s43, s3, 7")
        a("s_add_u32 s44, s44, s43")
        a("s_add_u32 s44, s44, %d" % W_MOD)
        self.lwait(C_PROG, "16", cache="s40")
        self.stamp(1)
        self.tr64(32, "v6", 0)
        a("s_add_u32 s31, s30, 1")
        a("s_and_b32 s31, s31, 0xff")
        a("v_mov_b32 v17, s31")
        for t in range(4):
            a("s_waitcnt lgkmcnt(%d)" % (0 if self.debug else 6 - 2 * t))
            self.mfma(128, 32 + 4 * t, 48 + 4 * t, t == 0)
        self.lsignal(C_MOD)
        if self.later:
            a("s_mov_b32 s63, s44")
            for r in range(4):
                a("v_mov_b32 v%d, v%d" % (216 + r, 128 + r))
            self.tag4(216)
            a("s_cmp_lt_u32 s52, 64")
            a("s_cbranch_scc0 L_c_nomod")
            self.execm(0x0003)
            self.store_dual(216, "v151", "s44")
        else:
            self.tag4(128)
            self.execm(0x0003)
            self.store_dual(128, "v151", "s44")
        self.execall()
        self.stamp(2)
        a("s_waitcnt vmcnt(2)")
        a("s_branch L_c_ln")
        a.label("L_c_nomod")
        a("s_waitcnt vmcnt(0) lgkmcnt(0)")
        a("s_add_u32 s31, s30, 1")
        a("s_and_b32 s31, s31, 0xff")
        a("v_mov_b32 v17, s31")
        a.label("L_c_ln")
        for k in range(8):
            a("v_lshlrev_b32 v%d, 16, v%d" % (72 + 2 * k, 64 + k))
            a("v_and_b32 v%d, 0xffff0000, v%d" % (73 + 2 * k, 64 + k))
        a("v_add_f32 v4, v72, v73")
        for k in range(2, 16):
            a("v_add_f32 v4, v4, v%d" % (72 + k))
        for c in ("quad_perm:[1,0,3,2]", "quad_perm:[2,3,0,1]", "row_half_mirror"):
            self.dpp("v_add_f32", "v4", c)
        self.allred_hi("v4", "v5", "v_add_f32")
        a("v_mul_f32 v4, %s, v4" % f2u(1.0 / 512))
        for k in range(16):
            a("v_sub_f32 v%d, v%d, v4" % (72 + k, 72 + k))
        a("v_mul_f32 v6, v72, v72")
        for k in range(1, 16):
            a("v_fmac_f32 v6, v%d, v%d" % (72 + k, 72 + k))
        for c in ("quad_perm:[1,0,3,2]", "quad_perm:[2,3,0,1]", "row_half_mirror"):
            self.dpp("v_add_f32", "v6", c)
        self.allred_hi("v6", "v5", "v_add_f32")
        a("v_mul_f32 v6, %s, v6" % f2u(1.0 / 512))
        self.rbf("v4"); self.rbf("v6")
        a("v_add_f32 v6, %s, v6" % f2u(1e-5))
        self.rbf("v6")
        a("v_sqrt_f32 v6, v6")
        self.rbf("v6")
        a("v_rcp_f32 v6, v6")
        a("v_lshlrev_b32 v18, 16, v18")
        a("v_lshlrev_b32 v19, 16, v19")
        a("v_sub_f32 v18, v18, v4")
        self.rbf("v18")
        a("v_mul_f32 v18, v18, v6")
        self.rbf("v18")
        a("v_and_b32 v4, 3, v0")
        a("v_lshlrev_b32 v4, 4, v4")
        a("v_bfe_u32 v5, v0, 2, 1")
        a("v_lshl_add_u32 v7, v2, 6, v4")
        a("v_lshl_add_u32 v7, v5, 7, v7")
        a("v_lshl_add_u32 v7, v1, 9, v7")
        a("v_lshl_add_u32 v4, v5, 3, v4")
        a("v_lshl_add_u32 v4, v1, 1, v4")
        a("s_lshl_b32 s42, s3, 6")
        a("s_add_u32 s42, s42, %d" % L_S)
        a("v_add_u32 v4, s42, v4")
        a("v_mul_u32_u24 v6, 320, v2")
        a("v_add_u32 v11, v6, v4")
        a("v_mul_u32_u24 v6, 272, v2")
        a("v_add_u32 v149, v6, v4")
        a("v_lshlrev_b32 v152, 4, v0")
        a("v_and_b32 v4, 1, v0")
        a("v_lshl_add_u32 v159, v4, 13, v150")
        a("s_lshl_b32 s42, s32, 14")
        a("s_and_b32 s43, s33, 7")
        a("s_lshl_b32 s43, s43, 10")
        a("s_add_u32 s42, s42, s43")
        a("s_lshl_b32 s43, s50, 8")
        a("s_add_u32 s42, s42, s43")
        a("s_lshl_b32 s43, s3, 6")
        a("s_add_u32 s42, s42, s43")
        a("s_add_u32 s51, s42, %d" % W_Q)
        a("s_getreg_b32 s42, hwreg(HW_REG_XCC_ID, 0, 4)")
        if self.forcediff:
            a("s_and_b32 s42, s33, 1")
        a("s_lshl_b32 s42, s42, 4")
        a("s_and_b32 s43, s31, 15")
        a("s_or_b32 s101, s42, s43")
        a("v_mov_b32 v153, s101")
        self.lwait(C_PROG, "32", cache="s40")
        self.tr64(32, "v12", L_WQ)
        if self.th_h > 32:
            self.lwait(C_PROG, "%d" % self.th_h, cache="s40")
        if self.sdet == 6: self.sstamp(10)
        self.modgather([0, 1], ["v4", "v5"], "s50")
        if self.sdet == 6 and self.debug: a("s_mov_b32 s86, s35")
        self.stamp(3)
        a("v_add_f32 v5, 1.0, v5")
        self.rbf("v5")
        a("v_mul_f32 v5, v18, v5")
        self.rbf("v5")
        a("v_add_f32 v5, v5, v4")
        a("v_cvt_pk_bf16_f32 v5, v5, v5")
        a("ds_write_b16 v11, v5 offset:%d" % S_H)
        self.lsignal(C_A)
        self.lwait(C_A, "4")
        for t in range(4):
            a("ds_read_b128 v[%d:%d], v10 offset:%d" % (48 + 4 * t, 51 + 4 * t, S_H + 64 * t))
        for t in range(4):
            a("s_waitcnt lgkmcnt(%d)" % (3 - t))
            self.mfma(140, 32 + 4 * t, 48 + 4 * t, t == 0)
        self.tag4(140, "v153")
        self.execm(0x0003)
        self.st(140, "v159", "s51", "")
        self.execall()
        a("s_or_b32 s51, s51, 0x%x" % W_DUAL)
        self.stamp(4)
        a("v_and_b32 v4, 3, v0")
        a("v_lshl_add_u32 v4, v4, 14, v150")
        a("v_bfe_u32 v5, v0, 2, 1")
        a("v_lshl_add_u32 v154, v5, 6, v4")
        a("s_lshl_b32 s42, s32, 4")
        a("s_add_u32 s42, s42, s3")
        a("s_lshl_b32 s42, s42, 5")
        a("s_and_b32 s43, s33, 3")
        a("s_lshl_b32 s43, s43, 3")
        a("s_add_u32 s42, s42, s43")
        a("s_bfe_u32 s43, s33, 0x20002")
        a("s_lshl_b32 s43, s43, 1")
        a("s_add_u32 s42, s42, s43")
        a("s_lshr_b32 s43, s33, 4")
        a("s_add_u32 s42, s42, s43")
        a("s_lshl_b32 s42, s42, 7")
        a("s_add_u32 s96, s42, %d" % W_O)
        a("v_and_b32 v4, 1, v0")
        a("v_bfe_u32 v5, v0, 1, 1")
        a("v_lshl_add_u32 v5, v5, 6, v150")
        a("s_cmp_eq_u32 s55, 0")
        a("s_cbranch_scc0 L_c_nowo")
        a("v_lshl_add_u32 v155, v4, 7, v5")
        a("s_lshl_b32 s42, s54, 2")
        a("s_add_u32 s42, s42, s3")
        a("s_lshl_b32 s42, s42, 5")
        a("s_add_u32 s42, s42, s53")
        a("s_lshl_b32 s42, s42, 8")
        a("s_add_u32 s97, s42, %d" % W_W)
        a("s_lshl_b32 s42, s53, 2")
        a("s_add_u32 s42, s42, s3")
        a("s_lshl_b32 s42, s42, 12")
        a("s_add_u32 s99, s42, %d" % W_O)
        a("v_lshlrev_b32 v4, 5, v1")
        a("v_lshl_add_u32 v156, v2, 7, v4")
        a("s_lshr_b32 s42, s42, 4")
        a("s_add_u32 s100, s42, %d" % W_ST)
        a.label("L_c_nowo")
        a("s_cmp_eq_u32 s55, 1")
        a("s_cbranch_scc0 L_c_noffn")
        a("v_mul_u32_u24 v4, 3584, v4")
        a("v_add_u32 v156, v4, v5")
        a("s_lshl_b32 s42, s54, 2")
        a("s_add_u32 s42, s42, s3")
        a("s_lshl_b32 s43, s42, 13")
        a("s_add_u32 s99, s43, %d" % W_W)
        a("s_mul_i32 s42, s42, 7168")
        a("s_lshl_b32 s43, s53, 7")
        a("s_add_u32 s42, s42, s43")
        a("s_add_u32 s98, s42, %d" % W_F)
        a("v_and_b32 v4, 15, v0")
        a("v_mul_u32_u24 v5, 272, v4")
        a("v_add3_u32 v157, v5, v150, v15")
        a("v_lshlrev_b32 v5, 1, v2")
        a("v_sub_u32 v4, v4, v5")
        a("v_and_b32 v5, 3, v4")
        a("v_lshl_add_u32 v5, v5, 6, v150")
        a("v_lshrrev_b32 v4, 2, v4")
        a("v_lshl_add_u32 v155, v4, 10, v5")
        a("s_lshl_b32 s42, s53, 2")
        a("s_add_u32 s42, s42, s3")
        a("s_lshl_b32 s42, s42, 11")
        a("s_add_u32 s100, s42, %d" % W_U)
        a("s_lshl_b32 s43, s54, 8")
        a("s_add_u32 s97, s100, s43")
        a("v_bfe_u32 v4, v0, 2, 1")
        a("v_mul_u32_u24 v4, 320, v4")
        a("v_and_b32 v5, 3, v0")
        a("v_lshl_add_u32 v4, v5, 4, v4")
        a("v_lshl_add_u32 v4, v1, 1, v4")
        a("s_lshr_b32 s42, s3, 1")
        a("s_lshl_b32 s42, s42, 6")
        a("s_and_b32 s43, s3, 1")
        a("s_lshl_b32 s43, s43, 3")
        a("s_add_u32 s42, s42, s43")
        a("s_add_u32 s42, s42, %d" % (L_S + S_U))
        a("v_add_u32 v158, s42, v4")
        a.label("L_c_noffn")
        a("v_and_b32 v4, 15, v0")
        a("v_xor_b32 v5, v4, v1")
        a("v_lshlrev_b32 v5, 4, v5")
        a("v_lshl_add_u32 v5, v4, 8, v5")
        a("s_lshl_b32 s42, s3, 14")
        a("s_add_u32 s42, s42, %d" % L_K)
        a("v_add_u32 v24, s42, v5")
        for t in (1, 2, 3):
            a("v_xor_b32 v%d, %d, v24" % (24 + t, 64 * t))
        a("s_lshl_b32 s42, s32, 1")
        a("s_lshr_b32 s43, s33, 4")
        a("s_add_u32 s42, s42, s43")
        a("s_lshl_b32 s42, s42, 13")
        a("s_lshl_b32 s43, s3, 11")
        a("s_add_u32 s42, s42, s43")
        a("s_add_u32 s44, s42, %d" % W_Q)
        self.smask(56, 0x00f0); self.smask(58, 0x0f00); self.smask(60, 0xf000)
        a("v_and_b32 v4, 15, v0")
        a("v_lshl_add_u32 v4, v4, 2, v1")
        a("v_lshlrev_b32 v4, 1, v4")
        a("s_mul_i32 s42, s3, 320")
        a("s_add_u32 s42, s42, %d" % (L_S + S_Q))
        a("v_add_u32 v28, s42, v4")
        a("v_and_b32 v4, 3, v0")
        a("v_mul_u32_u24 v5, 320, v4")
        a("v_add3_u32 v29, v5, v150, v15")
        a("v_mul_u32_u24 v5, 576, v4")
        a("v_add3_u32 v30, v5, v150, v15")
        a("v_bfe_u32 v8, v0, 2, 1")
        a("v_lshl_add_u32 v5, v8, 3, v30")
        a("v_lshl_add_u32 v5, v2, 6, v5")
        a("s_lshl_b32 s42, s3, 7")
        a("v_add_u32 v31, s42, v5")
        a("v_lshl_add_u32 v144, v4, 4, v15")
        a("s_lshl_b32 s42, s3, 2")
        a("v_add_u32 v145, s42, v144")
        a("v_lshlrev_b32 v147, 10, v4")
        a("v_add_u32 v153, v152, v15")
        a("v_add_u32 v146, s42, v153")
        if self.th_q:
            self.lwait(C_PROG, "%d" % self.th_q, cache="s40")
        def pubq():
            self.execm(0x0003)
            self.st(140, "v159", "s51", "sc1")
            self.execall()
        def qdone(b):
            for k in range(0, 8, 2):
                a("v_and_b32 v%d, s34, v%d" % (b + k, b + k))
            self.tred2([b, b + 4], ["v4", "v5"])
        def kread():
            a("s_lshl_b32 s43, s3, 4")
            a("s_add_u32 s43, s43, 48")
            self.lwait(C_PROG, "s43", cache="s40")
            self.stamp(5)
            for tau in range(4):
                for t in range(4):
                    r = 64 + 16 * tau + 4 * t
                    a("ds_read_b128 v[%d:%d], v%d offset:%d" % (r, r + 3, 24 + t, 4096 * tau))
        self.pgather([160 + 8 * k for k in range(self.nsq)], [("v152", "s44", 0), ("v152", "s44", 1024)], qdone,
                     alt=["s44"], tag="s101", tmask=0x0f, onalt=pubq, pre=(kread if self.nsq > 1 else None))
        self.stamp(6)
        a("v_cvt_pk_bf16_f32 v4, v4, v5")
        a("ds_write_b16 v28, v4")
        a("ds_write_b16_d16_hi v28, v4 offset:128")
        a("v_and_b32 v9, 0xf0, v9")
        a("v_cmp_ne_u32 vcc, 0, v9")
        a("s_cbranch_vccz L_c_same")
        a("ds_write_b32 v15, v16 offset:%d" % C_DIFF)
        a.label("L_c_same")
        self.lsignal(C_B)
        if self.nsq == 1: kread()
        self.lwait(C_B, "4", hook=pubq)
        for t in range(4):
            a("ds_read_b128 v[%d:%d], v29 offset:%d" % (48 + 4 * t, 51 + 4 * t, S_Q + 64 * t))
        a("ds_read_b32 v6, v15 offset:%d" % C_DIFF)
        a("ds_read_b32 v9, v15 offset:%d" % C_PROG)
        a("v_add_u32 v24, %d, v13" % L_V)
        a("v_add_u32 v25, %d, v14" % L_V)
        for t in range(4):
            a("s_waitcnt lgkmcnt(%d)" % (5 - t))
            for tau in range(4):
                self.mfma((128, 132, 136, 32)[tau], 64 + 16 * tau + 4 * t, 48 + 4 * t, t == 0)
        a("s_waitcnt lgkmcnt(0)")
        self.lsignal(C_K)
        a("v_readfirstlane_b32 s41, v6")
        a("v_readfirstlane_b32 s40, v9")
        a("s_cmp_eq_u32 s41, 0")
        a("s_cbranch_scc1 L_c_same2")
        pubq()
        a.label("L_c_same2")
        a("s_cmp_ge_i32 s40, 160")
        a("s_cselect_b32 s49, 1, 0")
        a("s_cbranch_scc0 L_c_vlate")
        self.tr128(64, 0, range(8), va=24)
        a.label("L_c_vlate")
        for tau in (1, 2, 3):
            for r in range(4):
                a("v_cndmask_b32 v%d, v%d, v%d, s[%d:%d]" % (128 + r, 128 + r, (128, 132, 136, 32)[tau] + r, 54 + 2 * tau, 55 + 2 * tau))
        def unpack(dlo, src):
            a("v_lshlrev_b32 v%d, 16, v%d" % (dlo, src))
            a("v_and_b32 v%d, 0xffff0000, v%d" % (dlo + 1, src))
        if self.ms:
            a("v_cvt_pk_bf16_f32 v4, v128, v129")
            a("v_cvt_pk_bf16_f32 v5, v130, v131")
            unpack(128, 4); unpack(130, 5)
        for r in range(4):
            a("v_mul_f32 v%d, %s, v%d" % (128 + r, f2u(128 ** -0.5), 128 + r))
        if self.ms:
            a("v_cvt_pk_bf16_f32 v4, v128, v129")
            a("v_cvt_pk_bf16_f32 v5, v130, v131")
            unpack(128, 4); unpack(130, 5)
        a("v_max3_f32 v4, v128, v129, v130")
        a("v_max_f32 v4, v4, v131")
        if not self.ms: a("v_and_b32 v4, 0xffff0000, v4")
        a("s_mov_b32 s42, %s" % f2u(L2E))
        self.dpp("v_max_f32", "v4", "row_ror:4")
        self.dpp("v_max_f32", "v4", "row_ror:8")
        self.allred_hi("v4", "v5", "v_max_f32")
        a("v_mul_f32 v5, %s, v4" % f2u(-L2E))
        for r in range(4):
            a("v_fma_f32 v%d, v%d, s42, v5" % (128 + r, 128 + r))
        for r in range(4):
            a("v_exp_f32 v%d, v%d" % (128 + r, 128 + r))
        a("s_mov_b64 exec, 15")
        a("ds_write_b32 v145, v4 offset:%d" % S_WM)
        a("s_mov_b64 exec, -1")
        a("v_cvt_pk_bf16_f32 v4, v128, v129")
        a("v_cvt_pk_bf16_f32 v5, v130, v131")
        a("ds_write_b64 v31, v[4:5] offset:%d" % S_P)
        unpack(128, 4); unpack(130, 5)
        a("v_add_f32 v128, v128, v129")
        a("v_add_f32 v130, v130, v131")
        a("v_add_f32 v6, v128, v130")
        a("ds_write_b32 v146, v6 offset:%d" % S_C)
        self.lsignal(C_D)
        self.lwait(C_D, "4")
        self.stamp(7)
        a("ds_read_b128 v[136:139], v144 offset:%d" % S_WM)
        for c in range(8):
            a("ds_read_b128 v[%d:%d], v30 offset:%d" % (184 + 4 * c, 187 + 4 * c, S_P + 64 * c))
        a("ds_read_b128 v[140:143], v153 offset:%d" % S_C)
        if self.pvm: a("ds_read_b32 v9, v15 offset:%d" % C_PROG)
        a("s_lshl_b32 s43, s32, 12")
        a("s_lshl_b32 s44, s33, 3")
        a("s_add_u32 s43, s43, s44")
        a("s_lshl_b32 s44, s3, 8")
        a("s_add_u32 s43, s43, s44")
        a("s_add_u32 s44, s43, %d" % W_ST)
        a("s_add_u32 s46, s30, 1")
        a("s_and_b32 s46, s46, 0xffff")
        a("s_mov_b32 s43, %s" % f2u(L2E))
        def pv(c, base):
            for ct in range(2):
                self.mfma(32 + 8 * (c >> 1) + 4 * ct, base + 4 * ct, 184 + 4 * c, c % 2 == 0)
        def factors():
            a("v_max3_f32 v132, v136, v137, v138")
            a("v_max_f32 v132, v132, v139")
            a("v_mul_f32 v4, %s, v132" % f2u(-L2E))
            for i in range(4):
                a("v_fma_f32 v%d, v%d, s43, v4" % (20 + i, 136 + i))
            for i in range(4):
                a("v_exp_f32 v%d, v%d" % (20 + i, 20 + i))
        def comb(w):
            for r in range(4):
                a("v_cndmask_b32 v%d, v%d, v%d, s[56:57]" % (32 + 8 * w + r, 32 + 8 * w + r, 36 + 8 * w + r))
            for r in range(4):
                if w == 0: a("v_mul_f32 v%d, v%d, v20" % (128 + r, 32 + r))
                else: a("v_fmac_f32 v%d, v%d, v%d" % (128 + r, 32 + 8 * w + r, 20 + w))
        def stats():
            a("v_mul_f32 v133, v140, v20")
            for i in (1, 2, 3):
                a("v_fmac_f32 v133, v%d, v%d" % (140 + i, 20 + i))
            self.dpp("v_add_f32", "v133", "row_ror:4")
            self.dpp("v_add_f32", "v133", "row_ror:8")
            self.allred_hi("v133", "v5", "v_add_f32")
            a("v_or_b32 v132, s46, v132")
            a("v_and_or_b32 v133, v133, s34, v17")
            a("s_mov_b64 exec, 15")
            self.store_local(132, "v147", "s44", x=2)
            self.execall()
        a("s_cmp_eq_u32 s49, 1")
        a("s_cbranch_scc0 L_c_pvslow")
        x = 1 if self.pvm else 0
        a("s_waitcnt lgkmcnt(%d)" % (7 + x))
        pv(0, 64); pv(1, 72)
        factors()
        a("s_waitcnt lgkmcnt(%d)" % (5 + x))
        pv(2, 80); pv(3, 88)
        a("s_waitcnt lgkmcnt(%d)" % (3 + x))
        pv(4, 96)
        comb(0)
        pv(5, 104)
        a("s_waitcnt lgkmcnt(0)")
        pv(6, 112)
        comb(1)
        pv(7, 120)
        stats()
        comb(2)
        a("s_branch L_c_pvdone")
        a.label("L_c_pvslow")
        a("s_waitcnt lgkmcnt(0)")
        if self.pvm:
            a("v_readfirstlane_b32 s40, v9")
            a("s_cmp_ge_i32 s40, 160")
            a("s_cbranch_scc0 L_c_pvslow2")
            self.tr128(64, 0, range(4), va=24)
            factors()
            for c in range(4):
                a("s_waitcnt lgkmcnt(%d)" % 12)
                pv(c, 64 + 8 * c)
                self.tr128(96 + 8 * c, 0, [4 + c], va=24)
            stats()
            comb(0)
            a("s_waitcnt lgkmcnt(8)")
            pv(4, 96); pv(5, 104)
            comb(1)
            a("s_waitcnt lgkmcnt(0)")
            pv(6, 112); pv(7, 120)
            comb(2)
            a("s_branch L_c_pvdone")
            a.label("L_c_pvslow2")
        factors()
        stats()
        for batch in ([0, 1, 2, 3], [4, 5], [6], [7]):
            self.lwait(C_PROG, "%d" % (104 + 8 * batch[-1]), cache="s40")
            self.tr128(64, 0, batch, va=24)
            if batch[0] == 4: comb(0); comb(1)
            if batch[0] == 7: comb(2)
            n = len(batch)
            for i, c in enumerate(batch):
                a("s_waitcnt lgkmcnt(%d)" % min(15, 4 * (n - 1 - i)))
                pv(c, 64 + 8 * i)
        a.label("L_c_pvdone")
        self.stamp(8)
        self.execm(0x00ff)
        comb(3)
        self.tag4(128)
        self.store_local(128, "v154", "s96")
        if self.later:
            a("s_cmp_ge_i32 s52, 64")
            a("s_cbranch_scc0 L_c_nolate")
            self.execm(0x0003)
            a("s_or_b32 s63, s63, 0x%x" % W_DUAL)
            self.st(216, "v151", "s63", "sc1")
            a.label("L_c_nolate")
        self.lsignal(C_O)
        self.smask(62, 0x000c)
        self.stamp(9)
        a("s_cmp_eq_u32 s55, 1")
        a("s_cbranch_scc1 L_ffn")
        a("s_cmp_eq_u32 s55, 0")
        a("s_cbranch_scc1 L_wo")
        self.finish()

    def out2(self, d0, d1):
        for r in range(4):
            self.a("v_cndmask_b32 v%d, v%d, v%d, s[62:63]" % (d0 + r, d0 + r, d1 + r))
        self.tag4(d0)

    def wo_stage(self):
        a = self.a
        a.label("L_wo")
        a("s_mov_b32 s44, %s" % f2u(L2E))
        a("s_movk_i32 s47, 0xff")
        a("s_lshl_b32 s45, s32, 7")
        a("s_add_u32 s45, s45, %d" % W_H)
        a("s_lshl_b32 s42, s33, 2")
        a("s_add_u32 s42, s42, s3")
        a("s_cmp_eq_u32 s42, %d" % (4 * self.hj))
        a("s_cselect_b32 s45, s45, 0x%x" % WS_SIZE)
        a("v_and_b32 v7, 31, v0")
        a("v_lshlrev_b32 v7, 2, v7")
        def stload(r=24):
            a("buffer_load_dwordx4 v[%d:%d], v156, s[36:39], s100 offen sc1" % (r, r + 3))
            a("buffer_load_dwordx4 v[%d:%d], v156, s[36:39], s100 offen offset:16 sc1" % (r + 4, r + 7))
        def factors():
            for q in (24, 26, 28, 30):
                a("v_xor_b32 v%d, s46, v%d" % (q, q))
                a("v_xor_b32 v%d, s31, v%d" % (q + 1, q + 1))
            a("v_or3_b32 v6, v24, v26, v28")
            a("v_or3_b32 v9, v25, v27, v29")
            a("v_or_b32 v6, v6, v30")
            a("v_or_b32 v9, v9, v31")
            a("v_and_b32 v6, 0xffff, v6")
            a("v_and_or_b32 v6, v9, s47, v6")
            a("v_cmp_ne_u32 vcc, 0, v6")
            a("v_max3_f32 v4, v24, v26, v28")
            a("v_max_f32 v4, v4, v30")
            a("s_cbranch_vccnz L_wo_st2")
            self.allred_hi("v4", "v5", "v_max_f32")
            a("v_mul_f32 v4, %s, v4" % f2u(-L2E))
            for q in range(4):
                a("v_fma_f32 v%d, v%d, s44, v4" % (20 + q, 24 + 2 * q))
            for q in range(4):
                a("v_exp_f32 v%d, v%d" % (20 + q, 20 + q))
            a("v_mul_f32 v5, v20, v25")
            for q in (1, 2, 3):
                a("v_fmac_f32 v5, v%d, v%d" % (20 + q, 25 + 2 * q))
            self.allred_hi("v5", "v4", "v_add_f32")
            a("v_rcp_f32 v5, v5")
        stload()
        a("s_mov_b32 s48, 0")
        self.lwait(C_PROG, "192", cache="s40")
        if self.st2: stload(136)
        def tile():
            self.tr128(64, L_K, range(4))
            self.stamp(10)
            a("s_mov_b32 s35, 0")
            a("s_waitcnt vmcnt(%d)" % (6 if self.st2 else 4))
            a.label("L_wo_st")
            factors()
        def again():
            if self.st2:
                a("s_cmp_eq_u32 s48, 0")
                a("s_cbranch_scc0 L_wo_st3")
                a("s_mov_b32 s48, 1")
                a("s_waitcnt vmcnt(4)")
                for q in range(8):
                    a("v_mov_b32 v%d, v%d" % (24 + q, 136 + q))
                a("s_branch L_wo_st")
                a.label("L_wo_st3")
            stload()
            for i in range(4):
                a("buffer_load_dwordx4 v[%d:%d], v152, s[36:39], s99 offen offset:%d sc1" % (32 + 4 * i, 35 + 4 * i, 1024 * i))
            a("s_add_u32 s35, s35, 1")
            a("s_cmp_lt_u32 s35, %d" % TO_V)
            a("s_cbranch_scc0 L_end")
            a("s_waitcnt vmcnt(4)")
        self.cold.append(("L_wo_st2", again, "L_wo_st"))
        def each(i):
            for r in range(4):
                if i == 0: a("v_mul_f32 v%d, v%d, v20" % (32 + r, 32 + r))
                else: a("v_fmac_f32 v%d, v%d, v%d" % (32 + r, 32 + 4 * i + r, 20 + i))
        self.gather([(32 + 4 * i, "v152", "s99", 1024 * i) for i in range(4)], each=each, pre=tile)
        if self.hint:
            a("buffer_store_dword v17, v7, s[36:39], s45 offen sc1")
        self.rounds(1, True)
        self.stamp(11)
        self.tred(32, "v4")
        a("v_mul_f32 v4, v4, v5")
        a("v_cvt_pk_bf16_f32 v4, v4, v4")
        a("ds_write_b16 v11, v4 offset:%d" % S_O)
        a("s_waitcnt lgkmcnt(0)")
        a("s_barrier")
        for t in range(4):
            a("ds_read_b128 v[%d:%d], v10 offset:%d" % (48 + 4 * t, 51 + 4 * t, S_O + 64 * t))
        for t in range(4):
            a("s_waitcnt lgkmcnt(%d)" % (3 - t))
            self.mfma(128, 64 + 8 * t, 48 + 4 * t, t == 0)
            self.mfma(132, 68 + 8 * t, 48 + 4 * t, t == 0)
        self.execm(0x000f)
        self.out2(128, 132)
        self.st(128, "v155", "s97", "sc1")
        self.execall()
        self.stamp(12)
        self.finish()

    def ffn_stage(self):
        a = self.a
        a.label("L_ffn")
        early = self.fd == 2
        self.modgather([2, 3, 4, 5], ["v20", "v4", "v22", "v21"], "s54", each=(lambda i: self.lsignal(C_X) if i == 0 else None) if early else None)
        a("v_add_f32 v22, 1.0, v22")
        self.rbf("v22")
        a("ds_write_b16_d16_hi v149, v22 offset:%d" % (S_X + 2 * 272))
        a("ds_write_b16_d16_hi v149, v4 offset:%d" % (S_X + 8 * 272))
        a("v_mov_b32 v5, 0x3f80")
        a("ds_write_b16 v149, v5 offset:%d" % (S_X + 6 * 272))
        a("s_add_u32 s44, s99, 4096")
        self.smask(60, 0x0030)
        if self.hint:
            a("v_and_b32 v7, 7, v0")
            a("v_lshlrev_b32 v7, 7, v7")
            a("s_mov_b32 s45, %d" % W_H)
        self.lwait(C_PROG, "192", cache="s40")
        self.tr64(32, "v12", L_K)
        self.tr128(64, L_K + 16384, range(2))
        self.stamp(10)
        if self.hint:
            a("s_mov_b32 s35, 0")
            a.label("L_hint")
            a("buffer_load_dword v6, v7, s[36:39], s45 offen sc1")
            a("s_add_u32 s35, s35, 1")
            a("s_cmp_lt_u32 s35, %d" % TO_V)
            a("s_cbranch_scc0 L_hinted")
            a("s_waitcnt vmcnt(0)")
            a("v_cmp_ne_u32 vcc, s31, v6")
            a("s_cbranch_vccnz L_hint")
            a.label("L_hinted")
            if self.sdet == 3: self.sstamp(5)
        def wsum(i):
            if i:
                for r in (0, 2):
                    a("v_pk_add_f32 v[%d:%d], v[%d:%d], v[%d:%d]" % (96 + r, 97 + r, 96 + r, 97 + r, 96 + 4 * i + r, 97 + 4 * i + r))
        self.gather([(96 + 4 * i, "v152", "s99" if i < 4 else "s44", 1024 * (i & 3)) for i in range(8)], each=wsum)
        self.rounds(1)
        self.stamp(11)
        self.tred(96, "v4")
        a("v_fma_f32 v23, v20, v4, v19")
        a("v_cvt_pk_bf16_f32 v5, v23, v23")
        a("v_lshlrev_b32 v23, 16, v5")
        a("ds_write_b16 v149, v5 offset:%d" % (S_X + 4 * 272))
        a("v_mul_f32 v4, v23, v22")
        a("v_cvt_pk_bf16_f32 v4, v4, v4")
        a("ds_write_b16 v149, v4 offset:%d" % S_X)
        a("s_waitcnt lgkmcnt(0)")
        a("s_barrier")
        for t in range(4):
            a("ds_read_b128 v[%d:%d], v157 offset:%d" % (48 + 4 * t, 51 + 4 * t, S_X + 64 * t))
        for t in range(4):
            a("s_waitcnt lgkmcnt(%d)" % (3 - t))
            self.mfma(128, 32 + 4 * t, 48 + 4 * t, t == 0)
            self.mfma(132, 48 + 4 * t, 48 + 4 * t, t == 0)
        self.execm(0x033f)
        for r in range(4):
            a("v_cndmask_b32 v%d, v%d, v%d, s[60:61]" % (128 + r, 128 + r, 132 + r))
        self.tag4(128)
        self.store_local(128, "v155", "s97")
        self.execall()
        self.stamp(12)
        self.gather([(96, "v152", "s100", 0), (100, "v152", "s100", 1024)])
        self.rounds(2)
        self.stamp(13)
        self.tred2([100, 96], ["v5", "v4"])
        a("v_readlane_b32 s42, v5, 1")
        a("v_readlane_b32 s43, v5, 21")
        a("v_readlane_b32 s44, v5, 33")
        a("v_readlane_b32 s45, v5, 37")
        a("v_mov_b32_dpp v6, v4 row_ror:8 row_mask:0xf bank_mask:0xf")
        a("v_mov_b32_dpp v7, v5 row_ror:8 row_mask:0xf bank_mask:0xf")
        a("v_mov_b32 v8, s42")
        a("v_mov_b32 v9, s44")
        self.execm(0x00f0)
        a("v_mov_b32 v8, s43")
        a("v_mov_b32 v9, s45")
        self.execm(0x00ff)
        a("v_mul_f32 v9, %s, v9" % f2u(1.0 / 512))
        a("v_mul_f32 v8, %s, v8" % f2u(1.0 / 512))
        a("v_fma_f32 v8, -v9, v9, v8")
        a("v_max_f32 v8, 0, v8")
        a("v_add_f32 v8, %s, v8" % f2u(1e-5))
        a("v_rsq_f32 v8, v8")
        a("v_fma_f32 v4, -v9, v6, v4")
        a("v_fma_f32 v4, v4, v8, v7")
        a("v_mul_f32 v5, %s, v4" % f2u(-L2E))
        a("v_exp_f32 v5, v5")
        a("v_add_f32 v5, 1.0, v5")
        a("v_rcp_f32 v5, v5")
        a("v_mul_f32 v4, v4, v5")
        a("v_cvt_pk_bf16_f32 v4, v4, v4")
        a("ds_write_b16 v158, v4")
        self.execall()
        a("s_waitcnt lgkmcnt(0)")
        a("s_barrier")
        for t in range(2):
            a("ds_read_b128 v[%d:%d], v10 offset:%d" % (48 + 4 * t, 51 + 4 * t, S_U + 64 * t))
        for t in range(2):
            a("s_waitcnt lgkmcnt(%d)" % (1 - t))
            self.mfma(128, 64 + 8 * t, 48 + 4 * t, t == 0)
            self.mfma(132, 68 + 8 * t, 48 + 4 * t, t == 0)
        self.execm(0x000f)
        self.out2(128, 132)
        self.st(128, "v156", "s98", "sc1")
        self.execall()
        self.stamp(14)
        a("s_lshr_b32 s42, s53, 1")
        a("s_cmp_eq_u32 s42, s3")
        a("s_cbranch_scc0 L_ffn_end")
        a("s_and_b32 s46, s53, 1")
        a("s_mul_i32 s42, s46, 3584")
        a("s_lshl_b32 s43, s53, 7")
        a("s_sub_u32 s42, s42, s43")
        a("s_add_u32 s98, s98, s42")
        a("v_and_b32 v7, 0x1ff, v152")
        a("s_lshl_b32 s46, s46, 3")
        a("s_lshl_b32 s46, 0x00ff00ff, s46")
        a("s_mov_b32 s47, s46")
        a("s_waitcnt vmcnt(0)")
        def fsum(i):
            if i == 3: a("s_mov_b32 exec_hi, 0")
            wsum(i)
            if i == 3: self.execall()
        self.gather([(96, "v152", "s98", 0), (100, "v152", "s98", 1024), (104, "v152", "s98", 2048), (108, "v7", "s98", 3072)], each=fsum)
        self.rounds(3)
        self.tred(96, "v4")
        self.dpp("v_add_f32", "v4", "row_ror:8")
        a("v_fma_f32 v4, v21, v4, v23")
        a("v_cvt_pk_bf16_f32 v4, v4, v4")
        ap = a.autopad; a.autopad = 0
        a("s_mov_b64 exec, s[46:47]")
        a("global_store_short v148, v4, s[24:25]")
        a("s_cmp_eq_u32 s2, 128")
        a("s_cbranch_scc0 L_ffn_end")
        a("s_add_u32 s42, s30, 1")
        a("s_mov_b64 exec, 1")
        a("v_mov_b32 v5, s42")
        a("v_mov_b32 v6, 0")
        a("buffer_store_dword v5, v6, s[36:39], 0 offen sc1")
        a.label("L_ffn_end")
        self.stamp(15)
        self.finish()
        a.autopad = ap

    def dump(self):
        a = self.a
        a.label("L_dump")
        a("s_mov_b64 exec, -1")
        a("s_waitcnt lgkmcnt(0)")
        for i in range(16):
            a("v_writelane_b32 v1, s%d, %d" % (64 + 2 * i, i))
        if self.calib:
            a("s_cmp_gt_u32 s3, 3")
            a("s_cbranch_scc1 L_nocal")
            a.label("L_cal")
            a("s_memrealtime s[42:43]")
            a("s_waitcnt lgkmcnt(0)")
            a("s_sub_u32 s42, s42, s64")
            a("s_cmp_lt_u32 s42, %d" % self.calib)
            a("s_cbranch_scc1 L_cal")
            a.label("L_nocal")
            if not self.hdebug:
                a("s_endpgm")
        if self.hdebug:
            a("s_cmp_lg_u32 s3, 0")
            a("s_cbranch_scc1 L_end")
            a("s_not_b32 s42, s64")
            a("v_writelane_b32 v1, s42, 1")
            a("v_lshlrev_b32 v2, 2, v0")
            a("s_mov_b64 exec, 0xffff")
            a("global_atomic_umax v2, v1, s[26:27]")
            a("s_endpgm")
        a("s_lshl_b32 s42, s2, 3")
        a("s_add_u32 s42, s42, s3")
        a("s_lshl_b32 s42, s42, 6")
        a("s_add_u32 s42, s42, %d" % W_STAMP)
        a("v_lshlrev_b32 v2, 2, v0")
        a("v_add_u32 v2, s42, v2")
        a("s_mov_b64 exec, 0xffff")
        a("global_store_dword v2, v1, s[28:29]")
        a("s_endpgm")

if __name__ == "__main__":
    import argparse
    ap = argparse.ArgumentParser()
    ap.add_argument("-o", default="cdna_kernels/" + NAME + ".s")
    ap.add_argument("--cfg", default="")
    args = ap.parse_args()
    g = Gen(**eval('dict(%s)' % args.cfg))
    open(args.o, "w").write(g.build())
    print("written", args.o, "nops inserted", g.a.nops, "pads", g.a.npad)
```
